```python
import torch

def _softmax(x, axis=-1):
    return torch.softmax(x, dim=axis)
def _gelu(x):
    return torch.nn.functional.gelu(x, approximate="tanh")
def _silu(x):
    return torch.nn.functional.silu(x)
def _sigmoid(x):
    return torch.sigmoid(x)
def _layernorm(x, axis=-1, eps=1e-5):
    m = x.mean(dim=axis, keepdim=True)
    v = x.var(dim=axis, keepdim=True, unbiased=False)
    return (x - m) / torch.sqrt(v + eps)
def _scatter_add(tgt, idx, src, axis=0):
    return tgt.clone().index_add_(axis, idx, src)
def _segment_sum(src, seg, n):
    out = torch.zeros((n,) + src.shape[1:], dtype=src.dtype)
    return out.index_add_(0, seg, src)
def _pad(x, pw):
    flat = tuple(v for pair in reversed(pw) for v in pair)
    return torch.nn.functional.pad(x, flat)

kernel_name = 'interleave_layers__sliding_block__mixer_channel_mlp__prompt'

def setup_inputs():

    _w = (lambda a: (lambda t: t.to(torch.bfloat16) if t.is_floating_point() else t)(torch.as_tensor(a)))
    def _A_setup():
        B, S, D = 1, 2048, 512
        return {
            "x": _w((lambda *s: torch.randn(*s, dtype=torch.bfloat16) * 0.05)(B, S, D)),
            "wqkv": _w((lambda *s: torch.randn(*s, dtype=torch.bfloat16) * 0.05)(D, 3 * D)),
            "wo": _w((lambda *s: torch.randn(*s, dtype=torch.bfloat16) * 0.05)(D, D)),
        }
    _A_in = _A_setup()

    def _B_setup():
        B, S, D, F = 1, 2048, 512, 1376
        return {
            "x": _w((lambda *s: torch.randn(*s, dtype=torch.bfloat16) * 0.05)(B, S, D)),
            "w1": _w((lambda *s: torch.randn(*s, dtype=torch.bfloat16) * 3.2)(D, F) * (D ** -0.5)),
            "b1": _w((lambda *s: torch.randn(*s, dtype=torch.bfloat16) * 0.8)(F)),
            "w2": _w((lambda *s: torch.randn(*s, dtype=torch.bfloat16) * 0.2)(F, D) * (F ** -0.5)),
            "b2": _w((lambda *s: torch.randn(*s, dtype=torch.bfloat16) * 0.2)(D)),
        }
    _B_in = _B_setup()

    return {
        "A_x": _A_in["x"],
        "A_wqkv": _A_in["wqkv"],
        "A_wo": _A_in["wo"],
        "B_x": _B_in["x"],
        "B_w1": _B_in["w1"],
        "B_b1": _B_in["b1"],
        "B_w2": _B_in["w2"],
        "B_b2": _B_in["b2"],
    }

def reference(A_x, A_wqkv, A_wo, B_x, B_w1, B_b1, B_w2, B_b2):
    def _A_ref(x, wqkv, wo):
        B, S, D = x.shape
        H = 32; Dh = D // H; W = 256
        qkv = (lambda x, *d: x.permute(*d))((x @ wqkv).reshape(B, S, 3, H, Dh), 2, 0, 3, 1, 4)
        q, k, v = qkv[0], qkv[1], qkv[2]
        scores = torch.einsum("bhqd,bhkd->bhqk", q, k) * (Dh ** -0.5)
        idx = torch.arange(S)
        mask = (idx[:, None] - idx[None, :] >= 0) & (idx[:, None] - idx[None, :] < W)
        scores = torch.where(mask[None, None], scores, -1e9)
        p = _softmax(scores, axis=-1)
        o = torch.einsum("bhqk,bhkd->bhqd", p, v)
        return (lambda x, *d: x.permute(*d))(o, 0, 2, 1, 3).reshape(B, S, D) @ wo

    def _B_ref(x, w1, b1, w2, b2):
        y = _layernorm(x, axis=-1)
        h = _gelu(torch.einsum("bsd,df->bsf", y, w1) + b1)
        return torch.einsum("bsf,fd->bsd", h, w2) + b2

    x = A_x
    x = x + _A_ref(_layernorm(x, axis=-1), A_wqkv, A_wo)
    x = x + _B_ref(_layernorm(x, axis=-1), B_w1, B_b1, B_w2, B_b2)
    x = x + _A_ref(_layernorm(x, axis=-1), A_wqkv, A_wo)
    x = x + _B_ref(_layernorm(x, axis=-1), B_w1, B_b1, B_w2, B_b2)
    return x
```

```python
import re

class Stream:
    def __init__(self, name=""):
        self.name = name
        self.L = []
        self.lg = []
        self.vmq = []
        self.bars = []
    def __call__(self, txt):
        self.L.append(txt)
    def label(self, l):
        self.L.append(l + ":")
    def ds(self, txt, tag=None):
        self.L.append(txt); self.lg.append(tag)
    def vm(self, txt, tag=None):
        self.L.append(txt); self.vmq.append(tag)
    def _wait(self, q, tags, name, cap):
        if not isinstance(tags, (list, set)): tags = [tags]
        idx = -1
        for i, t in enumerate(q):
            if t in tags: idx = i
        if idx < 0: return None
        n = len(q) - 1 - idx
        n = min(n, cap)
        del q[:len(q) - n]
        return n
    def wait_lg(self, tags):
        n = self._wait(self.lg, tags, "lgkmcnt", 15)
        if n is not None: self.L.append(f"s_waitcnt lgkmcnt({n})")
    def wait_vm(self, tags):
        n = self._wait(self.vmq, tags, "vmcnt", 63)
        if n is not None: self.L.append(f"s_waitcnt vmcnt({n})")
    def wait_lg0(self):
        self.L.append("s_waitcnt lgkmcnt(0)"); self.lg = []
    def wait_vm0(self):
        self.L.append("s_waitcnt vmcnt(0)"); self.vmq = []
    def wait_all0(self):
        self.L.append("s_waitcnt vmcnt(0) lgkmcnt(0)"); self.lg = []; self.vmq = []
    def bar(self, name):
        self.L.append(f"s_barrier ; {name}"); self.bars.append(name)
    def nop(self, n):
        while n > 0:
            k = min(n, 16); self.L.append(f"s_nop {k-1}"); n -= k
    def state(self):
        return (list(self.lg), list(self.vmq))
    def set_state(self, st):
        self.lg = list(st[0]); self.vmq = list(st[1])
    def text(self):
        return "\n".join(self.L)

_reg = re.compile(r"\b([vs])\[(\d+):(\d+)\]|\b([vs])(\d+)\b")
TRANS = ("v_exp_f32", "v_log_f32", "v_rcp_f32", "v_rsq_f32", "v_sqrt_f32", "v_sin_f32", "v_cos_f32")
def regs(op):
    out = []
    for m in _reg.finditer(op):
        if m.group(1): out += [(m.group(1), i) for i in range(int(m.group(2)), int(m.group(3)) + 1)]
        else: out.append((m.group(4), int(m.group(5))))
    return out
def parse(line):
    line = line.split(";")[0].strip()
    if not line or line.endswith(":") or line.startswith("."): return None
    p = line.split(None, 1)
    mn = p[0]
    ops = [o.strip() for o in p[1].split(",")] if len(p) > 1 else []
    return mn, ops
def rw(mn, ops):
    W, R = [], []
    if mn.startswith("v_mfma"):
        W = regs(ops[0]); R = regs(ops[1]) + regs(ops[2]) + regs(ops[3])
    elif mn.startswith("v_permlane") and "swap" in mn:
        W = regs(ops[0]) + regs(ops[1]); R = list(W)
    elif mn.startswith("v_cmp"):
        W = regs(ops[0]) + ([("s", "vcc")] if ops[0] == "vcc" else []); R = sum((regs(o) for o in ops[1:]), [])
    elif mn.startswith("v_readfirstlane") or mn.startswith("v_readlane"):
        W = regs(ops[0]); R = sum((regs(o) for o in ops[1:]), [])
    elif mn.startswith("v_fmac") or mn.startswith("v_dot2c") or mn.startswith("v_writelane"):
        W = regs(ops[0]); R = sum((regs(o) for o in ops), [])
    elif mn.startswith("v_"):
        W = regs(ops[0]); R = sum((regs(o) for o in ops[1:]), [])
        if any(o.split()[0] == "vcc" for o in ops[1:]): R.append(("s", "vcc"))
    elif mn.startswith("ds_read"):
        W = regs(ops[0]); R = regs(ops[1].split()[0])
    elif mn.startswith("ds_write"):
        R = sum((regs(o.split()[0]) for o in ops), [])
    elif mn.startswith("buffer_load"):
        if " lds" in (" " + ops[-1]):
            R = sum((regs(o.split()[0]) for o in ops), [])
        else:
            W = regs(ops[0]); R = sum((regs(o.split()[0]) for o in ops[1:]), [])
    elif mn.startswith("buffer_store") or mn.startswith("buffer_atomic"):
        R = sum((regs(o.split()[0]) for o in ops), [])
    elif mn.startswith("global_load"):
        W = regs(ops[0]); R = sum((regs(o.split()[0]) for o in ops[1:]), [])
    elif mn.startswith("global_store"):
        R = sum((regs(o.split()[0]) for o in ops), [])
    elif mn.startswith("s_"):
        if ops and mn not in ("s_waitcnt", "s_nop", "s_barrier", "s_branch", "s_setprio", "s_sleep", "s_endpgm") and not mn.startswith("s_cbranch") and not mn.startswith("s_cmp"):
            W = regs(ops[0]); R = sum((regs(o) for o in ops[1:]), [])
            if ops[0] == "m0": W.append(("s", "m0"))
        elif mn.startswith("s_cmp"):
            R = sum((regs(o) for o in ops), [])
    return W, R
def passes(mn):
    return 8 if "32x32x16" in mn else 4
def lint(lines):
    ins = []
    labels = {}
    for ln in lines:
        s = ln.split(";")[0].strip()
        if s.endswith(":"):
            labels[s[:-1]] = len(ins); continue
        p = parse(ln)
        if p is None: continue
        mn, ops = p
        W, R = rw(mn, ops)
        st = 1
        if mn == "s_nop": st = int(ops[0]) + 1
        ins.append((s, mn, ops, W, R, st))
    errs = []
    def need(prod, cons):
        (ps, pm, po, pW, pR, _), (cs, cm, co, cW, cR, _) = prod, cons
        n = 0
        pv = set(r for r in pW if r[0] == "v"); psg = set(r for r in pW if r[0] == "s")
        cRv = set(r for r in cR if r[0] == "v"); cWv = set(r for r in cW if r[0] == "v")
        cRs = set(r for r in cR if r[0] == "s")
        p_mfma = pm.startswith("v_mfma"); c_mfma = cm.startswith("v_mfma")
        p_valu = pm.startswith("v_") and not p_mfma
        c_valu = cm.startswith("v_") and not c_mfma
        c_mem = cm.startswith(("ds_", "buffer_", "global_"))
        if p_mfma:
            ps8 = passes(pm) == 8
            if c_mfma:
                A = set(regs(co[1])) | set(regs(co[2])); C = set(regs(co[3]))
                if A & pv: n = max(n, 12 if ps8 else 8)
                if C & pv:
                    if regs(co[3]) == pW and passes(cm) == passes(pm): pass
                    else: n = max(n, 10 if ps8 else 6)
                elif cWv & pv and not (C & pv):
                    n = max(n, 10 if ps8 else 6)
            elif c_valu or c_mem:
                if (cRv | cWv) & pv: n = max(n, 12 if ps8 else 8)
            if c_valu:
                Cp = set(regs(po[3]))
                if cWv & Cp: n = max(n, 7 if ps8 else 3)
        if p_valu:
            if c_mfma and cRv & pv: n = max(n, 2)
            if pm in TRANS and c_valu and cm not in TRANS and cRv & pv: n = max(n, 1)
            if cm.startswith("v_permlane") and cRv & pv: n = max(n, 2)
            if cm.startswith(("v_readfirstlane", "v_readlane")) and set(regs(co[1])) & pv: n = max(n, 1)
            if psg:
                if c_valu and cRs & psg: n = max(n, 2)
                if cm.startswith(("buffer_", "global_")) and cRs & psg: n = max(n, 5)
                if cm.startswith(("v_readlane", "v_writelane")) and cRs & psg: n = max(n, 4)
        if pm.startswith("s_") and ("s", "m0") in psg and cm.startswith("buffer_load") and " lds" in (" " + co[-1]): n = max(n, 1)
        if pm.startswith(("buffer_store_dwordx4", "global_store_dwordx4", "buffer_store_dwordx3")) :
            data = set(regs(po[0] if pm.startswith("buffer") else po[1]))
            if cWv & data and (c_valu): n = max(n, 2)
        return n
    def scan(start, first_prod_idx, path_prefix):
        pass
    N = len(ins)
    MAXD = 14
    def check_seq(seq):
        for a in range(len(seq)):
            prod = ins[seq[a]]
            dist = 0
            for b in range(a + 1, len(seq)):
                cons = ins[seq[b]]
                nn = need(prod, cons)
                if nn > dist:
                    errs.append(f"hazard: need {nn} have {dist}: [{prod[0]}] -> [{cons[0]}]")
                dist += cons[5]
                if dist >= MAXD: break
    check_seq(list(range(N)))
    for i, it in enumerate(ins):
        if it[1].startswith("s_cbranch") or it[1] == "s_branch":
            tgt = it[2][0]
            if tgt in labels:
                t = labels[tgt]
                pre = list(range(max(0, i - 16), i + 1)); post = list(range(t, min(N, t + 16)))
                check_seq(pre + post)
    return sorted(set(errs))
```

```python
import sys, copy
from asmlib import Stream, lint

NAME = "interleave_layers__sliding_block__mixer_channel_mlp__prompt"
OPT = dict(ts=False, stop=None, spin=400000)
for a in sys.argv[1:]:
    if a.startswith("--"):
        k, _, v = a[2:].partition("=")
        OPT[k] = (int(v) if v.lstrip("-").isdigit() else v) if v else True

K = 1024
LDS_TOTAL = 160 * K
MISC = 152 * K
ST_MEAN = MISC
ST_RSTD = MISC + 256
CS_Q = MISC + 512
CS_1 = MISC + 2048
B1F = MISC + 3584
B2F = MISC + 4352
STP = MISC + 4608
CSF_Q = MISC + 5632
CSF_1 = MISC + 6400
MODEW = MISC + 7168
KB, VB, QB, WOB = 0, 40 * K, 80 * K, 88 * K
def slot_p1(u):
    if u < 22: return 64 * K + 4 * K * u
    if u < 32: return 64 * K + 4 * K * (u - 22)
    if u < 40: return 4 * K * (u - 32)
    if u < 46: return 40 * K + 4 * K * (u - 40)
    return 64 * K + 4 * K * (u - 46)
A_P1 = 0
def slot_p4(u):
    if u < 22: return 4 * K * u
    if u < 32: return 4 * K * (u - 22)
    return 88 * K + 4 * K * (u - 32)
A_P4 = 88 * K
def slot_p5(m):
    if m < 12: return 40 * K + 4 * K * m
    if m < 22: return 4 * K * (m - 12)
    if m < 38: return 88 * K + 4 * K * (m - 22)
    return 40 * K + 4 * K * (m - 38)
RB_P3 = 136 * K
RB_P5 = 0
WS_FLAGL = 0x0
WS_FLAGR = 0x2000
WS_STATS = 0x10000
WS_XA = 0x100000
WS_HO = 0x300000
HO_STRIDE = 0x2C000
H_TT = 86 * 1024
WS_KV = 0x900000
WS_TS = 0x1200000
WS_SIZE = 0x2000000
SRD_X, SRD_WQ, SRD_WO, SRD_W1, SRD_W2, SRD_WS, SRD_OUT, SRD_DBG = 4, 8, 12, 16, 20, 24, 28, 32
sG, sJ, sW, sI, sPAIR, sFAST, sTT, sCP = 36, 37, 38, 39, 40, 41, 42, 43
SRD_TMP = 44
sI1K = 48
sT0, sT1, sT2, sT3 = 49, 50, 51, 52
sXA = 53
sHO = 54
sWQb, sW1b, sWOb = 55, 56, 57
sKVw = 58
sSTATS = 59
sSPIN = 60
sHST = (61, 62, 63, 64, 65, 66)
sX0 = 61
sKVr = 62
sVMASK = 68
sEXEC = 70
sTMIN = 72
sO = 73
sVAL = 74
sOUTb = 75
sTS = 76
sM16 = 78
sM0_32 = 80
sC1, sC2, sC3 = 82, 83, 84
sKPTR = 86
vLANE, vL16 = 0, 1
vTRA = (2, 3, 4)
vTRK = (5, 6, 7)
vTRS = (8, 9, 10)
vAR = 11
vCSA = 12
vTOK = 13
vSTB = 14
vTS = 15
vXR = 16
vACC = (32, 48)
vWF = 64
vE = 88
vA = 128
vPQ, vP1, vPO, vX0, vPOLL, vFLAG, vSTA, vSTW = 2, 3, 4, 5, 6, 7, 8, 9

EPS = 1e-5
import struct, math
def f2u(x): return struct.unpack("<I", struct.pack("<f", x))[0]
QSCALE = math.log2(math.e) / 4.0
GC0 = -2.0 * math.sqrt(2.0 / math.pi) * math.log2(math.e)
GC1 = GC0 * 0.044715
NEGBIG = f2u(-1.0e30)

def ts(a, idx):
    if not OPT["ts"]: return
    a.wait_lg0()
    a(f"s_memtime s[{sTS}:{sTS+1}]")
    a("s_waitcnt lgkmcnt(0)")
    a(f"v_writelane_b32 v{vTS}, s{sTS}, {idx}")

def srd(a, d, ptr, size):
    a(f"s_mov_b32 s{d}, s{ptr}")
    a(f"s_and_b32 s{d+1}, s{ptr+1}, 0xffff")
    a(f"s_mov_b32 s{d+2}, {size}")
    a(f"s_mov_b32 s{d+3}, 0x20000")

def vr(b, n): return f"v[{b}:{b+n-1}]"

class LdsBase:
    def __init__(self, regs): self.regs = regs
    def at(self, addr):
        return self.regs[addr >> 16], addr & 0xffff

def dma(a, srdn, vpat, sbase, soff, lds, tag, flags=""):
    a(f"s_add_u32 m0, s{sI1K}, {lds}")
    a(f"s_add_u32 s{sT0}, s{sbase}, {soff}")
    a.vm(f"buffer_load_dwordx4 v{vpat}, s[{srdn}:{srdn+3}], s{sT0} offen {flags} lds".replace("  ", " "), tag)

def dual_store(a, kind, data, vaddr, srdn, soff, extra=""):
    lab = a.name + f"_ds{len(a.L)}"
    a(f"s_cmp_eq_u32 s{sFAST}, 0")
    a(f"s_cbranch_scc1 {lab}_s")
    a(f"{kind} {data}, v{vaddr}, s[{srdn}:{srdn+3}], {soff} offen {extra}".rstrip())
    a(f"s_branch {lab}_e")
    a.label(f"{lab}_s")
    a.vm(f"{kind} {data}, v{vaddr}, s[{srdn}:{srdn+3}], {soff} offen {extra} sc1".replace("  ", " "), "st")
    a.label(f"{lab}_e")

def common_init(a):
    a("s_cmp_ge_u32 s2, 256")
    a("s_cbranch_scc1 L_exit")
    a(f"s_load_dwordx16 s[{64}:{79}], s[0:1], 0")
    a(f"s_load_dwordx4 s[{88}:{91}], s[0:1], 64")
    a(f"s_load_dwordx2 s[{92}:{93}], s[0:1], 80")
    a(f"v_lshrrev_b32 v1, 6, v0")
    a(f"v_and_b32 v{vLANE}, 63, v0")
    a(f"s_and_b32 s{sT0}, s2, 7")
    a(f"v_readfirstlane_b32 s{sW}, v1")
    a(f"s_lshr_b32 s{sT1}, s2, 3")
    a(f"s_lshr_b32 s{sT2}, s{sT1}, 3")
    a(f"s_lshl_b32 s{sT0}, s{sT0}, 2")
    a(f"s_add_u32 s{sG}, s{sT0}, s{sT2}")
    a(f"s_and_b32 s{sJ}, s{sT1}, 7")
    a(f"s_and_b32 s{sI}, s{sW}, 3")
    a(f"s_lshl_b32 s{sI1K}, s{sI}, 10")
    a(f"s_mov_b32 s{sPAIR}, 0")
    a(f"s_mov_b32 s{sFAST}, 0")
    a(f"v_lshlrev_b32 v{vL16}, 4, v{vLANE}")
    a(f"v_mov_b32 v{vTS}, 0")
    a("s_waitcnt lgkmcnt(0)")
    srd(a, SRD_X, 64, 2048 * 1024)
    srd(a, SRD_WQ, 66, 512 * 3072)
    srd(a, SRD_WO, 68, 512 * 1024)
    srd(a, SRD_W1, 72, 512 * 2752)
    srd(a, SRD_W2, 76, 1376 * 1024)
    srd(a, SRD_WS, 92, WS_SIZE)
    srd(a, SRD_OUT, 88, 2048 * 1024)
    srd(a, SRD_DBG, 90, 256)
    a("s_mov_b32 s94, s74"); a("s_mov_b32 s95, s75"); a("s_mov_b32 s96, s78"); a("s_mov_b32 s97, s79")
    a(f"s_mul_i32 s98, s{sJ}, 11")
    a(f"s_cmp_eq_u32 s{sJ}, 7")
    a(f"s_cselect_b32 s98, 76, s98")
    a(f"s_cmp_ge_u32 s{sJ}, 6")
    a(f"s_cselect_b32 s99, 10, 11")
    a(f"s_mov_b32 s{sVMASK}, 0x0000ffff"); a(f"s_mov_b32 s{sVMASK+1}, 0x0000ffff")
    a(f"s_mov_b64 s[{sM16}:{sM16+1}], 0xffff")
    a(f"s_mov_b32 s{sM0_32}, 1"); a(f"s_mov_b32 s{sM0_32+1}, 1")
    a(f"s_lshl_b32 s{sSTATS}, s{sG}, 13"); a(f"s_add_u32 s{sSTATS}, s{sSTATS}, {WS_STATS}")
    a(f"s_cmp_ge_u32 s{sW}, 4")
    a("s_cbranch_scc1 L_loader")

def tr_addr(a, dst, ct_expr_sgpr, natural_second=None, tmp=(vE, vE+1, vE+2, vE+3)):
    t0, t1, t2, t3 = tmp
    def one(d, kexpr):
        kexpr(t0)
        a(f"v_lshrrev_b32 v{t1}, 1, v{t0}"); a(f"v_and_b32 v{t1}, 3, v{t1}")
        a(f"v_and_b32 v{t2}, 1, v{t1}"); a(f"v_lshlrev_b32 v{t2}, 1, v{t2}"); a(f"v_lshrrev_b32 v{t1}, 1, v{t1}")
        a(f"v_or_b32 v{t1}, v{t1}, v{t2}")
        a(f"v_lshrrev_b32 v{t2}, 4, v{vLANE}"); a(f"v_and_b32 v{t2}, 1, v{t2}")
        a(f"s_lshl_b32 s{sT3}, s{ct_expr_sgpr}, 1")
        a(f"v_add_u32 v{t2}, s{sT3}, v{t2}")
        a(f"v_xor_b32 v{t1}, v{t1}, v{t2}"); a(f"v_lshlrev_b32 v{t1}, 5, v{t1}")
        a(f"v_lshlrev_b32 v{t0}, 7, v{t0}")
        a(f"v_and_b32 v{t2}, 3, v{vLANE}"); a(f"v_lshlrev_b32 v{t2}, 3, v{t2}")
        a(f"v_add3_u32 v{d}, v{t0}, v{t1}, v{t2}")
    def kperm(t):
        a(f"v_lshrrev_b32 v{t}, 5, v{vLANE}"); a(f"v_lshlrev_b32 v{t}, 2, v{t}")
        a(f"v_bfe_u32 v{t3}, v{vLANE}, 2, 2"); a(f"v_add_u32 v{t}, v{t}, v{t3}")
    def knat(off):
        def f(t):
            a(f"v_lshrrev_b32 v{t}, 5, v{vLANE}"); a(f"v_lshlrev_b32 v{t}, 3, v{t}")
            a(f"v_bfe_u32 v{t3}, v{vLANE}, 2, 2"); a(f"v_add_u32 v{t}, v{t}, v{t3}")
            if off: a(f"v_add_u32 v{t}, {off}, v{t}")
        return f
    if natural_second is None: one(dst, kperm)
    else:
        one(dst, knat(0)); one(natural_second, knat(4))

def three_bases(a, regs):
    a(f"v_add_u32 v{regs[1]}, 0x10000, v{regs[0]}")
    a(f"v_add_u32 v{regs[2]}, 0x20000, v{regs[0]}")

vNA = (vE + 20, vE + 21, vE + 22)
vNB = (vE + 23, vE + 24, vE + 25)
vSEL = vE + 28
vCSACC = vE + 32

def compute_prologue(a):
    a(f"s_lshr_b32 s{sTT}, s{sW}, 1")
    a(f"s_and_b32 s{sCP}, s{sW}, 1")
    a(f"s_cmp_lg_u32 s{sW}, 0")
    a("s_cbranch_scc1 L_c_noinit")
    a(f"s_lshl_b32 s{sT0}, s{sG}, 7"); a(f"s_lshl_b32 s{sT1}, s{sJ}, 2"); a(f"s_add_u32 s{sT0}, s{sT0}, s{sT1}")
    a(f"s_lshl_b32 s{sT1}, s{sG}, 3"); a(f"s_add_u32 s{sT1}, s{sT1}, s{sJ}"); a(f"s_lshl_b32 s{sT1}, s{sT1}, 7"); a(f"s_add_u32 s{sT1}, s{sT1}, {WS_FLAGR}")
    a(f"v_mov_b32 v{vE}, s{sT0}"); a(f"v_mov_b32 v{vE+1}, s{sT1}"); a(f"v_mov_b32 v{vE+2}, 0")
    a(f"s_getreg_b32 s{sT2}, hwreg(HW_REG_XCC_ID, 0, 3)")
    a(f"s_lshl_b32 s{sT2}, s{sT2}, 2"); a(f"s_lshl_b32 s{sT2}, 1, s{sT2}")
    a(f"s_lshl_b32 s{sT3}, s{sG}, 2")
    a(f"v_mov_b32 v{vE+3}, s{sT2}"); a(f"v_mov_b32 v{vE+4}, s{sT3}")
    a(f"s_mov_b64 s[{sEXEC}:{sEXEC+1}], exec"); a("s_mov_b64 exec, 1")
    a(f"buffer_store_dword v{vE+2}, v{vE}, s[{SRD_WS}:{SRD_WS+3}], 0 offen sc1")
    a(f"buffer_store_dword v{vE+2}, v{vE+1}, s[{SRD_WS}:{SRD_WS+3}], 0 offen sc1")
    a("s_waitcnt vmcnt(0)")
    a(f"buffer_atomic_add v{vE+3}, v{vE+4}, s[{SRD_DBG}:{SRD_DBG+3}], 0 offen sc1")
    a(f"s_mov_b64 exec, s[{sEXEC}:{sEXEC+1}]")
    a.label("L_c_noinit")
    t = vE
    a(f"v_and_b32 v{t}, 31, v{vLANE}"); a(f"v_lshlrev_b32 v{t}, 10, v{t}")
    a(f"v_lshrrev_b32 v{t+1}, 5, v{vLANE}"); a(f"v_lshlrev_b32 v{t+1}, 3, v{t+1}"); a(f"v_add_u32 v{t}, v{t}, v{t+1}")
    a(f"s_lshl_b32 s{sT0}, s{sG}, 16"); a(f"s_lshl_b32 s{sT1}, s{sTT}, 15"); a(f"s_add_u32 s{sT0}, s{sT0}, s{sT1}")
    a(f"s_lshl_b32 s{sT1}, s{sJ}, 7"); a(f"s_add_u32 s{sT0}, s{sT0}, s{sT1}"); a(f"s_lshl_b32 s{sT1}, s{sCP}, 6"); a(f"s_add_u32 s{sOUTb}, s{sT0}, s{sT1}")
    for q in range(4):
        a.vm(f"buffer_load_dwordx2 {vr(vE+8+2*q,2)}, v{t}, s[{SRD_X}:{SRD_X+3}], s{sOUTb} offen offset:{16*q}", "xres")
    a(f"s_cmp_lt_u32 s{sW}, 2")
    a("s_cbranch_scc1 L_c_nob")
    a(f"s_cmp_eq_u32 s{sW}, 2")
    a(f"s_cselect_b32 s{sT0}, s94, s96"); a(f"s_cselect_b32 s{sT1}, s95, s97")
    a(f"s_mov_b32 s{SRD_TMP}, s{sT0}"); a(f"s_and_b32 s{SRD_TMP+1}, s{sT1}, 0xffff")
    a(f"s_movk_i32 s{sT2}, 1024"); a(f"s_cselect_b32 s{SRD_TMP+2}, 2752, s{sT2}"); a(f"s_mov_b32 s{SRD_TMP+3}, 0x20000")
    a(f"s_cmp_eq_u32 s{sW}, 2")
    a(f"s_lshl_b32 s{sT0}, s98, 5"); a(f"s_lshl_b32 s{sT1}, s{sJ}, 7")
    a(f"s_cmp_eq_u32 s{sW}, 2")
    a(f"s_cselect_b32 s{sT0}, s{sT0}, s{sT1}")
    a(f"s_mov_b32 s{sT1}, {B2F}"); a(f"s_cselect_b32 s{sT1}, {B1F}, s{sT1}")
    a(f"s_cselect_b32 s{sT2}, 48, 16")
    a(f"v_lshlrev_b32 v{t+2}, 3, v{vLANE}")
    a(f"buffer_load_dwordx2 {vr(vE+4,2)}, v{t+2}, s[{SRD_TMP}:{SRD_TMP+3}], s{sT0} offen")
    a(f"v_add_u32 v{t+3}, s{sT1}, v{vL16}")
    a(f"v_cmp_gt_u32 vcc, s{sT2}, v{vLANE}")
    a("s_waitcnt vmcnt(0)")
    a.vmq = []
    a(f"v_lshlrev_b32 v{vE+16}, 16, v{vE+4}"); a(f"v_and_b32 v{vE+17}, 0xffff0000, v{vE+4}")
    a(f"v_lshlrev_b32 v{vE+18}, 16, v{vE+5}"); a(f"v_and_b32 v{vE+19}, 0xffff0000, v{vE+5}")
    a(f"s_and_saveexec_b64 s[{sEXEC}:{sEXEC+1}], vcc")
    a(f"ds_write_b128 v{t+3}, {vr(vE+16,4)}")
    a(f"s_mov_b64 exec, s[{sEXEC}:{sEXEC+1}]")
    a.label("L_c_nob")
    a("s_waitcnt vmcnt(0) lgkmcnt(0)"); a.vmq = []; a.lg = []
    for q in range(4):
        for h in range(2):
            a(f"v_lshlrev_b32 v{vXR+4*q+2*h}, 16, v{vE+8+2*q+h}")
            a(f"v_and_b32 v{vXR+4*q+2*h+1}, 0xffff0000, v{vE+8+2*q+h}")
    tr_addr(a, vTRA[0], sCP); three_bases(a, vTRA)
    tr_addr(a, vNA[0], sCP, natural_second=vNB[0]); three_bases(a, vNA); three_bases(a, vNB)
    tr_addr(a, vTRK[0], sCP)
    a(f"s_xor_b32 s{sT2}, s{sCP}, 1")
    tr_addr(a, vTRS[0], sT2)
    a(f"s_lshl_b32 s{sT0}, s{sCP}, 11")
    a(f"v_add_u32 v{vTRK[0]}, s{sT0}, v{vTRK[0]}"); a(f"v_add_u32 v{vTRS[0]}, s{sT0}, v{vTRS[0]}")
    three_bases(a, vTRK); three_bases(a, vTRS)
    a(f"s_lshl_b32 s{sT0}, s{sTT}, 10"); a(f"v_add_u32 v{vAR}, s{sT0}, v{vL16}")
    a(f"v_lshrrev_b32 v{t}, 5, v{vLANE}"); a(f"v_lshlrev_b32 v{t}, 4, v{t}")
    a(f"s_lshl_b32 s{sT0}, s{sCP}, 7"); a(f"v_add_u32 v{vCSA}, s{sT0}, v{t}")
    a(f"s_lshl_b32 s{sT0}, s{sTT}, 7"); a(f"v_add_u32 v{vSTB}, s{sT0}, v{t}")
    a(f"v_and_b32 v{t}, 31, v{vLANE}"); a(f"v_lshlrev_b32 v{t}, 2, v{t}"); a(f"v_add_u32 v{vTOK}, s{sT0}, v{t}")
    a(f"s_lshl_b32 s{sXA}, s{sG}, 16"); a(f"s_lshl_b32 s{sT0}, s{sTT}, 15"); a(f"s_add_u32 s{sXA}, s{sXA}, s{sT0}")
    a(f"s_lshl_b32 s{sT0}, s{sJ}, 12"); a(f"s_add_u32 s{sXA}, s{sXA}, s{sT0}"); a(f"s_lshl_b32 s{sT0}, s{sCP}, 11"); a(f"s_add_u32 s{sXA}, s{sXA}, s{sT0}")
    a(f"s_add_u32 s{sXA}, s{sXA}, {WS_XA}")
    a(f"s_mul_i32 s{sHO}, s{sG}, {HO_STRIDE}"); a(f"s_add_u32 s{sHO}, s{sHO}, {WS_HO}")
    a(f"s_lshl_b32 s{sKVw}, s{sG}, 3"); a(f"s_add_u32 s{sKVw}, s{sKVw}, s{sJ}"); a(f"s_lshl_b32 s{sKVw}, s{sKVw}, 14")
    a(f"s_lshl_b32 s{sT0}, s{sTT}, 12"); a(f"s_add_u32 s{sKVw}, s{sKVw}, s{sT0}"); a(f"s_lshl_b32 s{sT0}, s{sCP}, 11"); a(f"s_add_u32 s{sKVw}, s{sKVw}, s{sT0}")
    a(f"s_add_u32 s{sKVw}, s{sKVw}, {WS_KV}")
    for s in range(3):
        for sub in range(2):
            d = sHST[2*s+sub]
            a(f"s_lshl_b32 s{sT0}, s{sCP}, 1"); a(f"s_add_u32 s{sT0}, s{sT0}, {4*s+sub}")
            a(f"s_add_u32 s{sT1}, s{sT0}, s98"); a(f"s_lshl_b32 s{sT1}, s{sT1}, 10")
            a(f"s_mul_i32 s{sT2}, s{sTT}, {H_TT}"); a(f"s_add_u32 s{sT1}, s{sT1}, s{sT2}"); a(f"s_add_u32 s{sT1}, s{sT1}, s{sHO}")
            a(f"s_cmp_lt_u32 s{sT0}, s99")
            a(f"s_cselect_b32 s{d}, s{sT1}, 0x7ffff000")
    a(f"s_mov_b32 s{sC1}, {f2u(1.0/512.0)}"); a(f"s_mov_b32 s{sC2}, {f2u(EPS)}"); a(f"s_mov_b32 s{sC3}, {f2u(QSCALE)}")

def stats_finalize(a, v, tmp, vaddr, double_ln):
    t0, t1, t2, t3 = tmp
    a(f"v_mov_b32 v{t0}, v{v}")
    a.nop(2)
    a(f"v_permlane32_swap_b32 v{v}, v{t0}")
    a(f"v_mul_f32 v{v}, s{sC1}, v{v}")
    a(f"v_mul_f32 v{t0}, s{sC1}, v{t0}")
    a(f"v_fma_f32 v{t0}, -v{v}, v{v}, v{t0}")
    a(f"v_max_f32 v{t0}, 0, v{t0}")
    a(f"v_add_f32 v{t1}, s{sC2}, v{t0}")
    a(f"v_rsq_f32 v{t1}, v{t1}")
    a.nop(1)
    if double_ln:
        a(f"v_mul_f32 v{t2}, v{t1}, v{t1}")
        a(f"v_mul_f32 v{t2}, v{t2}, v{t0}")
        a(f"v_add_f32 v{t2}, s{sC2}, v{t2}")
        a(f"v_rsq_f32 v{t2}, v{t2}")
        a.nop(1)
        a(f"v_mul_f32 v{t1}, v{t1}, v{t2}")
    a(f"v_cmp_gt_u32 s[{sEXEC}:{sEXEC+1}], 32, v{vLANE}")
    a.nop(2)
    a(f"v_cndmask_b32 v{t3}, v{t1}, v{v}, s[{sEXEC}:{sEXEC+1}]")
    a.ds(f"ds_write_b32 v{vaddr}, v{t3}", "stw")

E = 80
ePK = 84
D_AHEAD = 4

def items_kq(a, ac, T, v1, is_q):
    mean, rs, ad, adc = E, E + 1, E + 2, E + 3
    w = 92
    cs = [96, 100, 104, 108]
    it = []
    it.append(lambda: a(f"v_add_u32 v{ad}, {ST_MEAN}, v{vTOK}"))
    it.append(lambda: a(f"v_add_u32 v{adc}, {MISC}, v{vCSA}"))
    it.append(lambda: a.ds(f"ds_read_b32 v{mean}, v{ad} offset:0", "em"))
    it.append(lambda: a.ds(f"ds_read_b32 v{rs}, v{ad} offset:256", "er"))
    if not v1:
        for g in range(4):
            it.append(lambda g=g: a.ds(f"ds_read_b128 {vr(cs[g],4)}, v{adc} offset:{CSF_Q - MISC + T*256 + g*32}", f"ca{g}"))
        for _ in range(6): it.append(lambda: None)
    if is_q:
        def fq():
            a.wait_lg("er"); a(f"v_mul_f32 v{rs}, s{sC3}, v{rs}")
        it.append(fq)
    for g in range(4):
        c = cs[0] if v1 else cs[g]
        if v1:
            it.append(lambda g=g: a.ds(f"ds_read_b128 {vr(cs[0],4)}, v{adc} offset:{CS_Q - MISC + T*256 + g*32}", f"ca{g}"))
            it.append(lambda g=g: a.ds(f"ds_read_b128 {vr(cs[1],4)}, v{adc} offset:{CS_Q - MISC + 768 + T*256 + g*32}", f"cb{g}"))
            for e in range(4):
                def f(e=e, g=g):
                    a.wait_lg([f"ca{g}", f"cb{g}"]); a(f"v_add_f32 v{cs[0]+e}, v{cs[0]+e}, v{cs[1]+e}")
                it.append(f)
            def fw(g=g):
                a(f"s_mov_b64 exec, s[{sM0_32}:{sM0_32+1}]")
                a.ds(f"ds_write_b128 v{adc}, {vr(cs[0],4)} offset:{CSF_Q - MISC + T*256 + g*32}", "cw")
                a("s_mov_b64 exec, -1")
            it.append(fw)
        for e in range(4):
            def f(e=e, g=g, c=c):
                a.wait_lg(["em", "er", f"ca{g}", f"cb{g}"])
                a(f"v_fma_f32 v{w+e}, -v{mean}, v{c+e}, v{ac+4*g+e}")
            it.append(f)
        for e in range(4):
            it.append(lambda e=e: a(f"v_mul_f32 v{w+e}, v{w+e}, v{rs}"))
        it.append(lambda g=g: a(f"v_cvt_pk_bf16_f32 v{ePK+2*g}, v{w}, v{w+1}"))
        it.append(lambda g=g: a(f"v_cvt_pk_bf16_f32 v{ePK+2*g+1}, v{w+2}, v{w+3}"))
    if not is_q:
        it.append(lambda: a(f"s_lshl_b32 s{sT1}, s{sTT}, 12"))
        it.append(lambda: a(f"s_lshl_b32 s{sT2}, s{sCP}, 11"))
        it.append(lambda: a(f"s_add_u32 s{sT1}, s{sT1}, s{sT2}"))
        it.append(lambda: a(f"v_add_u32 v{ad}, s{sT1}, v{vL16}"))
        for hh in range(2):
            it.append(lambda hh=hh: a.vm(f"buffer_store_dwordx4 {vr(ePK+4*hh,4)}, v{vL16}, s[{SRD_WS}:{SRD_WS+3}], s{sKVw} offen offset:{hh*1024} sc1", "kv"))
            it.append(lambda hh=hh: a.ds(f"ds_write_b128 v{ad}, {vr(ePK+4*hh,4)} offset:{KB + 32*K + hh*1024}", "kw"))
    else:
        it.append(lambda: a(f"s_lshl_b32 s{sT1}, s{sTT}, 10"))
        it.append(lambda: a(f"s_lshl_b32 s{sT2}, s{sCP}, 12"))
        it.append(lambda: a(f"s_add_u32 s{sT1}, s{sT1}, s{sT2}"))
        it.append(lambda: a(f"s_add_u32 s{sT1}, s{sT1}, {QB}"))
        it.append(lambda: a(f"v_add_u32 v{ad}, s{sT1}, v{vL16}"))
        for hh in range(2):
            it.append(lambda hh=hh: a.ds(f"ds_write_b128 v{ad}, {vr(ePK+4*hh,4)} offset:{hh*2048}", "qw"))
    return it

def items_v(a, ac, T, v1):
    cs, cs2, ad, ads = E, E + 1, E + 2, E + 3
    w = 92
    mb, rb = ((96, 96), (100, 100)) if v1 else ((96, 104), (100, 108))
    it = []
    it.append(lambda: a(f"v_and_b32 v{ad}, 31, v{vLANE}"))
    it.append(lambda: a(f"v_lshlrev_b32 v{ad}, 2, v{ad}"))
    it.append(lambda: a(f"s_lshl_b32 s{sT1}, s{sCP}, 7"))
    it.append(lambda: a(f"s_add_u32 s{sT1}, s{sT1}, {MISC}"))
    it.append(lambda: a(f"v_add_u32 v{ad}, s{sT1}, v{ad}"))
    it.append(lambda: a(f"v_add_u32 v{ads}, {MISC}, v{vSTB}"))
    def rd(g):
        it.append(lambda g=g: a.ds(f"ds_read_b128 {vr(mb[g%2],4)}, v{ads} offset:{ST_MEAN - MISC + g*32}", f"m{g}"))
        it.append(lambda g=g: a.ds(f"ds_read_b128 {vr(rb[g%2],4)}, v{ads} offset:{ST_RSTD - MISC + g*32}", f"r{g}"))
    if v1:
        it.append(lambda: a.ds(f"ds_read_b32 v{cs}, v{ad} offset:{CS_Q - MISC + T*256}", "ca"))
        it.append(lambda: a.ds(f"ds_read_b32 v{cs2}, v{ad} offset:{CS_Q - MISC + 768 + T*256}", "cb"))
        def f():
            a.wait_lg(["ca", "cb"]); a(f"v_add_f32 v{cs}, v{cs}, v{cs2}")
        it.append(f)
        it.append(lambda: a.ds(f"ds_write_b32 v{ad}, v{cs} offset:{CSF_Q - MISC + T*256}", "cw"))
    else:
        it.append(lambda: a.ds(f"ds_read_b32 v{cs}, v{ad} offset:{CSF_Q - MISC + T*256}", "ca"))
        rd(0)
        for _ in range(6): it.append(lambda: None)
    for g in range(4):
        if v1: rd(g)
        elif g < 3: rd(g + 1)
        for e in range(4):
            def f(e=e, g=g):
                a.wait_lg(["ca", f"m{g}"])
                a(f"v_fma_f32 v{w+e}, -v{mb[g%2]+e}, v{cs}, v{ac+4*g+e}")
            it.append(f)
        for e in range(4):
            def f(e=e, g=g):
                a.wait_lg(f"r{g}"); a(f"v_mul_f32 v{w+e}, v{w+e}, v{rb[g%2]+e}")
            it.append(f)
        it.append(lambda g=g: a(f"v_cvt_pk_bf16_f32 v{ePK+2*g}, v{w}, v{w+1}"))
        it.append(lambda g=g: a(f"v_cvt_pk_bf16_f32 v{ePK+2*g+1}, v{w+2}, v{w+3}"))
    it.append(lambda: a(f"v_bfe_u32 v{ad}, v{vLANE}, 4, 1"))
    it.append(lambda: a(f"v_lshlrev_b32 v{ad}, 10, v{ad}"))
    it.append(lambda: a(f"v_lshrrev_b32 v{cs2}, 5, v{vLANE}"))
    it.append(lambda: a(f"v_lshl_add_u32 v{ad}, v{cs2}, 8, v{ad}"))
    it.append(lambda: a(f"v_and_b32 v{cs2}, 15, v{vLANE}"))
    it.append(lambda: a(f"v_lshl_add_u32 v{ad}, v{cs2}, 4, v{ad}"))
    it.append(lambda: a(f"s_lshl_b32 s{sT1}, s{sTT}, 12"))
    it.append(lambda: a(f"s_lshl_b32 s{sT2}, s{sCP}, 11"))
    it.append(lambda: a(f"s_add_u32 s{sT1}, s{sT1}, s{sT2}"))
    it.append(lambda: a(f"s_add_u32 s{sT1}, s{sT1}, {VB + 32*K}"))
    it.append(lambda: a(f"v_add_u32 v{ads}, s{sT1}, v{ad}"))
    it.append(lambda: a(f"s_add_u32 s{sT2}, s{sKVw}, 8192"))
    for s in range(2):
        it.append(lambda s=s: a.vm(f"buffer_store_dwordx4 {vr(ePK+4*s,4)}, v{ad}, s[{SRD_WS}:{SRD_WS+3}], s{sT2} offen offset:{s*512} sc1", "kv"))
        it.append(lambda s=s: a.ds(f"ds_write_b128 v{ads}, {vr(ePK+4*s,4)} offset:{s*512}", "vw"))
    return it

def items_h(a, ac, T, v1):
    mr, rs, gc, ad2 = E, E + 1, E + 2, E + 3
    u, t = 92, 96
    if v1: csA, bbs, csB = (100, 100), (104, 104), 108
    else:  csA, bbs, csB = (100, 108), (104, 112), None
    CSR = CS_1 if v1 else CSF_1
    it = []
    it.append(lambda: a(f"v_add_u32 v{ad2}, {ST_MEAN}, v{vTOK}"))
    it.append(lambda: a.ds(f"ds_read_b32 v{mr}, v{ad2} offset:0", "em"))
    it.append(lambda: a.ds(f"ds_read_b32 v{rs}, v{ad2} offset:256", "er"))
    it.append(lambda: a(f"v_add_u32 v{ad2}, {MISC}, v{vCSA}"))
    it.append(lambda: a(f"v_mov_b32 v{gc}, {f2u(GC1)}"))
    def rd(g):
        it.append(lambda g=g: a.ds(f"ds_read_b128 {vr(csA[g%2],4)}, v{ad2} offset:{CSR - MISC + T*256 + g*32}", f"ca{g}"))
        if v1: it.append(lambda g=g: a.ds(f"ds_read_b128 {vr(csB,4)}, v{ad2} offset:{CS_1 - MISC + 768 + T*256 + g*32}", f"cb{g}"))
        it.append(lambda g=g: a.ds(f"ds_read_b128 {vr(bbs[g%2],4)}, v{ad2} offset:{B1F - MISC + T*256 + g*32}", f"b{g}"))
    if not v1:
        rd(0)
        for _ in range(5): it.append(lambda: None)
    def fm():
        a.wait_lg(["em", "er"]); a(f"v_mul_f32 v{mr}, v{mr}, v{rs}")
    it.append(fm)
    for g in range(4):
        cA, bb = csA[g % 2], bbs[g % 2]
        if v1:
            rd(g)
            for e in range(4):
                def f(e=e, g=g, cA=cA):
                    a.wait_lg([f"ca{g}", f"cb{g}"]); a(f"v_add_f32 v{cA+e}, v{cA+e}, v{csB+e}")
                it.append(f)
            def fw(g=g, cA=cA):
                a(f"s_mov_b64 exec, s[{sM0_32}:{sM0_32+1}]")
                a.ds(f"ds_write_b128 v{ad2}, {vr(cA,4)} offset:{CSF_1 - MISC + T*256 + g*32}", "cw")
                a("s_mov_b64 exec, -1")
            it.append(fw)
        for e in range(4):
            def f(e=e, g=g, cA=cA, bb=bb):
                a.wait_lg([f"ca{g}", f"b{g}"]); a(f"v_fma_f32 v{bb+e}, -v{mr}, v{cA+e}, v{bb+e}")
            it.append(f)
        for e in range(4): it.append(lambda e=e, g=g, bb=bb: a(f"v_fma_f32 v{u+e}, v{ac+4*g+e}, v{rs}, v{bb+e}"))
        if not v1 and g < 3: rd(g + 1)
        for e in range(4): it.append(lambda e=e: a(f"v_mul_f32 v{t+e}, v{u+e}, v{u+e}"))
        for e in range(4): it.append(lambda e=e: a(f"v_fmaak_f32 v{t+e}, v{t+e}, v{gc}, {f2u(GC0)}"))
        for e in range(4): it.append(lambda e=e: a(f"v_mul_f32 v{t+e}, v{t+e}, v{u+e}"))
        for e in range(4): it.append(lambda e=e: a(f"v_exp_f32 v{t+e}, v{t+e}"))
        for e in range(4): it.append(lambda e=e: a(f"v_add_f32 v{t+e}, 1.0, v{t+e}"))
        for e in range(4): it.append(lambda e=e: a(f"v_rcp_f32 v{t+e}, v{t+e}"))
        for e in range(4): it.append(lambda e=e: a(f"v_mul_f32 v{u+e}, v{u+e}, v{t+e}"))
        it.append(lambda g=g: a(f"v_cvt_pk_bf16_f32 v{ePK+2*g}, v{u}, v{u+1}"))
        it.append(lambda g=g: a(f"v_cvt_pk_bf16_f32 v{ePK+2*g+1}, v{u+2}, v{u+3}"))
        if g % 2 == 1:
            sub = g // 2
            it.append(lambda: a("s_nop 0"))
            it.append(lambda sub=sub: dual_store(a, "buffer_store_dwordx4", vr(ePK + 4*sub, 4), vL16, SRD_WS, f"s{sHST[2*T+sub]}"))
    return it

def gemm192(a, ph, v1, slot, abase, tiles, a_interleave, natural=False, bname="B"):
    pre = f"{ph}"
    trA = LdsBase(vNA) if natural else LdsBase(vTRA)
    trB = LdsBase(vNB) if natural else None
    vAb = 115
    if a_interleave and abase:
        a(f"v_add_u32 v{vAb}, {abase}, v{vAR}")
    areg = vAb if (a_interleave and abase) else vAR
    CSB = CS_Q if ph.startswith("p1") else CS_1
    if v1:
        a(f"v_bfe_u32 v{E}, v{vLANE}, 4, 1"); a(f"v_and_b32 v{E+1}, 15, v{vLANE}")
        a(f"v_cmp_eq_u32 s[{sEXEC}:{sEXEC+1}], v{E}, v{E+1}")
        a(f"v_mov_b32 v{E+2}, 0x3f803f80"); a(f"v_mov_b32 v{E+3}, 0")
        a.nop(1)
        for q in range(4): a(f"v_cndmask_b32 v{vSEL+q}, v{E+3}, v{E+2}, s[{sEXEC}:{sEXEC+1}]")
        a(f"s_cmp_eq_u32 s{sTT}, 1"); a(f"s_cselect_b64 vcc, -1, 0")
        a(f"s_mul_i32 s{sT1}, s{sTT}, 768"); a(f"s_lshl_b32 s{sT2}, s{sCP}, 7"); a(f"s_add_u32 s{sT1}, s{sT1}, s{sT2}"); a(f"s_add_u32 s{sT1}, s{sT1}, {CSB}")
        a(f"v_lshlrev_b32 v114, 2, v{vLANE}"); a(f"v_add_u32 v114, s{sT1}, v114")
    def issue_reads(n):
        T, ks = divmod(n, 32)
        u = 16 * T + (ks >> 1)
        base = slot(u) + (ks & 1) * 2048
        buf = vWF + 4 * (n % 4)
        r, off = trA.at(base)
        a.ds(f"ds_read_b64_tr_b16 {vr(buf,2)}, v{r} offset:{off}", ("W", n))
        if natural:
            r2, off2 = trB.at(base)
            a.ds(f"ds_read_b64_tr_b16 {vr(buf+2,2)}, v{r2} offset:{off2}", ("W", n))
        else:
            r2, off2 = trA.at(base + 1024)
            a.ds(f"ds_read_b64_tr_b16 {vr(buf+2,2)}, v{r2} offset:{off2}", ("W", n))
        if a_interleave and T == 0:
            a.ds(f"ds_read_b128 {vr(vA+4*ks,4)}, v{areg} offset:{ks*2048}", ("W", n))
    a.bar(f"{pre}_{bname}0")
    for n in range(D_AHEAD): issue_reads(n)
    pending = []
    for n in range(96):
        T, ks = divmod(n, 32)
        form = tiles[T][0]
        ac = vACC[T % 2]
        buf = vWF + 4 * (n % 4)
        a.wait_lg(("W", n))
        c = "0" if ks == 0 else vr(ac, 16)
        if form == "T": a(f"v_mfma_f32_32x32x16_bf16 {vr(ac,16)}, {vr(buf,4)}, {vr(vA+4*ks,4)}, {c}")
        else:           a(f"v_mfma_f32_32x32x16_bf16 {vr(ac,16)}, {vr(vA+4*ks,4)}, {vr(buf,4)}, {c}")
        if v1:
            cs = vCSACC + 4 * (T % 2)
            lab = f"L_{pre}_cs{n}"
            a(f"s_cbranch_vccnz {lab}" if ks % 2 == 0 else f"s_cbranch_vccz {lab}")
            a(f"v_mfma_f32_16x16x32_bf16 {vr(cs,4)}, {vr(vSEL,4)}, {vr(buf,4)}, {'0' if ks < 2 else vr(cs,4)}")
            a.label(lab)
        nn = n + D_AHEAD
        if nn < 96 and nn % 4 == 0:
            a.wait_lg(["csw"])
            a.bar(f"{pre}_{bname}{nn//4}")
        if nn < 96: issue_reads(nn)
        if T >= 1:
            if v1 and ks == 2:
                csp = vCSACC + 4 * ((T - 1) % 2)
                a(f"s_mov_b64 exec, s[{sM16}:{sM16+1}]")
                a.ds(f"ds_write_b32 v114, v{csp} offset:{(T-1)*256}", "csw")
                a.ds(f"ds_write_b32 v114, v{csp+1} offset:{(T-1)*256 + 64}", "csw")
                a("s_mov_b64 exec, -1")
            start = 5 if v1 else 3
            if ks == start: pending = tiles[T-1][1](a, vACC[(T - 1) % 2], T - 1, v1)
            if ks >= start:
                left = 31 - ks + 1
                k = max(4, -(-len(pending) // max(left - 1, 1)))
                for _ in range(min(k, len(pending))): pending.pop(0)()
            if ks == 31:
                while pending: pending.pop(0)()
    a.nop(12)
    if v1:
        csp = vCSACC + 4 * (2 % 2)
        a(f"s_mov_b64 exec, s[{sM16}:{sM16+1}]")
        a.ds(f"ds_write_b32 v114, v{csp} offset:{2*256}", "csw")
        a.ds(f"ds_write_b32 v114, v{csp+1} offset:{2*256 + 64}", "csw")
        a("s_mov_b64 exec, -1")
        a.wait_lg0()
    a.bar(f"{pre}_end")
    for f in tiles[2][1](a, vACC[0], 2, v1): f()

def p1_compute(a, v1):
    ph = "p1a" if v1 else "p1b"
    tiles = [("T", lambda a_, ac, T, v: items_kq(a_, ac, T, v, False)),
             ("N", lambda a_, ac, T, v: items_v(a_, ac, T, v)),
             ("T", lambda a_, ac, T, v: items_kq(a_, ac, T, v, True))]
    if v1:
        a.bar("p1a_A")
        ts(a, 1)
        sm, sq, one = E, E + 1, E + 2
        a(f"v_mov_b32 v{sm}, 0"); a(f"v_mov_b32 v{sq}, 0"); a(f"v_mov_b32 v{one}, 0x3f803f80")
        for ks in range(32):
            a.ds(f"ds_read_b128 {vr(vA+4*ks,4)}, v{vAR} offset:{ks*2048}", ("A", ks))
            if ks >= 12: a.wait_lg(("A", ks - 12))
        a.wait_lg0()
        a(f"s_cmp_eq_u32 s{sCP}, 0")
        a("s_cbranch_scc0 L_p1a_odd")
        for par in range(2):
            if par == 1: a.label("L_p1a_odd")
            for ks in range(par, 32, 2):
                for q in range(4):
                    a(f"v_dot2c_f32_bf16 v{sm}, v{vA+4*ks+q}, v{one}")
                    a(f"v_dot2c_f32_bf16 v{sq}, v{vA+4*ks+q}, v{vA+4*ks+q}")
            if par == 0: a("s_branch L_p1a_sdone")
        a.label("L_p1a_sdone")
        a.nop(5)
        a(f"v_permlane32_swap_b32 v{sm}, v{sq}")
        a(f"v_add_f32 v{sm}, v{sm}, v{sq}")
        a(f"v_lshrrev_b32 v{E+3}, 5, v{vLANE}"); a(f"v_lshlrev_b32 v{E+3}, 8, v{E+3}"); a(f"v_add_u32 v{E+3}, v{E+3}, v{vTOK}")
        a(f"v_add_u32 v{E+4}, {STP}, v{E+3}")
        a(f"s_lshl_b32 s{sT1}, s{sCP}, 9"); a(f"v_add_u32 v{E+5}, s{sT1}, v{E+4}")
        a.ds(f"ds_write_b32 v{E+5}, v{sm}", "stp")
        a.wait_lg0()
        a.bar("p1a_stp")
        a.ds(f"ds_read_b32 v{E+6}, v{E+4} offset:0", "x"); a.ds(f"ds_read_b32 v{E+7}, v{E+4} offset:512", "x")
        a(f"v_add_u32 v{E+3}, {ST_MEAN}, v{E+3}")
        a.wait_lg0()
        a(f"v_add_f32 v{E+6}, v{E+6}, v{E+7}")
        stats_finalize(a, E + 6, (E + 8, E + 9, E + 10, E + 11), E + 3, False)
        a.wait_lg0()
        ts(a, 2)
    gemm192(a, ph, v1, slot_p1, A_P1, tiles, a_interleave=not v1, natural=v1)
    a.wait_all0()
    a.bar(f"{ph}_pubkv")

def p4_compute(a, v1):
    ph = "p4a" if v1 else "p4b"
    tiles = [("T", lambda a_, ac, T, v: items_h(a_, ac, T, v))] * 3
    gemm192(a, ph, v1, slot_p4, A_P4, tiles, a_interleave=True)
    a.wait_all0()
    a.bar(f"{ph}_pubh")
    a.bar(f"{ph}_goh")

def gemm64(a, ph, nsteps, slot, abase_sgpr, window, stage_bars):
    trK, trS = LdsBase(vTRK), LdsBase(vTRS)
    aK, aS = vACC
    D = 2
    def issue_w(i):
        base = slot(i)
        buf = vWF + 8 * (i % 3)
        for tr, o in ((trK, 0), (trS, 4)):
            for h in range(2):
                r, off = tr.at(base + 1024 * h)
                a.ds(f"ds_read_b64_tr_b16 {vr(buf+o+2*h,2)}, v{r} offset:{off}", ("W", i))
    def issue_a(i):
        a(f"s_add_u32 s{sT1}, s{abase_sgpr}, {i*2048}")
        a.vm(f"buffer_load_dwordx4 {vr(vA+4*(i % window),4)}, v{vL16}, s[{SRD_WS}:{SRD_WS+3}], s{sT1} offen sc1", ("A", i))
    for i in range(min(window, nsteps)): issue_a(i)
    a.bar(f"{ph}_a")
    for i in range(D): issue_w(i)
    for i in range(nsteps):
        buf = vWF + 8 * (i % 3)
        af = vA + 4 * (i % window)
        a.wait_vm(("A", i)); a.wait_lg(("W", i))
        a(f"v_mfma_f32_32x32x16_bf16 {vr(aK,16)}, {vr(buf,4)}, {vr(af,4)}, {'0' if i == 0 else vr(aK,16)}")
        nn = i + D
        if stage_bars and nn < nsteps and nn % 4 == 0: a.bar(f"{ph}_B{nn//4}")
        if nn < nsteps: issue_w(nn)
        a(f"v_mfma_f32_32x32x16_bf16 {vr(aS,16)}, {vr(buf+4,4)}, {vr(af,4)}, {'0' if i == 0 else vr(aS,16)}")
        if i + window < nsteps: issue_a(i + window)

def red_epilogue(a, ph, rb, add_b2, final, pre_bar):
    aK, aS = vACC
    rv = E
    ad = 96
    if pre_bar: a.bar(f"{ph}_red1")
    a(f"s_lshl_b32 s{sT1}, s{sW}, 12"); a(f"s_add_u32 s{sT1}, s{sT1}, {rb}")
    a(f"v_add_u32 v{ad}, s{sT1}, v{vL16}")
    a(f"s_xor_b32 s{sT2}, s{sW}, 1"); a(f"s_lshl_b32 s{sT2}, s{sT2}, 12"); a(f"s_add_u32 s{sT2}, s{sT2}, {rb}")
    a(f"v_add_u32 v{ad+1}, s{sT2}, v{vL16}")
    if add_b2:
        a(f"v_add_u32 v{ad+2}, {MISC}, v{vCSA}")
        for g in range(4): a.ds(f"ds_read_b128 {vr(100+4*g,4)}, v{ad+2} offset:{B2F - MISC + g*32}", "b2")
    a.nop(8)
    for q in range(4): a.ds(f"ds_write_b128 v{ad}, {vr(aS+4*q,4)} offset:{q*1024}", "rw")
    a.wait_lg0()
    a.bar(f"{ph}_red2")
    for q in range(4): a.ds(f"ds_read_b128 {vr(rv+4*q,4)}, v{ad+1} offset:{q*1024}", "rr")
    for p in range(8): a(f"v_pk_add_f32 {vr(vXR+2*p,2)}, {vr(vXR+2*p,2)}, {vr(aK+2*p,2)}")
    if add_b2:
        for p in range(8): a(f"v_pk_add_f32 {vr(vXR+2*p,2)}, {vr(vXR+2*p,2)}, {vr(100+2*p,2)}")
    a.wait_lg0()
    for p in range(8): a(f"v_pk_add_f32 {vr(vXR+2*p,2)}, {vr(vXR+2*p,2)}, {vr(rv+2*p,2)}")
    pk = 116
    for p in range(8): a(f"v_cvt_pk_bf16_f32 v{pk+p}, v{vXR+2*p}, v{vXR+2*p+1}")
    if final:
        a.nop(2)
        for q in (0, 4):
            a(f"v_permlane32_swap_b32 v{pk+q}, v{pk+q+2}")
            a(f"v_permlane32_swap_b32 v{pk+q+1}, v{pk+q+3}")
        a(f"v_and_b32 v{ad}, 31, v{vLANE}"); a(f"v_lshlrev_b32 v{ad}, 10, v{ad}")
        a(f"v_lshrrev_b32 v{ad+1}, 5, v{vLANE}"); a(f"v_lshl_add_u32 v{ad}, v{ad+1}, 4, v{ad}")
        a.vm(f"buffer_store_dwordx4 {vr(pk,4)}, v{ad}, s[{SRD_OUT}:{SRD_OUT+3}], s{sOUTb} offen", "out")
        a.vm(f"buffer_store_dwordx4 {vr(pk+4,4)}, v{ad}, s[{SRD_OUT}:{SRD_OUT+3}], s{sOUTb} offen offset:32", "out")
        return
    dual_store(a, "buffer_store_dwordx4", vr(pk, 4), vL16, SRD_WS, f"s{sXA}")
    dual_store(a, "buffer_store_dwordx4", vr(pk+4, 4), vL16, SRD_WS, f"s{sXA}", "offset:1024")
    s0, q0 = 100, 102
    a(f"v_pk_add_f32 {vr(s0,2)}, {vr(vXR,2)}, {vr(vXR+2,2)}")
    a(f"v_pk_mul_f32 {vr(q0,2)}, {vr(vXR,2)}, {vr(vXR,2)}")
    for p in range(1, 8):
        if p >= 2: a(f"v_pk_add_f32 {vr(s0,2)}, {vr(s0,2)}, {vr(vXR+2*p,2)}")
        a(f"v_pk_fma_f32 {vr(q0,2)}, {vr(vXR+2*p,2)}, {vr(vXR+2*p,2)}, {vr(q0,2)}")
    a(f"v_add_f32 v{s0}, v{s0}, v{s0+1}"); a(f"v_add_f32 v{q0}, v{q0}, v{q0+1}")
    a(f"s_lshl_b32 s{sT1}, s{sTT}, 12"); a(f"s_lshl_b32 s{sT2}, s{sJ}, 9"); a(f"s_add_u32 s{sT1}, s{sT1}, s{sT2}")
    a(f"s_lshl_b32 s{sT2}, s{sCP}, 8"); a(f"s_add_u32 s{sT1}, s{sT1}, s{sT2}"); a(f"s_add_u32 s{sT1}, s{sT1}, s{sSTATS}")
    a(f"v_permlane32_swap_b32 v{s0}, v{q0}")
    a(f"v_lshlrev_b32 v{ad}, 2, v{vLANE}")
    a(f"v_add_f32 v{s0}, v{s0}, v{q0}")
    a.nop(1)
    dual_store(a, "buffer_store_dword", f"v{s0}", ad, SRD_WS, f"s{sT1}")

def p3_compute(a):
    a(f"s_lshl_b32 s{sT2}, s{sTT}, 15"); a(f"s_add_u32 s{sT2}, s{sT2}, s{sHO}"); a(f"s_lshl_b32 s{sT3}, s{sCP}, 10"); a(f"s_add_u32 s{sT2}, s{sT2}, s{sT3}")
    gemm64(a, "p3", 16, lambda m: WOB + 4 * K * m, sT2, 16, False)
    ts(a, 9)
    red_epilogue(a, "p3", RB_P3, False, False, True)
    a.wait_all0()
    a.bar("p3_pub"); a.bar("p3_go")

def p5_compute_main(a):
    a(f"s_mul_i32 s{sT2}, s{sTT}, {H_TT}"); a(f"s_add_u32 s{sT2}, s{sT2}, s{sHO}"); a(f"s_lshl_b32 s{sT3}, s{sCP}, 10"); a(f"s_add_u32 s{sT2}, s{sT2}, s{sT3}")
    gemm64(a, "p5", 43, slot_p5, sT2, 16, True)

aQ, aKa, aKb = 32, 36, 40
aS = (48, 64)
aO, aP = 80, 96
aV = (104, 112)
aM, aT, aT2 = 120, 121, 122
aB8, aB0, aCm, aC8, aC0 = 128, 144, 160, 176, 192
aKA, aVA, aQA, aOA = 208, 209, 210, 211

def attention_setup(a):
    a(f"s_and_b32 s{sT1}, s{sW}, 3"); a(f"s_lshr_b32 s{sT2}, s{sW}, 2")
    a(f"s_lshl_b32 s{sT3}, s{sT1}, 10"); a(f"s_lshl_b32 s{sT0}, s{sT2}, 12"); a(f"s_add_u32 s{sT3}, s{sT3}, s{sT0}")
    a(f"v_add_u32 v{aKA}, s{sT3}, v{vL16}")
    a(f"v_lshrrev_b32 v{aT}, 5, v{vLANE}"); a(f"v_lshlrev_b32 v{aT}, 8, v{aT}")
    a(f"v_and_b32 v{aT2}, 15, v{vLANE}"); a(f"v_lshl_add_u32 v{aT}, v{aT2}, 4, v{aT}")
    a(f"s_add_u32 s{sT3}, s{sT3}, {VB}"); a(f"v_add_u32 v{aVA}, s{sT3}, v{aT}")
    a(f"s_lshl_b32 s{sT3}, s{sT1}, 11"); a(f"s_lshl_b32 s{sT0}, s{sT2}, 10"); a(f"s_add_u32 s{sT3}, s{sT3}, s{sT0}"); a(f"s_add_u32 s{sT3}, s{sT3}, {QB}")
    a(f"v_add_u32 v{aQA}, s{sT3}, v{vL16}")
    a(f"s_lshl_b32 s{sT3}, s{sG}, 1"); a(f"s_add_u32 s{sT3}, s{sT3}, s{sT2}")
    a(f"s_sub_i32 s{sTMIN}, 8, s{sT3}"); a(f"s_max_i32 s{sTMIN}, s{sTMIN}, 0")
    a(f"s_mul_i32 s{sO}, s{sG}, {HO_STRIDE}"); a(f"s_add_u32 s{sO}, s{sO}, {WS_HO}")
    a(f"s_lshl_b32 s{sT3}, s{sT2}, 15"); a(f"s_add_u32 s{sO}, s{sO}, s{sT3}")
    a(f"s_lshl_b32 s{sT3}, s{sJ}, 2"); a(f"s_add_u32 s{sT3}, s{sT3}, s{sT1}"); a(f"s_lshl_b32 s{sT3}, s{sT3}, 10"); a(f"s_add_u32 s{sO}, s{sO}, s{sT3}")
    a(f"v_and_b32 v{aT}, 31, v{vLANE}"); a(f"v_lshrrev_b32 v{aT2}, 5, v{vLANE}"); a(f"v_lshlrev_b32 v{aT2}, 2, v{aT2}")
    a(f"v_sub_u32 v{aT}, v{aT}, v{aT2}")
    a(f"v_mov_b32 v{aM}, {NEGBIG}"); a(f"v_mov_b32 v{aT2}, 0")
    for r in range(16):
        m0 = (r & 3) + 8 * (r >> 2)
        pair = 88 + 2 * (r % 2)
        a(f"v_cmp_le_i32 s[{pair}:{pair+1}], {m0}, v{aT}")
        if r >= 1:
            pp = 88 + 2 * ((r - 1) % 2)
            a(f"v_cndmask_b32 v{aB8+r-1}, v{aM}, v{aT2}, s[{pp}:{pp+1}]") if False else None
        a.nop(2)
        a(f"v_cndmask_b32 v{aB8+r}, v{aM}, v{aT2}, s[{pair}:{pair+1}]")
        a(f"v_cndmask_b32 v{aB0+r}, v{aT2}, v{aM}, s[{pair}:{pair+1}]")
    for q in range(16): a(f"v_mov_b32 v{aV[0]+q}, 0x3f803f80")

def attention(a):
    def rdK(t):
        buf = aKa if t % 2 == 0 else aKb
        a.ds(f"ds_read_b128 {vr(buf,4)}, v{aKA} offset:{KB + t*4096}", ("K", t))
    def Kf(t): return vr(aKa if t % 2 == 0 else aKb, 4)
    def S(t): return aS[t % 2]
    a.ds(f"ds_read_b128 {vr(aQ,4)}, v{aQA}", "Q")
    rdK(8); rdK(7)
    a.wait_lg(["Q", ("K", 8)])
    a(f"v_mfma_f32_32x32x16_bf16 {vr(S(8),16)}, {Kf(8)}, {vr(aQ,4)}, {vr(aB8,16)}")
    a.nop(4)
    for t in range(8, -1, -1):
        if t >= 1:
            a.wait_lg(("K", t - 1))
            c = vr(aB0, 16) if t - 1 == 0 else "0"
            a(f"v_mfma_f32_32x32x16_bf16 {vr(S(t-1),16)}, {Kf(t-1)}, {vr(aQ,4)}, {c}")
            if t >= 2: rdK(t - 2)
            else: a.nop(1)
        if t == 8: a.nop(8)
        elif t == 0: a.nop(3)
        else: a.nop(1)
        s = S(t)
        if t == 8:
            a(f"v_max3_f32 v{aM}, v{s}, v{s+1}, v{s+2}")
            a(f"v_max_f32 v{aM}, v{aM}, v{s+3}")
            for p in range(2, 8): a(f"v_max3_f32 v{aM}, v{aM}, v{s+2*p}, v{s+2*p+1}")
        else:
            for p in range(8): a(f"v_max3_f32 v{aM}, v{aM}, v{s+2*p}, v{s+2*p+1}")
        if t >= 1:
            a(f"s_cmp_eq_u32 s{sTMIN}, {t}")
            a("s_cbranch_scc1 L_at_p1done")
    a.label("L_at_p1done")
    a.wait_lg0()
    a(f"v_mov_b32 v{aT}, v{aM}")
    rdK(8); rdK(7)
    a(f"v_permlane32_swap_b32 v{aM}, v{aT}")
    a(f"v_max_f32 v{aM}, v{aM}, v{aT}")
    for r in range(16): a(f"v_sub_f32 v{aC8+r}, v{aB8+r}, v{aM}")
    for r in range(16): a(f"v_sub_f32 v{aCm+r}, 0, v{aM}")
    for r in range(16): a(f"v_sub_f32 v{aC0+r}, v{aB0+r}, v{aM}")
    def rdV(t):
        vb = aV[t % 2]
        a(f"s_mov_b64 exec, s[{sVMASK}:{sVMASK+1}]")
        a.ds(f"ds_read_b128 {vr(vb,4)}, v{aVA} offset:{t*4096}", ("V", t))
        a.ds(f"ds_read_b128 {vr(vb+4,4)}, v{aVA} offset:{t*4096 + 512}", ("V", t))
        a("s_mov_b64 exec, -1")
    rdV(8)
    a.wait_lg(("K", 8))
    a(f"v_mfma_f32_32x32x16_bf16 {vr(S(8),16)}, {Kf(8)}, {vr(aQ,4)}, {vr(aC8,16)}")
    a.nop(6)
    for t in range(8, -1, -1):
        if t >= 1:
            a.wait_lg(("K", t - 1))
            c = vr(aC0, 16) if t - 1 == 0 else vr(aCm, 16)
            a(f"v_mfma_f32_32x32x16_bf16 {vr(S(t-1),16)}, {Kf(t-1)}, {vr(aQ,4)}, {c}")
            if t >= 2: rdK(t - 2)
            rdV(t - 1)
        if t == 8: a.nop(4)
        s = S(t)
        for r in range(16): a(f"v_exp_f32 v{s+r}, v{s+r}")
        for p in range(8): a(f"v_cvt_pk_bf16_f32 v{aP+p}, v{s+2*p}, v{s+2*p+1}")
        a.wait_lg(("V", t))
        vb = aV[t % 2]
        a(f"v_mfma_f32_32x32x16_bf16 {vr(aO,16)}, {vr(vb,4)}, {vr(aP,4)}, {'0' if t == 8 else vr(aO,16)}")
        a.nop(1)
        a(f"v_mfma_f32_32x32x16_bf16 {vr(aO,16)}, {vr(vb+4,4)}, {vr(aP+4,4)}, {vr(aO,16)}")
        if t >= 1:
            a(f"s_cmp_eq_u32 s{sTMIN}, {t}")
            a("s_cbranch_scc1 L_at_p2done")
    a.label("L_at_p2done")
    a.wait_lg0()
    a.nop(12)
    a(f"v_rcp_f32 v{aT}, v{aO+8}")
    a.nop(1)
    for r in range(8): a(f"v_mul_f32 v{aO+r}, v{aO+r}, v{aT}")
    for p in range(4): a(f"v_cvt_pk_bf16_f32 v{aP+p}, v{aO+2*p}, v{aO+2*p+1}")
    a.nop(1)
    dual_store(a, "buffer_store_dwordx4", vr(aP, 4), vL16, SRD_WS, f"s{sO}")
    a.wait_all0()

def loader_prologue(a):
    t0, t1, t2 = 16, 17, 18
    a(f"v_lshrrev_b32 v{t0}, 3, v{vLANE}")
    a(f"v_bfe_u32 v{t1}, v{vLANE}, 4, 2")
    a(f"v_and_b32 v{t2}, 1, v{t1}"); a(f"v_lshlrev_b32 v{t2}, 1, v{t2}"); a(f"v_lshrrev_b32 v{t1}, 1, v{t1}"); a(f"v_or_b32 v{t1}, v{t1}, v{t2}")
    a(f"v_bfe_u32 v{t2}, v{vLANE}, 1, 2"); a(f"v_xor_b32 v{t1}, v{t1}, v{t2}"); a(f"v_lshlrev_b32 v{t1}, 5, v{t1}")
    a(f"v_and_b32 v{t2}, 1, v{vLANE}"); a(f"v_lshl_add_u32 v{t1}, v{t2}, 4, v{t1}")
    for reg, stride in ((vPQ, 3072), (vP1, 2752), (vPO, 1024)):
        a(f"s_mov_b32 s{sT0}, {stride}"); a(f"v_mul_lo_u32 v{t2}, v{t0}, s{sT0}"); a(f"v_add_u32 v{reg}, v{t2}, v{t1}")
    a(f"v_and_b32 v{t0}, 31, v{vLANE}"); a(f"v_lshlrev_b32 v{t0}, 10, v{t0}"); a(f"v_lshrrev_b32 v{t1}, 5, v{vLANE}")
    a(f"v_lshl_add_u32 v{vX0}, v{t1}, 4, v{t0}")
    a(f"s_mul_i32 s{sWQb}, s{sI}, {8*3072}"); a(f"s_lshl_b32 s{sT0}, s{sJ}, 7"); a(f"s_add_u32 s{sWQb}, s{sWQb}, s{sT0}")
    a(f"s_mul_i32 s{sW1b}, s{sI}, {8*2752}"); a(f"s_lshl_b32 s{sT1}, s98, 5"); a(f"s_add_u32 s{sW1b}, s{sW1b}, s{sT1}")
    a(f"s_lshl_b32 s{sWOb}, s{sI}, 13"); a(f"s_add_u32 s{sWOb}, s{sWOb}, s{sT0}")
    a(f"s_and_b32 s{sT0}, s{sI}, 1"); a(f"s_lshr_b32 s{sT1}, s{sI}, 1")
    a(f"s_lshl_b32 s{sX0}, s{sG}, 16"); a(f"s_lshl_b32 s{sT2}, s{sT0}, 15"); a(f"s_add_u32 s{sX0}, s{sX0}, s{sT2}")
    a(f"s_add_u32 s{sXA}, s{sX0}, {WS_XA}")
    a(f"s_lshl_b32 s{sT2}, s{sT1}, 5"); a(f"s_add_u32 s{sX0}, s{sX0}, s{sT2}")
    a(f"s_lshl_b32 s{sT2}, s{sT1}, 10"); a(f"s_add_u32 s{sXA}, s{sXA}, s{sT2}")
    a(f"s_mov_b32 s{sTT}, s{sT0}")
    a(f"s_sub_i32 s{sKVr}, s{sG}, 4"); a(f"s_lshl_b32 s{sKVr}, s{sKVr}, 3"); a(f"s_add_i32 s{sKVr}, s{sKVr}, s{sJ}"); a(f"s_lshl_b32 s{sKVr}, s{sKVr}, 14")
    a(f"s_add_i32 s{sKVr}, s{sKVr}, s{sI1K}"); a(f"s_add_i32 s{sKVr}, s{sKVr}, {WS_KV}")
    a(f"s_lshl_b32 s{sT0}, s{sG}, 7")
    a(f"v_and_b32 v{t0}, 7, v{vLANE}"); a(f"v_lshlrev_b32 v{t0}, 2, v{t0}"); a(f"v_add_u32 v{vPOLL}, s{sT0}, v{t0}")
    a(f"s_lshl_b32 s{sT1}, s{sJ}, 2"); a(f"s_add_u32 s{sT0}, s{sT0}, s{sT1}"); a(f"v_mov_b32 v{vFLAG}, s{sT0}")
    a(f"v_lshlrev_b32 v{vSTA}, 2, v{vLANE}")
    a(f"v_and_b32 v{t0}, 31, v{vLANE}"); a(f"v_lshlrev_b32 v{t0}, 2, v{t0}"); a(f"v_lshrrev_b32 v{t1}, 5, v{vLANE}"); a(f"v_lshl_add_u32 v{t0}, v{t1}, 8, v{t0}")
    a(f"s_lshl_b32 s{sT0}, s{sTT}, 7"); a(f"s_add_u32 s{sT0}, s{sT0}, {ST_MEAN}"); a(f"v_add_u32 v{vSTW}, s{sT0}, v{t0}")
    a(f"s_mov_b32 s{sC1}, {f2u(1.0/512.0)}"); a(f"s_mov_b32 s{sC2}, {f2u(EPS)}")

def wq_unit(a, u):
    T, kb = divmod(u, 16)
    seg = (1, 2, 0)[T]
    dma(a, SRD_WQ, vPQ, sWQb, kb * 32 * 3072 + seg * 1024, slot_p1(u), ("W", u))
def w1_unit(a, u):
    T, kb = divmod(u, 16)
    dma(a, SRD_W1, vP1, sW1b, kb * 32 * 2752 + T * 128, slot_p4(u), ("W", u))
def wo_unit(a, m): dma(a, SRD_WO, vPO, sWOb, m * 32 * 1024, WOB + 4 * K * m, ("WO", m))
def w2_unit(a, m): dma(a, SRD_W2, vPO, sWOb, m * 32 * 1024, slot_p5(m), ("W2", m))
def a_pair(a, m, abase):
    dma(a, SRD_WS, vL16, sXA, m * 2048, abase + m * 4096, ("A", m), "sc1")

def poll(a, name, vaddr, sval_imm=None):
    lab = f"L_{name}"
    a(f"s_mov_b32 s{sSPIN}, {OPT['spin']}")
    a.label(lab)
    a(f"buffer_load_dword v20, v{vaddr}, s[{SRD_WS}:{SRD_WS+3}], 0 offen sc1")
    a("s_waitcnt vmcnt(0)")
    a(f"v_cmp_gt_u32 vcc, s{sVAL}, v20")
    a(f"s_sub_u32 s{sSPIN}, s{sSPIN}, 1")
    a(f"s_cbranch_scc1 {lab}_x")
    a(f"s_cbranch_vccnz {lab}")
    a.label(f"{lab}_x")

def publish_local(a, name, ev):
    a(f"s_cmp_lg_u32 s{sW}, 4")
    a(f"s_cbranch_scc1 L_{name}_skip")
    a(f"s_mul_i32 s{sVAL}, s{sPAIR}, 4"); a(f"s_add_u32 s{sVAL}, s{sVAL}, {ev}")
    a(f"v_mov_b32 v21, s{sVAL}")
    a(f"s_mov_b64 s[{sEXEC}:{sEXEC+1}], exec"); a("s_mov_b64 exec, 1")
    a(f"s_cmp_eq_u32 s{sFAST}, 0")
    a(f"s_cbranch_scc1 L_{name}_sl")
    a(f"buffer_store_dword v21, v{vFLAG}, s[{SRD_WS}:{SRD_WS+3}], 0 offen")
    a(f"s_branch L_{name}_st")
    a.label(f"L_{name}_sl")
    a(f"buffer_store_dword v21, v{vFLAG}, s[{SRD_WS}:{SRD_WS+3}], 0 offen sc1")
    a.label(f"L_{name}_st")
    a(f"s_mov_b64 exec, s[{sEXEC}:{sEXEC+1}]")
    poll(a, name + "_p", vPOLL)
    a.label(f"L_{name}_skip")

def loader_stats(a, double_ln):
    a.wait_vm("ST")
    b = 32
    for q in (8, 4, 2, 1):
        for e in range(q): a(f"v_add_f32 v{b+e}, v{b+e}, v{b+q+e}")
    stats_finalize(a, b, (48, 49, 50, 51), vSTW, double_ln)
    a.wait_lg0()

def gemm192_loader(a, ph, unit, abase, double_ln, extra):
    for m in range(8): a_pair(a, m, abase)
    a(f"s_lshl_b32 s{sT1}, s{sTT}, 12"); a(f"s_add_u32 s{sT1}, s{sT1}, s{sSTATS}")
    for u in range(16):
        a(f"s_add_u32 s{sT2}, s{sT1}, {u*256}")
        a.vm(f"buffer_load_dword v{32+u}, v{vSTA}, s[{SRD_WS}:{SRD_WS+3}], s{sT2} offen sc1", "ST")
    nxt = 22
    for st in range(24):
        need = []
        if st < 8: need += [("A", 2*st), ("A", 2*st + 1)]
        need += [("W", 2*st), ("W", 2*st + 1)]
        a.wait_vm(need)
        if st == 6: loader_stats(a, double_ln)
        a.bar(f"{ph}_B{st}")
        if st < 4:
            a_pair(a, 8 + 2*st, abase); a_pair(a, 9 + 2*st, abase)
        elif nxt < 48:
            unit(a, nxt); unit(a, nxt + 1); nxt += 2
        else:
            for f in extra.get(st, []): f()
    a.bar(f"{ph}_end")

def p1_loader(a, v1):
    ph = "p1a" if v1 else "p1b"
    wo_next = [0]
    def wo2():
        for _ in range(2):
            if wo_next[0] < 16: wo_unit(a, wo_next[0]); wo_next[0] += 1
    if v1:
        for m in range(16):
            dma(a, SRD_X, vX0, sX0, m * 64, A_P1 + m * 4096, ("A", m))
        for u in range(22): wq_unit(a, u)
        a.wait_vm(("A", 15))
        a.bar("p1a_A")
        a.bar("p1a_stp")
        nxt = 22
        for st in range(24):
            a.wait_vm([("W", 2*st), ("W", 2*st + 1)])
            a.bar(f"{ph}_B{st}")
            if st >= 2 and nxt < 48:
                wq_unit(a, nxt); wq_unit(a, nxt + 1); nxt += 2
            elif st >= 17: wo2()
        a.bar(f"{ph}_end")
    else:
        gemm192_loader(a, ph, wq_unit, A_P1, False, {st: [wo2] for st in range(17, 24)})
    while wo_next[0] < 16: wo2()
    a.bar(f"{ph}_pubkv")

def kv_exchange_loader(a, ph="kv"):
    a(f"s_cmp_lg_u32 s{sW}, 4")
    a(f"s_cbranch_scc1 L_{ph}_kvskip")
    a(f"s_cmp_lg_u32 s{sPAIR}, 0")
    a(f"s_cbranch_scc1 L_{ph}_noinit")
    if True:
        a(f"v_and_b32 v22, 7, v{vLANE}"); a(f"v_min_u32 v22, 4, v22"); a(f"s_sub_i32 s{sT1}, s{sG}, 4"); a(f"v_add_u32 v22, s{sT1}, v22")
        a(f"v_max_i32 v22, 0, v22"); a(f"v_lshlrev_b32 v22, 2, v22")
        a(f"s_mov_b32 s{sSPIN}, {OPT['spin']}")
        a.label("L_init_poll")
        a(f"buffer_load_dword v20, v22, s[{SRD_DBG}:{SRD_DBG+3}], 0 offen sc1")
        a("s_waitcnt vmcnt(0)")
        a(f"v_and_b32 v23, 0x0f0f0f0f, v20"); a(f"v_lshrrev_b32 v24, 4, v20"); a(f"v_and_b32 v24, 0x0f0f0f0f, v24"); a("v_add_u32 v23, v23, v24")
        a(f"s_mov_b32 s{sT2}, 0x01010101"); a(f"v_mul_lo_u32 v23, v23, s{sT2}"); a("v_lshrrev_b32 v23, 24, v23")
        a("v_cmp_ne_u32 vcc, 8, v23")
        a(f"s_sub_u32 s{sSPIN}, s{sSPIN}, 1")
        a("s_cbranch_scc1 L_init_x")
        a("s_cbranch_vccnz L_init_poll")
        a.label("L_init_x")
        a(f"v_readlane_b32 s{sT1}, v20, 4")
        a(f"s_getreg_b32 s{sT2}, hwreg(HW_REG_XCC_ID, 0, 3)")
        a(f"s_lshl_b32 s{sT2}, s{sT2}, 2"); a(f"s_lshl_b32 s{sT2}, 8, s{sT2}")
        a(f"s_cmp_eq_u32 s{sT1}, s{sT2}")
        a(f"s_cselect_b32 s{sT1}, 1, 0")
        if OPT.get("slow"): a(f"s_mov_b32 s{sT1}, 0")
        a(f"v_mov_b32 v23, s{sT1}"); a(f"v_mov_b32 v24, {MODEW}")
        a("ds_write_b32 v24, v23")
        a("s_waitcnt lgkmcnt(0)")
    a.label(f"L_{ph}_noinit")
    a(f"s_lshl_b32 s{sT1}, s{sG}, 3"); a(f"s_add_u32 s{sT1}, s{sT1}, s{sJ}"); a(f"s_lshl_b32 s{sT1}, s{sT1}, 7"); a(f"s_add_u32 s{sT1}, s{sT1}, {WS_FLAGR}")
    a(f"s_add_u32 s{sVAL}, s{sPAIR}, 1")
    a(f"v_mov_b32 v21, s{sVAL}"); a(f"v_mov_b32 v22, s{sT1}")
    a(f"s_mov_b64 s[{sEXEC}:{sEXEC+1}], exec"); a("s_mov_b64 exec, 1")
    a(f"buffer_store_dword v21, v22, s[{SRD_WS}:{SRD_WS+3}], 0 offen sc1")
    a(f"s_mov_b64 exec, s[{sEXEC}:{sEXEC+1}]")
    a(f"v_and_b32 v22, 3, v{vLANE}"); a("v_add_u32 v22, 1, v22"); a(f"v_sub_u32 v22, s{sG}, v22")
    a(f"v_cmp_gt_i32 vcc, 0, v22"); a(f"v_mov_b32 v23, s{sG}"); a("s_nop 1"); a("v_cndmask_b32 v22, v22, v23, vcc")
    a(f"v_lshlrev_b32 v22, 3, v22"); a(f"v_add_u32 v22, s{sJ}, v22"); a("v_lshlrev_b32 v22, 7, v22"); a(f"v_add_u32 v22, {WS_FLAGR}, v22")
    poll(a, f"{ph}_kvp", 22)
    a.label(f"L_{ph}_kvskip")
    a.bar(f"{ph}_gokv")
    a(f"s_lshl_b32 s{sT2}, s{sPAIR}, 22"); a(f"s_add_i32 s{sT2}, s{sT2}, s{sKVr}")
    for part in range(2):
        for b in range(4):
            lab = f"L_{ph}_kv{part}{b}"
            a(f"s_cmp_lt_u32 s{sG}, {4-b}")
            a(f"s_cbranch_scc1 {lab}")
            for h in range(2):
                dma(a, SRD_WS, vL16, sT2, b * 8 * 16384 + part * 8192 + h * 4096, (KB if part == 0 else VB) + b * 8192 + h * 4096, "KV", "sc1")
            a.label(lab)
    return

def read_mode(a):
    lab = a.name + "_mode"
    a(f"s_cmp_lg_u32 s{sPAIR}, 0")
    a(f"s_cbranch_scc1 {lab}")
    a(f"v_mov_b32 v{aT}, {MODEW}")
    a(f"ds_read_b32 v{aT}, v{aT}")
    a("s_waitcnt lgkmcnt(0)")
    a(f"v_readfirstlane_b32 s{sFAST}, v{aT}")
    a.label(lab)

def dump_ts(a):
    if not OPT["ts"]: return
    a(f"s_lshl_b32 s{sT1}, s2, 3"); a(f"s_add_u32 s{sT1}, s{sT1}, s{sW}"); a(f"s_lshl_b32 s{sT1}, s{sT1}, 8"); a(f"s_add_u32 s{sT1}, s{sT1}, {WS_TS}")
    a(f"v_lshlrev_b32 v{aT}, 2, v{vLANE}")
    a(f"buffer_store_dword v{vTS}, v{aT}, s[{SRD_WS}:{SRD_WS+3}], s{sT1} offen")

def stop_here(a, name):
    if OPT["stop"] == name:
        dump_ts(a)
        a("s_waitcnt vmcnt(0) lgkmcnt(0)")
        a("s_endpgm")

def build():
    top = Stream("t")
    common_init(top)
    c = Stream("c")
    ts(c, 0)
    compute_prologue(c)
    p1_compute(c, True)
    c.label("L_c_loop")
    ts(c, 3)
    c.bar("gokv")
    read_mode(c)
    attention_setup(c)
    c.bar("kv")
    ts(c, 4)
    c("s_branch L_attn")
    c.label("L_c_postattn")
    ts(c, 5)
    c.bar("pubo"); c.bar("goo")
    stop_here(c, "p2")
    ts(c, 6)
    p3_compute(c)
    stop_here(c, "p3")
    ts(c, 10)
    c(f"s_cmp_lg_u32 s{sPAIR}, 0")
    c("s_cbranch_scc1 L_c_p4b")
    st = c.state()
    p4_compute(c, True)
    e1 = c.state()
    c("s_branch L_c_p5")
    c.label("L_c_p4b")
    c.set_state(st)
    p4_compute(c, False)
    assert c.state() == e1
    c.label("L_c_p5")
    stop_here(c, "p4")
    ts(c, 12)
    p5_compute_main(c)
    ts(c, 14)
    c(f"s_cmp_lg_u32 s{sPAIR}, 0")
    c("s_cbranch_scc1 L_c_final")
    st = c.state()
    red_epilogue(c, "p5a", RB_P5, True, False, False)
    c.wait_all0()
    c.bar("p5a_pub"); c.bar("p5a_go")
    stop_here(c, "p5")
    ts(c, 16)
    c(f"s_add_u32 s{sKVw}, s{sKVw}, {1 << 22}")
    p1_compute(c, False)
    c(f"s_mov_b32 s{sPAIR}, 1")
    if OPT["ts"]:
        dump_ts(c); c("s_waitcnt vmcnt(0)"); c(f"v_mov_b32 v{vTS}, 0"); c(f"s_add_u32 s2, s2, 256")
    c("s_branch L_c_loop")
    c.label("L_c_final")
    c.set_state(st)
    red_epilogue(c, "p5b", RB_P5, True, True, False)
    ts(c, 17)
    dump_ts(c)
    c("s_waitcnt vmcnt(0)")
    c("s_endpgm")
    l = Stream("l")
    l.label("L_loader")
    ts(l, 0)
    loader_prologue(l)
    p1_loader(l, True)
    l.label("L_l_loop")
    ts(l, 3)
    kv_flags = Stream("l")
    kv_exchange_loader_pre(l)
    l.bar("gokv")
    kv_exchange_loader_post(l)
    read_mode(l)
    attention_setup(l)
    l.wait_vm0()
    l.bar("kv")
    ts(l, 4)
    l("s_branch L_attn")
    l.label("L_l_postattn")
    ts(l, 5)
    l.bar("pubo")
    publish_local(l, "o", 1)
    l.bar("goo")
    stop_here(l, "p2")
    ts(l, 6)
    l.bar("p3_a")
    for u in range(22): w1_unit(l, u)
    l.bar("p3_red1"); l.bar("p3_red2"); l.bar("p3_pub")
    publish_local(l, "x1", 2)
    l.bar("p3_go")
    stop_here(l, "p3")
    ts(l, 10)
    l(f"s_cmp_lg_u32 s{sPAIR}, 0")
    l("s_cbranch_scc1 L_l_p4b")
    st = l.state()
    ends = []
    for v1 in (True, False):
        ph = "p4a" if v1 else "p4b"
        if not v1:
            l.label("L_l_p4b"); l.set_state(st)
        w2n = [0]
        def w22():
            for _ in range(2): w2_unit(l, w2n[0]); w2n[0] += 1
        gemm192_loader(l, ph, w1_unit, A_P4, True, {s_: [w22] for s_ in range(17, 24)})
        while w2n[0] < 30: w22()
        l.bar(f"{ph}_pubh")
        publish_local(l, ph + "h", 3)
        l.bar(f"{ph}_goh")
        ends.append(l.state())
        if v1: l("s_branch L_l_p5")
    assert ends[0] == ends[1]
    l.label("L_l_p5")
    stop_here(l, "p4")
    ts(l, 12)
    for m in range(30, 38): w2_unit(l, m)
    l.wait_vm([("W2", m) for m in range(4)])
    l.bar("p5_a")
    for st5 in range(1, 11):
        l.wait_vm([("W2", m) for m in range(4*st5, min(4*st5 + 4, 43))])
        l.bar(f"p5_B{st5}")
        if st5 == 2:
            for m in range(38, 42): w2_unit(l, m)
        if st5 == 3: w2_unit(l, 42)
    ts(l, 14)
    l(f"s_cmp_lg_u32 s{sPAIR}, 0")
    l("s_cbranch_scc1 L_l_final")
    l.bar("p5a_red2")
    for u in range(22): wq_unit(l, u)
    l.bar("p5a_pub")
    publish_local(l, "x2", 4)
    l.bar("p5a_go")
    stop_here(l, "p5")
    ts(l, 16)
    p1_loader(l, False)
    l(f"s_mov_b32 s{sPAIR}, 1")
    if OPT["ts"]:
        dump_ts(l); l("s_waitcnt vmcnt(0)"); l(f"v_mov_b32 v{vTS}, 0"); l(f"s_add_u32 s2, s2, 256")
    l("s_branch L_l_loop")
    l.label("L_l_final")
    l.bar("p5b_red2")
    dump_ts(l)
    l("s_waitcnt vmcnt(0)")
    l("s_endpgm")
    at = Stream("a")
    at.label("L_attn")
    attention(at)
    at(f"s_cmp_ge_u32 s{sW}, 4")
    at("s_cbranch_scc1 L_l_postattn")
    at("s_branch L_c_postattn")
    assert c.bars == l.bars, "\n".join(f"{x} | {y}" for x, y in zip(c.bars, l.bars)) + f"\n{len(c.bars)} {len(l.bars)}"
    lines = top.L + c.L + l.L + at.L + ["L_exit:", "s_endpgm"]
    return lines

def kv_exchange_loader_pre(a):
    _kv_split(a, 0)
def kv_exchange_loader_post(a):
    _kv_split(a, 1)
def _kv_split(a, part):
    t = Stream(a.name)
    kv_exchange_loader(t)
    i = next(k for k, x in enumerate(t.L) if x.startswith("s_barrier"))
    a.L += t.L[:i] if part == 0 else t.L[i+1:]
    if part == 1: a.vmq += t.vmq

HEAD = f"""; Fused two-pair transformer block (sliding-window attention + GELU MLP), one persistent launch.
; @launch grid=(256,1,1) block=(512,1,1) lds={LDS_TOTAL}
.amdgcn_target "amdgcn-amd-amdhsa--gfx950"
.text
.globl {NAME}_kernel
.p2align 8
.type {NAME}_kernel,@function
{NAME}_kernel:
"""
TAIL = f"""
.section .rodata,"a"
.p2align 6
.amdhsa_kernel {NAME}_kernel
  .amdhsa_next_free_vgpr 256
  .amdhsa_next_free_sgpr 102
  .amdhsa_accum_offset 256
  .amdhsa_group_segment_fixed_size 0
  .amdhsa_kernarg_size 88
  .amdhsa_user_sgpr_count 2
  .amdhsa_user_sgpr_kernarg_segment_ptr 1
  .amdhsa_system_sgpr_workgroup_id_x 1
.end_amdhsa_kernel
"""
if __name__ == "__main__":
    lines = build()
    errs = lint(lines)
    for e in errs[:40]: print("LINT", e, file=sys.stderr)
    out = OPT.get("out", f"cdna_kernels/{NAME}.s")
    open(out, "w").write(HEAD + "\n".join("    " + x if not x.endswith(":") else x for x in lines) + TAIL)
    print(f"wrote {out}: {len(lines)} lines, {len(errs)} lint findings", file=sys.stderr)
```

```python
import sys, copy
from asmlib import Stream, lint

NAME = "interleave_layers__sliding_block__mixer_channel_mlp__prompt"
OPT = dict(ts=False, stop=None, spin=400000)
for a in sys.argv[1:]:
    if a.startswith("--"):
        k, _, v = a[2:].partition("=")
        OPT[k] = (int(v) if v.lstrip("-").isdigit() else v) if v else True

K = 1024
LDS_TOTAL = 160 * K
MISC = 152 * K
ST_MEAN = MISC
ST_RSTD = MISC + 256
CS_Q = MISC + 512
CS_1 = MISC + 2048
B1F = MISC + 3584
B2F = MISC + 4352
STP = MISC + 4608
CSF_Q = MISC + 5632
CSF_1 = MISC + 6400
MODEW = MISC + 7168
CNTW = MISC + 7172
DUMMY = MISC + 7424
KB, VB, QB, WOB = 0, 40 * K, 80 * K, 88 * K
def slot_p1(u):
    if u < 22: return 64 * K + 4 * K * u
    if u < 32: return 64 * K + 4 * K * (u - 22)
    if u < 40: return 4 * K * (u - 32)
    if u < 46: return 40 * K + 4 * K * (u - 40)
    return 64 * K + 4 * K * (u - 46)
A_P1 = 0
def slot_p4(u):
    if u < 22: return 4 * K * u
    if u < 32: return 4 * K * (u - 22)
    return 88 * K + 4 * K * (u - 32)
A_P4 = 88 * K
def slot_p5(m):
    if m < 12: return 40 * K + 4 * K * m
    if m < 22: return 4 * K * (m - 12)
    if m < 38: return 88 * K + 4 * K * (m - 22)
    return 40 * K + 4 * K * (m - 38)
RB_P3 = 136 * K
RB_P5 = 0
WS_FLAGL = 0x0
WS_FLAGR = 0x2000
WS_STATS = 0x10000
WS_XA = 0x100000
WS_HO = 0x300000
HO_STRIDE = 0x2C000
H_TT = 86 * 1024
WS_KV = 0x900000
WS_TS = 0x1200000
WS_WQP = 0x1400000
WS_W1P = 0x1600000
WS_WOP = 0x1800000
WS_W2P = 0x1900000
J_WQ, J_WO, J_W2 = 0x30000, 0x10000, 0x2C000
PREP = 120 * K
WS_PREPF = 0x1C00000
WS_EPOCH = 0x1F00000
WS_SIZE = 0x2000000
SRD_X, SRD_WQ, SRD_WO, SRD_W1, SRD_W2, SRD_WS, SRD_OUT, SRD_DBG = 4, 8, 12, 16, 20, 24, 28, 32
sG, sJ, sW, sI, sPAIR, sFAST, sTT, sCP = 36, 37, 38, 39, 40, 41, 42, 43
SRD_TMP = 44
sI1K = 48
sT0, sT1, sT2, sT3 = 49, 50, 51, 52
sXA = 53
sHO = 54
sWQb, sW1b, sWOb = 55, 56, 57
sW2b = 100
sKVw = 58
sSTATS = 59
sSPIN = 60
sHST = (61, 62, 63, 64, 65, 66)
sX0 = 63
sKVr = 62
sVMASK = 68
sEXEC = 70
sTMIN = 72
sO = 73
sVAL = 74
sOUTb = 75
sPAIRN = 85
sEP = 87
sTS = 76
sM16 = 78
sM0_32 = 80
sC1, sC2, sC3 = 82, 83, 84
sKPTR = 86
vLANE, vL16 = 0, 1
vTRA = (2, 3, 4)
vTRK = (5, 6, 7)
vTRS = (8, 9, 10)
vAR = 11
vCSA = 12
vTOK = 13
vSTB = 14
vTS = 15
vXR = 16
vACC = (32, 48)
vWF = 64
vE = 88
vA = 128
vPQ, vP1, vPO, vX0, vPOLL, vFLAG, vSTA, vSTW = 2, 3, 4, 5, 6, 7, 8, 9
vLI = (11, 12, 13)

EPS = 1e-5
import struct, math
def f2u(x): return struct.unpack("<I", struct.pack("<f", x))[0]
QSCALE = math.log2(math.e) / 4.0
GC0 = -2.0 * math.sqrt(2.0 / math.pi) * math.log2(math.e)
GC1 = GC0 * 0.044715
NEGBIG = f2u(-1.0e30)

def ts(a, idx):
    if not OPT["ts"]: return
    a.wait_lg0()
    a(f"{'s_memrealtime' if OPT.get('rt') else 's_memtime'} s[{sTS}:{sTS+1}]")
    a("s_waitcnt lgkmcnt(0)")
    a(f"v_writelane_b32 v{vTS}, s{sTS}, {idx}")

def srd(a, d, ptr, size):
    a(f"s_mov_b32 s{d}, s{ptr}")
    a(f"s_and_b32 s{d+1}, s{ptr+1}, 0xffff")
    a(f"s_mov_b32 s{d+2}, {size}")
    a(f"s_mov_b32 s{d+3}, 0x20000")

def vr(b, n): return f"v[{b}:{b+n-1}]"

class LdsBase:
    def __init__(self, regs): self.regs = regs
    def at(self, addr):
        return self.regs[addr >> 16], addr & 0xffff

def dma(a, srdn, vpat, sbase, soff, lds, tag, flags=""):
    a(f"s_add_u32 m0, s{sI1K}, {lds}")
    a(f"s_add_u32 s{sT0}, s{sbase}, {soff}")
    a.vm(f"buffer_load_dwordx4 v{vpat}, s[{srdn}:{srdn+3}], s{sT0} offen {flags} lds".replace("  ", " "), tag)

def dual_store(a, kind, data, vaddr, srdn, soff, extra=""):
    lab = a.name + f"_ds{len(a.L)}"
    a(f"s_cmp_eq_u32 s{sFAST}, 0")
    a(f"s_cbranch_scc1 {lab}_s")
    a(f"{kind} {data}, v{vaddr}, s[{srdn}:{srdn+3}], {soff} offen {extra} nt".replace("  ", " ").rstrip())
    a(f"s_branch {lab}_e")
    a.label(f"{lab}_s")
    a.vm(f"{kind} {data}, v{vaddr}, s[{srdn}:{srdn+3}], {soff} offen {extra} sc1".replace("  ", " "), "st")
    a.label(f"{lab}_e")

def common_init(a):
    if OPT.get("exit1") == 1: a("s_endpgm")
    a("s_cmp_ge_u32 s2, 256")
    a("s_cbranch_scc1 L_exit")
    a(f"s_load_dwordx16 s[{64}:{79}], s[0:1], 0")
    a(f"s_load_dwordx4 s[{88}:{91}], s[0:1], 64")
    a(f"s_load_dwordx2 s[{92}:{93}], s[0:1], 80")
    a(f"v_lshrrev_b32 v1, 6, v0")
    a(f"v_and_b32 v{vLANE}, 63, v0")
    a(f"s_and_b32 s{sT0}, s2, 7")
    a(f"v_readfirstlane_b32 s{sW}, v1")
    a(f"s_lshr_b32 s{sT1}, s2, 3")
    a(f"s_lshr_b32 s{sT2}, s{sT1}, 3")
    a(f"s_lshl_b32 s{sT0}, s{sT0}, 2")
    a(f"s_add_u32 s{sG}, s{sT0}, s{sT2}")
    a(f"s_and_b32 s{sJ}, s{sT1}, 7")
    a(f"s_and_b32 s{sI}, s{sW}, 3")
    a(f"s_lshl_b32 s{sI1K}, s{sI}, 10")
    a(f"s_mov_b32 s{sPAIR}, 0"); a(f"s_mov_b32 s{sPAIRN}, 0")
    a(f"s_mov_b32 s{sFAST}, 0")
    a(f"v_lshlrev_b32 v{vL16}, 4, v{vLANE}")
    a(f"v_mov_b32 v{vTS}, 0")
    a("s_waitcnt lgkmcnt(0)")
    if OPT.get("exit1") == 2: a("s_endpgm")
    srd(a, SRD_X, 64, 2048 * 1024)
    srd(a, SRD_WQ, 66, 512 * 3072)
    srd(a, SRD_WO, 68, 512 * 1024)
    srd(a, SRD_W1, 72, 512 * 2752)
    srd(a, SRD_W2, 76, 1376 * 1024)
    if OPT.get("wsoff", 0):
        a(f"s_add_u32 s92, s92, {OPT['wsoff'] << 20}"); a("s_addc_u32 s93, s93, 0")
    srd(a, SRD_WS, 92, WS_SIZE)
    srd(a, SRD_OUT, 88, 2048 * 1024)
    srd(a, SRD_DBG, 90, 256)
    a(f"s_mov_b32 s{sT3}, {WS_EPOCH}")
    a(f"s_buffer_load_dword s{sEP}, s[{SRD_WS}:{SRD_WS+3}], s{sT3}")
    a("s_mov_b32 s94, s74"); a("s_mov_b32 s95, s75"); a("s_mov_b32 s96, s78"); a("s_mov_b32 s97, s79")
    a(f"s_mul_i32 s98, s{sJ}, 10"); a(f"s_add_u32 s98, s98, 6"); a(f"s_mul_i32 s99, s{sJ}, 12")
    a(f"s_cmp_lt_u32 s{sJ}, 3")
    a(f"s_cselect_b32 s98, s99, s98")
    a(f"s_cselect_b32 s99, 12, 10")
    a(f"s_mov_b32 s{sVMASK}, 0x0000ffff"); a(f"s_mov_b32 s{sVMASK+1}, 0x0000ffff")
    a(f"s_mov_b64 s[{sM16}:{sM16+1}], 0xffff")
    a(f"s_mov_b32 s{sM0_32}, 1"); a(f"s_mov_b32 s{sM0_32+1}, 1")
    a(f"s_lshl_b32 s{sSTATS}, s{sG}, 13"); a(f"s_add_u32 s{sSTATS}, s{sSTATS}, {WS_STATS}")
    if OPT.get("exit1") == 3:
        a("s_waitcnt lgkmcnt(0)"); a("s_endpgm")
    a(f"s_cmp_ge_u32 s{sW}, 4")
    a("s_cbranch_scc1 L_loader")

def tr_addr(a, dst, ct_expr_sgpr, natural_second=None, tmp=(vE, vE+1, vE+2, vE+3)):
    t0, t1, t2, t3 = tmp
    def one(d, kexpr):
        kexpr(t0)
        a(f"v_lshrrev_b32 v{t1}, 1, v{t0}"); a(f"v_and_b32 v{t1}, 3, v{t1}")
        a(f"v_and_b32 v{t2}, 1, v{t1}"); a(f"v_lshlrev_b32 v{t2}, 1, v{t2}"); a(f"v_lshrrev_b32 v{t1}, 1, v{t1}")
        a(f"v_or_b32 v{t1}, v{t1}, v{t2}")
        a(f"v_lshrrev_b32 v{t2}, 4, v{vLANE}"); a(f"v_and_b32 v{t2}, 1, v{t2}")
        a(f"s_lshl_b32 s{sT3}, s{ct_expr_sgpr}, 1")
        a(f"v_add_u32 v{t2}, s{sT3}, v{t2}")
        a(f"v_xor_b32 v{t1}, v{t1}, v{t2}"); a(f"v_lshlrev_b32 v{t1}, 5, v{t1}")
        a(f"v_lshlrev_b32 v{t0}, 7, v{t0}")
        a(f"v_and_b32 v{t2}, 3, v{vLANE}"); a(f"v_lshlrev_b32 v{t2}, 3, v{t2}")
        a(f"v_add3_u32 v{d}, v{t0}, v{t1}, v{t2}")
    def kperm(t):
        a(f"v_lshrrev_b32 v{t}, 5, v{vLANE}"); a(f"v_lshlrev_b32 v{t}, 2, v{t}")
        a(f"v_bfe_u32 v{t3}, v{vLANE}, 2, 2"); a(f"v_add_u32 v{t}, v{t}, v{t3}")
    def knat(off):
        def f(t):
            a(f"v_lshrrev_b32 v{t}, 5, v{vLANE}"); a(f"v_lshlrev_b32 v{t}, 3, v{t}")
            a(f"v_bfe_u32 v{t3}, v{vLANE}, 2, 2"); a(f"v_add_u32 v{t}, v{t}, v{t3}")
            if off: a(f"v_add_u32 v{t}, {off}, v{t}")
        return f
    if natural_second is None: one(dst, kperm)
    else:
        one(dst, knat(0)); one(natural_second, knat(4))

def three_bases(a, regs):
    a(f"v_add_u32 v{regs[1]}, 0x10000, v{regs[0]}")
    a(f"v_add_u32 v{regs[2]}, 0x20000, v{regs[0]}")

vNA = vTRA
vNB = (112, 113, 115)
vSEL = vE + 28
vCSACC = vE + 32

def compute_prologue(a):
    a(f"s_lshr_b32 s{sTT}, s{sW}, 1")
    a(f"s_and_b32 s{sCP}, s{sW}, 1")
    if OPT.get("xtouch", 1):
        a(f"s_cmp_lg_u32 s{sW}, 0"); a("s_cbranch_scc1 L_c_xt")
        a(f"v_lshlrev_b32 v{vE}, 7, v{vLANE}"); a(f"s_lshl_b32 s{sT1}, s{sG}, 16"); a(f"s_lshl_b32 s{sT2}, s{sJ}, 13"); a(f"s_add_u32 s{sT1}, s{sT1}, s{sT2}")
        touch(a, SRD_X, vE, sT1, 0)
        a.label("L_c_xt")
        a.vmq = []
    t = vE
    a(f"s_lshl_b32 s{sT0}, s{sG}, 16"); a(f"s_lshl_b32 s{sT1}, s{sTT}, 15"); a(f"s_add_u32 s{sT0}, s{sT0}, s{sT1}")
    a(f"s_lshl_b32 s{sT1}, s{sJ}, 7"); a(f"s_add_u32 s{sT0}, s{sT0}, s{sT1}"); a(f"s_lshl_b32 s{sT1}, s{sCP}, 6"); a(f"s_add_u32 s{sOUTb}, s{sT0}, s{sT1}")
    a(f"s_cmp_lt_u32 s{sW}, 2")
    a("s_cbranch_scc1 L_c_nob")
    a(f"s_cmp_eq_u32 s{sW}, 2")
    a(f"s_cselect_b32 s{sT0}, s94, s96"); a(f"s_cselect_b32 s{sT1}, s95, s97")
    a(f"s_mov_b32 s{SRD_TMP}, s{sT0}"); a(f"s_and_b32 s{SRD_TMP+1}, s{sT1}, 0xffff")
    a(f"s_movk_i32 s{sT2}, 1024"); a(f"s_cmp_eq_u32 s{sW}, 2"); a(f"s_cselect_b32 s{SRD_TMP+2}, 2752, s{sT2}"); a(f"s_mov_b32 s{SRD_TMP+3}, 0x20000")
    a(f"s_cmp_eq_u32 s{sW}, 2")
    a(f"s_lshl_b32 s{sT0}, s98, 5"); a(f"s_lshl_b32 s{sT1}, s{sJ}, 7")
    a(f"s_cmp_eq_u32 s{sW}, 2")
    a(f"s_cselect_b32 s{sT0}, s{sT0}, s{sT1}")
    a(f"s_mov_b32 s{sT1}, {B2F}"); a(f"s_cselect_b32 s{sT1}, {B1F}, s{sT1}")
    a(f"s_cselect_b32 s{sT2}, 48, 16")
    a(f"v_lshlrev_b32 v{t+2}, 3, v{vLANE}")
    a(f"buffer_load_dwordx2 {vr(vBR,2)}, v{t+2}, s[{SRD_TMP}:{SRD_TMP+3}], s{sT0} offen")
    a(f"v_add_u32 v{vBR+2}, s{sT1}, v{vL16}")
    a(f"s_mov_b32 s{sBL}, s{sT2}")
    a.label("L_c_nob")
    a(f"s_lshl_b32 s{sT0}, s{sCP}, 10"); a(f"v_add_u32 v{vTRA[0]}, s{sT0}, v{vL16}"); three_bases(a, vTRA)
    a(f"s_mul_i32 s{sT0}, s{sCP}, 3072"); a(f"v_add_u32 v{vTRK[0]}, s{sT0}, v{vL16}")
    a(f"s_lshl_b32 s{sT0}, s{sCP}, 10"); a(f"s_add_u32 s{sT0}, s{sT0}, 1024"); a(f"v_add_u32 v{vTRS[0]}, s{sT0}, v{vL16}")
    three_bases(a, vTRK); three_bases(a, vTRS)
    a(f"s_lshl_b32 s{sT0}, s{sTT}, 10"); a(f"v_add_u32 v{vAR}, s{sT0}, v{vL16}")
    a(f"v_lshrrev_b32 v{t}, 5, v{vLANE}"); a(f"v_lshlrev_b32 v{t}, 4, v{t}")
    a(f"s_lshl_b32 s{sT0}, s{sCP}, 7"); a(f"v_add_u32 v{vCSA}, s{sT0}, v{t}")
    a(f"s_lshl_b32 s{sT0}, s{sTT}, 7"); a(f"v_add_u32 v{vSTB}, s{sT0}, v{t}")
    a(f"v_and_b32 v{t}, 31, v{vLANE}"); a(f"v_lshlrev_b32 v{t}, 2, v{t}"); a(f"v_add_u32 v{vTOK}, s{sT0}, v{t}")
    a(f"s_lshl_b32 s{sXA}, s{sG}, 16"); a(f"s_lshl_b32 s{sT0}, s{sTT}, 15"); a(f"s_add_u32 s{sXA}, s{sXA}, s{sT0}")
    a(f"s_lshl_b32 s{sT0}, s{sJ}, 12"); a(f"s_add_u32 s{sXA}, s{sXA}, s{sT0}"); a(f"s_lshl_b32 s{sT0}, s{sCP}, 11"); a(f"s_add_u32 s{sXA}, s{sXA}, s{sT0}")
    a(f"s_add_u32 s{sXA}, s{sXA}, {WS_XA}")
    a(f"s_mul_i32 s{sHO}, s{sG}, {HO_STRIDE}"); a(f"s_add_u32 s{sHO}, s{sHO}, {WS_HO}")
    a(f"s_lshl_b32 s{sKVw}, s{sG}, 3"); a(f"s_add_u32 s{sKVw}, s{sKVw}, s{sJ}"); a(f"s_lshl_b32 s{sKVw}, s{sKVw}, 14")
    a(f"s_lshl_b32 s{sT0}, s{sTT}, 12"); a(f"s_add_u32 s{sKVw}, s{sKVw}, s{sT0}"); a(f"s_lshl_b32 s{sT0}, s{sCP}, 11"); a(f"s_add_u32 s{sKVw}, s{sKVw}, s{sT0}")
    a(f"s_add_u32 s{sKVw}, s{sKVw}, {WS_KV}")
    for s in range(3):
        for sub in range(2):
            d = sHST[2*s+sub]
            a(f"s_lshl_b32 s{sT0}, s{sCP}, 1"); a(f"s_add_u32 s{sT0}, s{sT0}, {4*s+sub}")
            a(f"s_add_u32 s{sT1}, s{sT0}, s98"); a(f"s_lshl_b32 s{sT1}, s{sT1}, 10")
            a(f"s_mul_i32 s{sT2}, s{sTT}, {H_TT}"); a(f"s_add_u32 s{sT1}, s{sT1}, s{sT2}"); a(f"s_add_u32 s{sT1}, s{sT1}, s{sHO}")
            a(f"s_cmp_lt_u32 s{sT0}, s99")
            a(f"s_cselect_b32 s{d}, s{sT1}, 0x7ffff000")
    a(f"s_mov_b32 s{sC1}, {f2u(1.0/512.0)}"); a(f"s_mov_b32 s{sC2}, {f2u(EPS)}"); a(f"s_mov_b32 s{sC3}, {f2u(QSCALE)}")
    a(f"s_lshl_b32 s{sT1}, s{sW}, 14"); a(f"s_lshl_b32 s{sT2}, s{sG}, 16"); a(f"s_add_u32 s{sT2}, s{sT2}, s{sT1}")
    for r in range(16):
        a(f"v_xor_b32 v{vE}, {r << 4}, v{vL16}")
        a(f"s_add_u32 m0, s{sT1}, {A_P1 + r*1024}")
        a(f"s_add_u32 s{sT0}, s{sT2}, {r*1024}")
        a(f"buffer_load_dwordx4 v{vE}, s[{SRD_X}:{SRD_X+3}], s{sT0} offen lds")

vBR, sBL = 240, 101
def after_meet(a):
    a(f"s_cmp_lt_u32 s{sW}, 2")
    a("s_cbranch_scc1 L_c_nob2")
    a(f"v_cmp_gt_u32 vcc, s{sBL}, v{vLANE}")
    a(f"v_lshlrev_b32 v{vBR+4}, 16, v{vBR}"); a(f"v_and_b32 v{vBR+5}, 0xffff0000, v{vBR}")
    a(f"v_lshlrev_b32 v{vBR+6}, 16, v{vBR+1}"); a(f"v_and_b32 v{vBR+7}, 0xffff0000, v{vBR+1}")
    a(f"s_and_saveexec_b64 s[{sEXEC}:{sEXEC+1}], vcc")
    a(f"ds_write_b128 v{vBR+2}, {vr(vBR+4,4)}")
    a(f"s_mov_b64 exec, s[{sEXEC}:{sEXEC+1}]")
    a.label("L_c_nob2")

def touch(a, srdn, vpat, sbase, imm, dst=None):
    a(f"s_mov_b32 m0, {DUMMY}")
    a(f"s_add_u32 s{sT3}, s{sbase}, {imm}")
    a.vm(f"buffer_load_dword v{vpat}, s[{srdn}:{srdn+3}], s{sT3} offen lds", "touch")

def stats_finalize(a, v, tmp, vaddr, double_ln):
    t0, t1, t2, t3 = tmp
    a(f"v_mov_b32 v{t0}, v{v}")
    a.nop(2)
    a(f"v_permlane32_swap_b32 v{v}, v{t0}")
    a(f"v_mul_f32 v{v}, s{sC1}, v{v}")
    a(f"v_mul_f32 v{t0}, s{sC1}, v{t0}")
    a(f"v_fma_f32 v{t0}, -v{v}, v{v}, v{t0}")
    a(f"v_max_f32 v{t0}, 0, v{t0}")
    a(f"v_add_f32 v{t1}, s{sC2}, v{t0}")
    a(f"v_rsq_f32 v{t1}, v{t1}")
    a.nop(1)
    if double_ln:
        a(f"v_mul_f32 v{t2}, v{t1}, v{t1}")
        a(f"v_mul_f32 v{t2}, v{t2}, v{t0}")
        a(f"v_add_f32 v{t2}, s{sC2}, v{t2}")
        a(f"v_rsq_f32 v{t2}, v{t2}")
        a.nop(1)
        a(f"v_mul_f32 v{t1}, v{t1}, v{t2}")
    a(f"v_cmp_gt_u32 s[{sEXEC}:{sEXEC+1}], 32, v{vLANE}")
    a.nop(2)
    a(f"v_cndmask_b32 v{t3}, v{t1}, v{v}, s[{sEXEC}:{sEXEC+1}]")
    a.ds(f"ds_write_b32 v{vaddr}, v{t3}", "stw")

E = 80
ePK = 84
D_AHEAD = 4

class VM:
    def __init__(self, f): self.f = f
    def __call__(self): self.f()

def items_kq(a, ac, T, v1, is_q):
    mean, rs, ad, adc = E, E + 1, E + 2, E + 3
    w = 92
    cs = [96, 100, 104, 108]
    it = []
    it.append(lambda: a(f"v_add_u32 v{ad}, {ST_MEAN}, v{vTOK}"))
    it.append(lambda: a(f"v_add_u32 v{adc}, {MISC}, v{vCSA}"))
    it.append(lambda: a.ds(f"ds_read_b32 v{mean}, v{ad} offset:0", "em"))
    it.append(lambda: a.ds(f"ds_read_b32 v{rs}, v{ad} offset:256", "er"))
    if not v1:
        for g in range(4):
            it.append(lambda g=g: a.ds(f"ds_read_b128 {vr(cs[g],4)}, v{adc} offset:{CSF_Q - MISC + T*256 + g*32}", f"ca{g}"))
        for _ in range(6): it.append(lambda: None)
    if is_q:
        def fq():
            a.wait_lg("er"); a(f"v_mul_f32 v{rs}, s{sC3}, v{rs}")
        it.append(fq)
    for g in range(4):
        c = cs[0] if v1 else cs[g]
        if v1:
            it.append(lambda g=g: a.ds(f"ds_read_b128 {vr(cs[0],4)}, v{adc} offset:{CS_Q - MISC + T*256 + g*32}", f"ca{g}"))
            it.append(lambda g=g: a.ds(f"ds_read_b128 {vr(cs[1],4)}, v{adc} offset:{CS_Q - MISC + 768 + T*256 + g*32}", f"cb{g}"))
            for e in range(4):
                def f(e=e, g=g):
                    a.wait_lg([f"ca{g}", f"cb{g}"]); a(f"v_add_f32 v{cs[0]+e}, v{cs[0]+e}, v{cs[1]+e}")
                it.append(f)
            def fw(g=g):
                a(f"s_mov_b64 exec, s[{sM0_32}:{sM0_32+1}]")
                a.ds(f"ds_write_b128 v{adc}, {vr(cs[0],4)} offset:{CSF_Q - MISC + T*256 + g*32}", "cw")
                a("s_mov_b64 exec, -1")
            it.append(fw)
        for e in range(4):
            def f(e=e, g=g, c=c):
                a.wait_lg(["em", "er", f"ca{g}", f"cb{g}"])
                a(f"v_fma_f32 v{w+e}, -v{mean}, v{c+e}, v{ac+4*g+e}")
            it.append(f)
        for e in range(4):
            it.append(lambda e=e: a(f"v_mul_f32 v{w+e}, v{w+e}, v{rs}"))
        it.append(lambda g=g: a(f"v_cvt_pk_bf16_f32 v{ePK+2*g}, v{w}, v{w+1}"))
        it.append(lambda g=g: a(f"v_cvt_pk_bf16_f32 v{ePK+2*g+1}, v{w+2}, v{w+3}"))
    if not is_q:
        it.append(lambda: a(f"s_lshl_b32 s{sT1}, s{sTT}, 12"))
        it.append(lambda: a(f"s_lshl_b32 s{sT2}, s{sCP}, 11"))
        it.append(lambda: a(f"s_add_u32 s{sT1}, s{sT1}, s{sT2}"))
        it.append(lambda: a(f"v_add_u32 v{ad}, s{sT1}, v{vL16}"))
        for hh in range(2):
            it.append(VM(lambda hh=hh: a.vm(f"buffer_store_dwordx4 {vr(ePK+4*hh,4)}, v{vL16}, s[{SRD_WS}:{SRD_WS+3}], s{sKVw} offen offset:{hh*1024} sc1", "kvK")))
            it.append(lambda hh=hh: a.ds(f"ds_write_b128 v{ad}, {vr(ePK+4*hh,4)} offset:{KB + 32*K + hh*1024}", "kw"))
    else:
        it.append(lambda: a(f"s_lshl_b32 s{sT1}, s{sTT}, 10"))
        it.append(lambda: a(f"s_lshl_b32 s{sT2}, s{sCP}, 12"))
        it.append(lambda: a(f"s_add_u32 s{sT1}, s{sT1}, s{sT2}"))
        it.append(lambda: a(f"s_add_u32 s{sT1}, s{sT1}, {QB}"))
        it.append(lambda: a(f"v_add_u32 v{ad}, s{sT1}, v{vL16}"))
        for hh in range(2):
            it.append(lambda hh=hh: a.ds(f"ds_write_b128 v{ad}, {vr(ePK+4*hh,4)} offset:{hh*2048}", "qw"))
    return it

def items_v(a, ac, T, v1):
    cs, cs2, ad, ads = E, E + 1, E + 2, E + 3
    w = 92
    mb, rb = ((96, 96), (100, 100)) if v1 else ((96, 104), (100, 108))
    it = []
    it.append(lambda: a(f"v_and_b32 v{ad}, 31, v{vLANE}"))
    it.append(lambda: a(f"v_lshlrev_b32 v{ad}, 2, v{ad}"))
    it.append(lambda: a(f"s_lshl_b32 s{sT1}, s{sCP}, 7"))
    it.append(lambda: a(f"s_add_u32 s{sT1}, s{sT1}, {MISC}"))
    it.append(lambda: a(f"v_add_u32 v{ad}, s{sT1}, v{ad}"))
    it.append(lambda: a(f"v_add_u32 v{ads}, {MISC}, v{vSTB}"))
    def rd(g):
        it.append(lambda g=g: a.ds(f"ds_read_b128 {vr(mb[g%2],4)}, v{ads} offset:{ST_MEAN - MISC + g*32}", f"m{g}"))
        it.append(lambda g=g: a.ds(f"ds_read_b128 {vr(rb[g%2],4)}, v{ads} offset:{ST_RSTD - MISC + g*32}", f"r{g}"))
    if v1:
        it.append(lambda: a.ds(f"ds_read_b32 v{cs}, v{ad} offset:{CS_Q - MISC + T*256}", "ca"))
        it.append(lambda: a.ds(f"ds_read_b32 v{cs2}, v{ad} offset:{CS_Q - MISC + 768 + T*256}", "cb"))
        def f():
            a.wait_lg(["ca", "cb"]); a(f"v_add_f32 v{cs}, v{cs}, v{cs2}")
        it.append(f)
        it.append(lambda: a.ds(f"ds_write_b32 v{ad}, v{cs} offset:{CSF_Q - MISC + T*256}", "cw"))
    else:
        it.append(lambda: a.ds(f"ds_read_b32 v{cs}, v{ad} offset:{CSF_Q - MISC + T*256}", "ca"))
        rd(0)
        for _ in range(6): it.append(lambda: None)
    for g in range(4):
        if v1: rd(g)
        elif g < 3: rd(g + 1)
        for e in range(4):
            def f(e=e, g=g):
                a.wait_lg(["ca", f"m{g}"])
                a(f"v_fma_f32 v{w+e}, -v{mb[g%2]+e}, v{cs}, v{ac+4*g+e}")
            it.append(f)
        for e in range(4):
            def f(e=e, g=g):
                a.wait_lg(f"r{g}"); a(f"v_mul_f32 v{w+e}, v{w+e}, v{rb[g%2]+e}")
            it.append(f)
        it.append(lambda g=g: a(f"v_cvt_pk_bf16_f32 v{ePK+2*g}, v{w}, v{w+1}"))
        it.append(lambda g=g: a(f"v_cvt_pk_bf16_f32 v{ePK+2*g+1}, v{w+2}, v{w+3}"))
    it.append(lambda: a(f"v_bfe_u32 v{ad}, v{vLANE}, 4, 1"))
    it.append(lambda: a(f"v_lshlrev_b32 v{ad}, 10, v{ad}"))
    it.append(lambda: a(f"v_lshrrev_b32 v{cs2}, 5, v{vLANE}"))
    it.append(lambda: a(f"v_lshl_add_u32 v{ad}, v{cs2}, 8, v{ad}"))
    it.append(lambda: a(f"v_and_b32 v{cs2}, 15, v{vLANE}"))
    it.append(lambda: a(f"v_lshl_add_u32 v{ad}, v{cs2}, 4, v{ad}"))
    it.append(lambda: a(f"s_lshl_b32 s{sT1}, s{sTT}, 12"))
    it.append(lambda: a(f"s_lshl_b32 s{sT2}, s{sCP}, 11"))
    it.append(lambda: a(f"s_add_u32 s{sT1}, s{sT1}, s{sT2}"))
    it.append(lambda: a(f"s_add_u32 s{sT1}, s{sT1}, {VB + 32*K}"))
    it.append(lambda: a(f"v_add_u32 v{ads}, s{sT1}, v{ad}"))
    it.append(lambda: a(f"s_add_u32 s{sT2}, s{sKVw}, 8192"))
    for s in range(2):
        it.append(VM(lambda s=s: a.vm(f"buffer_store_dwordx4 {vr(ePK+4*s,4)}, v{ad}, s[{SRD_WS}:{SRD_WS+3}], s{sT2} offen offset:{s*512} sc1", "kvV")))
        it.append(lambda s=s: a.ds(f"ds_write_b128 v{ads}, {vr(ePK+4*s,4)} offset:{s*512}", "vw"))
    return it

def items_h(a, ac, T, v1):
    mr, rs, gc, ad2 = E, E + 1, E + 2, E + 3
    u, t = 92, 96
    if v1: csA, bbs, csB = (100, 100), (104, 104), 108
    else:  csA, bbs, csB = (100, 108), (104, 112), None
    CSR = CS_1 if v1 else CSF_1
    it = []
    it.append(lambda: a(f"v_add_u32 v{ad2}, {ST_MEAN}, v{vTOK}"))
    it.append(lambda: a.ds(f"ds_read_b32 v{mr}, v{ad2} offset:0", "em"))
    it.append(lambda: a.ds(f"ds_read_b32 v{rs}, v{ad2} offset:256", "er"))
    it.append(lambda: a(f"v_add_u32 v{ad2}, {MISC}, v{vCSA}"))
    it.append(lambda: a(f"v_mov_b32 v{gc}, {f2u(GC1)}"))
    def rd(g):
        it.append(lambda g=g: a.ds(f"ds_read_b128 {vr(csA[g%2],4)}, v{ad2} offset:{CSR - MISC + T*256 + g*32}", f"ca{g}"))
        if v1: it.append(lambda g=g: a.ds(f"ds_read_b128 {vr(csB,4)}, v{ad2} offset:{CS_1 - MISC + 768 + T*256 + g*32}", f"cb{g}"))
        it.append(lambda g=g: a.ds(f"ds_read_b128 {vr(bbs[g%2],4)}, v{ad2} offset:{B1F - MISC + T*256 + g*32}", f"b{g}"))
    if not v1:
        rd(0)
        for _ in range(5): it.append(lambda: None)
    def fm():
        a.wait_lg(["em", "er"]); a(f"v_mul_f32 v{mr}, v{mr}, v{rs}")
    it.append(fm)
    for g in range(4):
        cA, bb = csA[g % 2], bbs[g % 2]
        if v1:
            rd(g)
            for e in range(4):
                def f(e=e, g=g, cA=cA):
                    a.wait_lg([f"ca{g}", f"cb{g}"]); a(f"v_add_f32 v{cA+e}, v{cA+e}, v{csB+e}")
                it.append(f)
            def fw(g=g, cA=cA):
                a(f"s_mov_b64 exec, s[{sM0_32}:{sM0_32+1}]")
                a.ds(f"ds_write_b128 v{ad2}, {vr(cA,4)} offset:{CSF_1 - MISC + T*256 + g*32}", "cw")
                a("s_mov_b64 exec, -1")
            it.append(fw)
        for e in range(4):
            def f(e=e, g=g, cA=cA, bb=bb):
                a.wait_lg([f"ca{g}", f"b{g}"]); a(f"v_fma_f32 v{bb+e}, -v{mr}, v{cA+e}, v{bb+e}")
            it.append(f)
        for e in range(4): it.append(lambda e=e, g=g, bb=bb: a(f"v_fma_f32 v{u+e}, v{ac+4*g+e}, v{rs}, v{bb+e}"))
        if not v1 and g < 3: rd(g + 1)
        for e in range(4): it.append(lambda e=e: a(f"v_mul_f32 v{t+e}, v{u+e}, v{u+e}"))
        for e in range(4): it.append(lambda e=e: a(f"v_fmaak_f32 v{t+e}, v{t+e}, v{gc}, {f2u(GC0)}"))
        for e in range(4): it.append(lambda e=e: a(f"v_mul_f32 v{t+e}, v{t+e}, v{u+e}"))
        for e in range(4): it.append(lambda e=e: a(f"v_exp_f32 v{t+e}, v{t+e}"))
        for e in range(4): it.append(lambda e=e: a(f"v_add_f32 v{t+e}, 1.0, v{t+e}"))
        for e in range(4): it.append(lambda e=e: a(f"v_rcp_f32 v{t+e}, v{t+e}"))
        for e in range(4): it.append(lambda e=e: a(f"v_mul_f32 v{u+e}, v{u+e}, v{t+e}"))
        it.append(lambda g=g: a(f"v_cvt_pk_bf16_f32 v{ePK+2*g}, v{u}, v{u+1}"))
        it.append(lambda g=g: a(f"v_cvt_pk_bf16_f32 v{ePK+2*g+1}, v{u+2}, v{u+3}"))
        if g % 2 == 1:
            sub = g // 2
            it.append(lambda: a("s_nop 0"))
            it.append(VM(lambda sub=sub: dual_store(a, "buffer_store_dwordx4", vr(ePK + 4*sub, 4), vL16, SRD_WS, f"s{sHST[2*T+sub]}")))
    return it

def gemm192(a, ph, slot, abase, tiles, a_interleave, after_b0=None):
    pre = f"{ph}"
    trA = LdsBase(vTRA)
    vAb = 115
    if a_interleave and abase:
        a(f"v_add_u32 v{vAb}, {abase}, v{vAR}")
    areg = vAb if (a_interleave and abase) else vAR
    def issue_reads(n):
        T, ks = divmod(n, 32)
        u = 16 * T + (ks >> 1)
        r, off = trA.at(slot(u) + (ks & 1) * 2048)
        a.ds(f"ds_read_b128 {vr(vWF + 4 * (n % 4),4)}, v{r} offset:{off}", ("W", n))
        if a_interleave and T == 0:
            a.ds(f"ds_read_b128 {vr(vA+4*ks,4)}, v{areg} offset:{ks*2048}", ("W", n))
    a.bar(f"{pre}_B0")
    if after_b0:
        after_b0()
    tsb = 20 if ph.startswith("p1") else 30
    ts(a, tsb)
    for n in range(D_AHEAD): issue_reads(n)
    pending = []; deferred = []
    for n in range(96):
        T, ks = divmod(n, 32)
        form = tiles[T][0]
        ac = vACC[T % 2]
        buf = vWF + 4 * (n % 4)
        a.wait_lg(("W", n))
        c = "0" if ks == 0 else vr(ac, 16)
        if form == "T": a(f"v_mfma_f32_32x32x16_bf16 {vr(ac,16)}, {vr(buf,4)}, {vr(vA+4*ks,4)}, {c}")
        else:           a(f"v_mfma_f32_32x32x16_bf16 {vr(ac,16)}, {vr(vA+4*ks,4)}, {vr(buf,4)}, {c}")
        nn = n + D_AHEAD
        if nn < 96 and nn % 4 == 0:
            if nn == 88: a.wait_vm("kvK")
            a.bar(f"{pre}_B{nn//4}")
        if nn < 96: issue_reads(nn)
        if T >= 1:
            start = 3
            if ks == start:
                pending = tiles[T-1][1](a, vACC[(T - 1) % 2], T - 1, False)
                if OPT.get("noepi") and ph == "p4": pending = []
                if OPT.get("noepi") == 2 and ph == "p4":
                    pending = [(lambda: a("v_add_f32 v100, v101, v102"))] * 136
            if ks >= start:
                left = 31 - ks + 1
                k = max(4, -(-len(pending) // max(left - 1, 1)))
                for _ in range(min(k, len(pending))):
                    if isinstance(pending[0], VM) and OPT.get("defer", 1):
                        deferred.append(pending.pop(0))
                    else: pending.pop(0)()
                if deferred and (n % 4 == 3):
                    while deferred: deferred.pop(0)()
            if ks == 31:
                while pending: pending.pop(0)()
                while deferred: deferred.pop(0)()
    ts(a, tsb + 3)
    a.nop(12)
    a.bar(f"{pre}_end")
    for f in tiles[2][1](a, vACC[0], 2, False): f()
    ts(a, tsb + 4)

def p1_compute(a, v1):
    ph = "p1a" if v1 else "p1b"
    tiles = [("T", lambda a_, ac, T, v: items_kq(a_, ac, T, v, False)),
             ("N", lambda a_, ac, T, v: items_v(a_, ac, T, v)),
             ("T", lambda a_, ac, T, v: items_kq(a_, ac, T, v, True))]
    if v1:
        a(f"v_and_b32 v{E+4}, 31, v{vLANE}"); a(f"s_lshl_b32 s{sT1}, s{sTT}, 5"); a(f"v_add_u32 v{E+5}, s{sT1}, v{E+4}")
        a(f"v_lshlrev_b32 v{E+5}, 10, v{E+5}")
        a(f"v_lshrrev_b32 v{E+6}, 5, v{vLANE}"); a(f"v_lshl_add_u32 v{E+5}, v{E+6}, 3, v{E+5}")
        a(f"v_and_b32 v{E+4}, 15, v{vLANE}"); a(f"v_lshl_add_u32 v{E+5}, v{E+4}, 4, v{E+5}")
        a(f"v_and_b32 v{E+16}, 15, v{vLANE}"); a(f"s_lshl_b32 s{sT1}, s{sJ}, 3"); a(f"s_lshl_b32 s{sT2}, s{sCP}, 2"); a(f"s_add_u32 s{sT1}, s{sT1}, s{sT2}")
        a(f"v_and_b32 v{E+17}, 31, v{vLANE}"); a(f"s_lshl_b32 s{sT2}, s{sTT}, 5"); a(f"v_add_u32 v{E+17}, s{sT2}, v{E+17}"); a(f"v_lshlrev_b32 v{E+17}, 10, v{E+17}")
        a(f"v_lshrrev_b32 v{E+18}, 5, v{vLANE}"); a(f"v_lshl_add_u32 v{E+17}, v{E+18}, 3, v{E+17}")
        for q in range(4):
            a(f"s_add_u32 s{sT2}, s{sT1}, {q}"); a(f"v_xor_b32 v{E+18}, s{sT2}, v{E+16}"); a(f"v_lshl_add_u32 v{E+20+q}, v{E+18}, 4, v{E+17}")
        ts(a, 29)
        a("s_waitcnt lgkmcnt(0)")
        a(f"s_add_u32 s{sEP}, s{sEP}, 16")
        a.bar("prep")
        a("s_waitcnt vmcnt(0)")
        a(f"v_mov_b32 v{E+24}, {CNTW}"); a(f"v_mov_b32 v{E+25}, 1")
        a(f"s_mov_b64 exec, 1")
        a(f"ds_add_u32 v{E+24}, v{E+25}")
        a("s_mov_b64 exec, -1")
        a(f"s_mov_b32 s{sSPIN}, {OPT['spin']}")
        a.label("L_p1a_meet")
        a(f"ds_read_b32 v{E+25}, v{E+24}")
        a("s_waitcnt lgkmcnt(0)")
        a(f"v_cmp_gt_u32 vcc, 4, v{E+25}")
        a(f"s_sub_u32 s{sSPIN}, s{sSPIN}, 1")
        a("s_cbranch_scc1 L_p1a_met")
        a("s_cbranch_vccnz L_p1a_meet")
        a.label("L_p1a_met")
        ts(a, 1)
        after_meet(a)
        for q in range(4): a.ds(f"ds_read_b64 {vr(vACC[0]+2*q,2)}, v{E+20+q}", "xr")
        a.wait_lg0()
        for q in range(4):
            for h in range(2):
                a(f"v_lshlrev_b32 v{vXR+4*q+2*h}, 16, v{vACC[0]+2*q+h}")
                a(f"v_and_b32 v{vXR+4*q+2*h+1}, 0xffff0000, v{vACC[0]+2*q+h}")
        for cc in range(16): a(f"v_xor_b32 v{vACC[1]+cc}, {cc << 4}, v{E+5}")
        sm, sq, one = E, E + 1, E + 2
        a(f"v_mov_b32 v{sm}, 0"); a(f"v_mov_b32 v{sq}, 0"); a(f"v_mov_b32 v{one}, 0x3f803f80")
        for ks in range(32):
            for hh in range(2):
                cch = 2 * ks + hh
                a.ds(f"ds_read_b64 {vr(vA+4*ks+2*hh,2)}, v{vACC[1]+(cch & 15)} offset:{(cch >> 4) << 8}", ("A", cch))
                if cch >= 12: a.wait_lg(("A", cch - 12))
        a.wait_lg0()
        a(f"s_cmp_eq_u32 s{sCP}, 0")
        a("s_cbranch_scc0 L_p1a_odd")
        for par in range(2):
            if par == 1: a.label("L_p1a_odd")
            for ks in range(par, 32, 2):
                for q in range(4):
                    a(f"v_dot2c_f32_bf16 v{sm}, v{vA+4*ks+q}, v{one}")
                    a(f"v_dot2c_f32_bf16 v{sq}, v{vA+4*ks+q}, v{vA+4*ks+q}")
            if par == 0: a("s_branch L_p1a_sdone")
        a.label("L_p1a_sdone")
        a.nop(5)
        a(f"v_permlane32_swap_b32 v{sm}, v{sq}")
        a(f"v_add_f32 v{sm}, v{sm}, v{sq}")
        a(f"v_lshrrev_b32 v{E+3}, 5, v{vLANE}"); a(f"v_lshlrev_b32 v{E+3}, 8, v{E+3}"); a(f"v_add_u32 v{E+3}, v{E+3}, v{vTOK}")
        a(f"v_add_u32 v{E+4}, {STP}, v{E+3}")
        a(f"s_lshl_b32 s{sT1}, s{sCP}, 9"); a(f"v_add_u32 v{E+5}, s{sT1}, v{E+4}")
        a.ds(f"ds_write_b32 v{E+5}, v{sm}", "stp")
        a.wait_lg0()
        def fin():
            a.ds(f"ds_read_b32 v{E+6}, v{E+4} offset:0", "x"); a.ds(f"ds_read_b32 v{E+7}, v{E+4} offset:512", "x")
            a(f"v_subrev_u32 v{E+3}, {STP - ST_MEAN}, v{E+4}")
            a.wait_lg0()
            a(f"v_add_f32 v{E+6}, v{E+6}, v{E+7}")
            stats_finalize(a, E + 6, (E + 8, E + 9, E + 10, E + 11), E + 3, False)
            a.wait_lg0()
            ts(a, 2)
        after_b0 = fin
    if v1: a.bar("prepgo")
    gemm192(a, ph, slot_p1, A_P1, tiles, a_interleave=not v1, after_b0=after_b0 if v1 else None)
    a.wait_all0()
    a.bar(f"{ph}_pubkv")

def p4_compute(a):
    tiles = [("T", lambda a_, ac, T, v: items_h(a_, ac, T, v))] * 3
    gemm192(a, "p4", slot_p4, A_P4, tiles, a_interleave=True)
    a.wait_all0()
    a.bar("p4_pubh")
    publish_local(a, "p4h", 3)
    a.bar("p4_goh")

def gemm64(a, ph, nsteps, slot, abase_sgpr, window, stage_bars, midbar=None):
    trK, trS = LdsBase(vTRK), LdsBase(vTRS)
    aK, aS = vACC
    D = 2
    def issue_w(i):
        base = slot(i)
        buf = vWF + 8 * (i % 3)
        for tr, o in ((trK, 0), (trS, 4)):
            r, off = tr.at(base)
            a.ds(f"ds_read_b128 {vr(buf+o,4)}, v{r} offset:{off}", ("W", i))
    def issue_a(i):
        a(f"s_add_u32 s{sT1}, s{abase_sgpr}, {i*2048}")
        a.vm(f"buffer_load_dwordx4 {vr(vA+4*(i % window),4)}, v{vL16}, s[{SRD_WS}:{SRD_WS+3}], s{sT1} offen sc1", ("A", i))
    for i in range(min(window, nsteps)): issue_a(i)
    a.bar(f"{ph}_a")
    for i in range(D): issue_w(i)
    for i in range(nsteps):
        buf = vWF + 8 * (i % 3)
        af = vA + 4 * (i % window)
        a.wait_vm(("A", i)); a.wait_lg(("W", i))
        a(f"v_mfma_f32_32x32x16_bf16 {vr(aK,16)}, {vr(buf,4)}, {vr(af,4)}, {'0' if i == 0 else vr(aK,16)}")
        nn = i + D
        if stage_bars and nn < nsteps and nn % 4 == 0: a.bar(f"{ph}_B{nn//4}")
        if midbar is not None and i == midbar: a.bar(f"{ph}_b")
        if nn < nsteps: issue_w(nn)
        a(f"v_mfma_f32_32x32x16_bf16 {vr(aS,16)}, {vr(buf+4,4)}, {vr(af,4)}, {'0' if i == 0 else vr(aS,16)}")
        if i + window < nsteps: issue_a(i + window)

def red_epilogue(a, ph, rb, add_b2, final, pre_bar):
    aK, aS = vACC
    rv = E
    ad = 96
    if pre_bar: a.bar(f"{ph}_red1")
    a(f"s_lshl_b32 s{sT1}, s{sW}, 12"); a(f"s_add_u32 s{sT1}, s{sT1}, {rb}")
    a(f"v_add_u32 v{ad}, s{sT1}, v{vL16}")
    a(f"s_xor_b32 s{sT2}, s{sW}, 1"); a(f"s_lshl_b32 s{sT2}, s{sT2}, 12"); a(f"s_add_u32 s{sT2}, s{sT2}, {rb}")
    a(f"v_add_u32 v{ad+1}, s{sT2}, v{vL16}")
    if add_b2:
        a(f"v_add_u32 v{ad+2}, {MISC}, v{vCSA}")
        for g in range(4): a.ds(f"ds_read_b128 {vr(100+4*g,4)}, v{ad+2} offset:{B2F - MISC + g*32}", "b2")
    a.nop(8)
    for q in range(4): a.ds(f"ds_write_b128 v{ad}, {vr(aS+4*q,4)} offset:{q*1024}", "rw")
    a.wait_lg0()
    a.bar(f"{ph}_red2")
    for q in range(4): a.ds(f"ds_read_b128 {vr(rv+4*q,4)}, v{ad+1} offset:{q*1024}", "rr")
    for p in range(8): a(f"v_pk_add_f32 {vr(vXR+2*p,2)}, {vr(vXR+2*p,2)}, {vr(aK+2*p,2)}")
    if add_b2:
        for p in range(8): a(f"v_pk_add_f32 {vr(vXR+2*p,2)}, {vr(vXR+2*p,2)}, {vr(100+2*p,2)}")
    a.wait_lg0()
    for p in range(8): a(f"v_pk_add_f32 {vr(vXR+2*p,2)}, {vr(vXR+2*p,2)}, {vr(rv+2*p,2)}")
    pk = 116
    for p in range(8): a(f"v_cvt_pk_bf16_f32 v{pk+p}, v{vXR+2*p}, v{vXR+2*p+1}")
    if final:
        a.nop(2)
        for q in (0, 4):
            a(f"v_permlane32_swap_b32 v{pk+q}, v{pk+q+2}")
            a(f"v_permlane32_swap_b32 v{pk+q+1}, v{pk+q+3}")
        a(f"v_and_b32 v{ad}, 31, v{vLANE}"); a(f"v_lshlrev_b32 v{ad}, 10, v{ad}")
        a(f"v_lshrrev_b32 v{ad+1}, 5, v{vLANE}"); a(f"v_lshl_add_u32 v{ad}, v{ad+1}, 4, v{ad}")
        a.vm(f"buffer_store_dwordx4 {vr(pk,4)}, v{ad}, s[{SRD_OUT}:{SRD_OUT+3}], s{sOUTb} offen nt", "out")
        a.vm(f"buffer_store_dwordx4 {vr(pk+4,4)}, v{ad}, s[{SRD_OUT}:{SRD_OUT+3}], s{sOUTb} offen offset:32 nt", "out")
        return
    dual_store(a, "buffer_store_dwordx4", vr(pk, 4), vL16, SRD_WS, f"s{sXA}")
    dual_store(a, "buffer_store_dwordx4", vr(pk+4, 4), vL16, SRD_WS, f"s{sXA}", "offset:1024")
    s0, q0 = 100, 102
    a(f"v_pk_add_f32 {vr(s0,2)}, {vr(vXR,2)}, {vr(vXR+2,2)}")
    a(f"v_pk_mul_f32 {vr(q0,2)}, {vr(vXR,2)}, {vr(vXR,2)}")
    for p in range(1, 8):
        if p >= 2: a(f"v_pk_add_f32 {vr(s0,2)}, {vr(s0,2)}, {vr(vXR+2*p,2)}")
        a(f"v_pk_fma_f32 {vr(q0,2)}, {vr(vXR+2*p,2)}, {vr(vXR+2*p,2)}, {vr(q0,2)}")
    a(f"v_add_f32 v{s0}, v{s0}, v{s0+1}"); a(f"v_add_f32 v{q0}, v{q0}, v{q0+1}")
    a(f"s_lshl_b32 s{sT1}, s{sJ}, 1"); a(f"s_add_u32 s{sT1}, s{sT1}, s{sCP}")
    a(f"s_lshr_b32 s{sT2}, s{sT1}, 2"); a(f"s_lshl_b32 s{sT2}, s{sT2}, 10"); a(f"s_and_b32 s{sT1}, s{sT1}, 3"); a(f"s_lshl_b32 s{sT1}, s{sT1}, 2")
    a(f"s_add_u32 s{sT1}, s{sT1}, s{sT2}"); a(f"s_lshl_b32 s{sT2}, s{sTT}, 12"); a(f"s_add_u32 s{sT1}, s{sT1}, s{sT2}"); a(f"s_add_u32 s{sT1}, s{sT1}, s{sSTATS}")
    a(f"v_permlane32_swap_b32 v{s0}, v{q0}")
    a(f"v_add_f32 v{s0}, v{s0}, v{q0}")
    a.nop(1)
    dual_store(a, "buffer_store_dword", f"v{s0}", vL16, SRD_WS, f"s{sT1}")

def p3_compute(a):
    a(f"s_lshl_b32 s{sT2}, s{sTT}, 15"); a(f"s_add_u32 s{sT2}, s{sT2}, s{sHO}"); a(f"s_lshl_b32 s{sT3}, s{sCP}, 10"); a(f"s_add_u32 s{sT2}, s{sT2}, s{sT3}")
    gemm64(a, "p3", 16, lambda m: WOB + 4 * K * m, sT2, 16, False, midbar=10)
    ts(a, 9)
    red_epilogue(a, "p3", RB_P3, False, False, True)
    a.wait_all0()
    a.bar("p3_pub")
    publish_local(a, "x1", 2)
    a.bar("p3_go")

def p5_compute_main(a):
    a(f"s_mul_i32 s{sT2}, s{sTT}, {H_TT}"); a(f"s_add_u32 s{sT2}, s{sT2}, s{sHO}"); a(f"s_lshl_b32 s{sT3}, s{sCP}, 10"); a(f"s_add_u32 s{sT2}, s{sT2}, s{sT3}")
    gemm64(a, "p5", 43, slot_p5, sT2, 16, True)

aQ, aKa, aKb = 32, 36, 40
aS = (48, 64)
aO, aP = 80, 96
aV = (104, 112)
aM, aT, aT2 = 120, 121, 122
aB8, aB0, aCm, aC8, aC0 = 128, 144, 160, 176, 192
aKA, aVA, aQA, aOA = 208, 209, 210, 211

def attention_setup(a):
    a(f"s_and_b32 s{sT1}, s{sW}, 3"); a(f"s_lshr_b32 s{sT2}, s{sW}, 2")
    a(f"s_lshl_b32 s{sT3}, s{sT1}, 10"); a(f"s_lshl_b32 s{sT0}, s{sT2}, 12"); a(f"s_add_u32 s{sT3}, s{sT3}, s{sT0}")
    a(f"v_add_u32 v{aKA}, s{sT3}, v{vL16}")
    a(f"v_lshrrev_b32 v{aT}, 5, v{vLANE}"); a(f"v_lshlrev_b32 v{aT}, 8, v{aT}")
    a(f"v_and_b32 v{aT2}, 15, v{vLANE}"); a(f"v_lshl_add_u32 v{aT}, v{aT2}, 4, v{aT}")
    a(f"s_add_u32 s{sT3}, s{sT3}, {VB}"); a(f"v_add_u32 v{aVA}, s{sT3}, v{aT}")
    a(f"s_lshl_b32 s{sT3}, s{sT1}, 11"); a(f"s_lshl_b32 s{sT0}, s{sT2}, 10"); a(f"s_add_u32 s{sT3}, s{sT3}, s{sT0}"); a(f"s_add_u32 s{sT3}, s{sT3}, {QB}")
    a(f"v_add_u32 v{aQA}, s{sT3}, v{vL16}")
    a(f"s_lshl_b32 s{sT3}, s{sG}, 1"); a(f"s_add_u32 s{sT3}, s{sT3}, s{sT2}")
    a(f"s_sub_i32 s{sTMIN}, 8, s{sT3}"); a(f"s_max_i32 s{sTMIN}, s{sTMIN}, 0")
    a(f"s_mul_i32 s{sO}, s{sG}, {HO_STRIDE}"); a(f"s_add_u32 s{sO}, s{sO}, {WS_HO}")
    a(f"s_lshl_b32 s{sT3}, s{sT2}, 15"); a(f"s_add_u32 s{sO}, s{sO}, s{sT3}")
    a(f"s_lshl_b32 s{sT3}, s{sJ}, 2"); a(f"s_add_u32 s{sT3}, s{sT3}, s{sT1}"); a(f"s_lshl_b32 s{sT3}, s{sT3}, 10"); a(f"s_add_u32 s{sO}, s{sO}, s{sT3}")
    a(f"v_and_b32 v{aT}, 31, v{vLANE}"); a(f"v_lshrrev_b32 v{aT2}, 5, v{vLANE}"); a(f"v_lshlrev_b32 v{aT2}, 2, v{aT2}")
    a(f"v_sub_u32 v{aT}, v{aT}, v{aT2}")
    a(f"v_mov_b32 v{aM}, {NEGBIG}"); a(f"v_mov_b32 v{aT2}, 0")
    for r in range(16):
        m0 = (r & 3) + 8 * (r >> 2)
        pair = 88 + 2 * (r % 2)
        a(f"v_cmp_le_i32 s[{pair}:{pair+1}], {m0}, v{aT}")
        if r >= 1:
            pp = 88 + 2 * ((r - 1) % 2)
            a(f"v_cndmask_b32 v{aB8+r-1}, v{aM}, v{aT2}, s[{pp}:{pp+1}]") if False else None
        a.nop(2)
        a(f"v_cndmask_b32 v{aB8+r}, v{aM}, v{aT2}, s[{pair}:{pair+1}]")
        a(f"v_cndmask_b32 v{aB0+r}, v{aT2}, v{aM}, s[{pair}:{pair+1}]")
    for q in range(16): a(f"v_mov_b32 v{aV[0]+q}, 0x3f803f80")

def warm_exchange(a):
    a(f"s_cmp_eq_u32 s{sI}, 3"); a("s_cbranch_scc1 L_we_x")
    a(f"s_mul_i32 s{sT1}, s{sG}, {HO_STRIDE}"); a(f"s_mul_i32 s{sT2}, s{sJ}, 22528"); a(f"s_add_u32 s{sT1}, s{sT1}, s{sT2}")
    a(f"s_lshl_b32 s{sT2}, s{sI}, 13"); a(f"s_add_u32 s{sT1}, s{sT1}, s{sT2}")
    touch(a, SRD_WS, 10, sT1, WS_HO)
    a("s_branch L_we_e")
    a.label("L_we_x")
    a(f"s_lshl_b32 s{sT2}, s{sG}, 16"); a(f"s_lshl_b32 s{sT0}, s{sJ}, 13"); a(f"s_add_u32 s{sT2}, s{sT2}, s{sT0}")
    touch(a, SRD_WS, 10, sT2, WS_XA)
    touch(a, SRD_WS, 10, sSTATS, 0)
    a.label("L_we_e")
def warm_w1(a):
    a(f"s_cmp_eq_u32 s{sI}, 3"); a("s_cbranch_scc1 L_ww_e")
    a(f"s_mul_i32 s{sT1}, s{sJ}, {J_WQ}"); a(f"s_and_b32 s{sT2}, s{sG}, 3"); a(f"s_mul_i32 s{sT2}, s{sT2}, 22528"); a(f"s_add_u32 s{sT1}, s{sT1}, s{sT2}")
    a(f"s_lshl_b32 s{sT2}, s{sI}, 13"); a(f"s_add_u32 s{sT1}, s{sT1}, s{sT2}")
    touch(a, SRD_WS, 10, sT1, WS_W1P)
    a.label("L_ww_e")

def _p2c2(a):
    a(f"s_cmp_lt_u32 s{sW}, 4"); a("s_cbranch_scc1 L_p2c2_skip")
    a(f"s_cmp_lg_u32 s{sPAIR}, 0"); a("s_cbranch_scc1 L_p2c2_skip")
    prep2_check_addr(a, 230)
    a(f"buffer_load_dwordx3 v[232:234], v230, s[{SRD_WS}:{SRD_WS+3}], 0 offen sc1")
    a.label("L_p2c2_skip")

def attention(a):
    S3 = (aS[0], aS[1], aO)
    def rdK(t):
        buf = aKa if t % 2 == 0 else aKb
        a.ds(f"ds_read_b128 {vr(buf,4)}, v{aKA} offset:{KB + t*4096}", ("K", t))
    def Kf(t): return vr(aKa if t % 2 == 0 else aKb, 4)
    def s1(t):
        a.wait_lg(("K", t))
        c = vr(aB8, 16) if t == 8 else (vr(aB0, 16) if t == 0 else "0")
        a(f"v_mfma_f32_32x32x16_bf16 {vr(S3[t % 3],16)}, {Kf(t)}, {vr(aQ,4)}, {c}")
        if t >= 2: rdK(t - 2)
    a.ds(f"ds_read_b128 {vr(aQ,4)}, v{aQA}", "Q")
    rdK(8); rdK(7)
    a.wait_lg("Q")
    s1(8); s1(7)
    a.nop(6)
    for t in range(8, -1, -1):
        if t >= 2: s1(t - 2)
        elif t == 1: a.nop(2)
        else: a.nop(3)
        s = S3[t % 3]
        if t == 8:
            a.nop(2)
            a(f"v_max3_f32 v{aM}, v{s}, v{s+1}, v{s+2}")
            a(f"v_max_f32 v{aM}, v{aM}, v{s+3}")
            for p in range(2, 8): a(f"v_max3_f32 v{aM}, v{aM}, v{s+2*p}, v{s+2*p+1}")
        else:
            for p in range(8): a(f"v_max3_f32 v{aM}, v{aM}, v{s+2*p}, v{s+2*p+1}")
        if t >= 1:
            a(f"s_cmp_eq_u32 s{sTMIN}, {t}")
            a("s_cbranch_scc1 L_at_p1done")
    a.label("L_at_p1done")
    a.wait_lg0()
    if OPT.get("tsa"): ts(a, 26)
    a(f"s_cmp_lt_u32 s{sW}, 4"); a("s_cbranch_scc1 L_at_vw0")
    a("s_waitcnt vmcnt(2)"); a("s_branch L_at_vw1")
    a.label("L_at_vw0")
    a("s_waitcnt vmcnt(0)")
    a.label("L_at_vw1")
    a("s_barrier")
    if OPT.get("tsa"): ts(a, 27)
    a(f"v_mov_b32 v{aT}, v{aM}")
    rdK(8); rdK(7)
    a(f"v_permlane32_swap_b32 v{aM}, v{aT}")
    a(f"v_max_f32 v{aM}, v{aM}, v{aT}")
    a(f"v_sub_f32 v{aM}, 0, v{aM}")
    a.nop(8)
    for p in range(8): a(f"v_pk_add_f32 {vr(aC8+2*p,2)}, {vr(aB8+2*p,2)}, {vr(aM,2)} op_sel_hi:[1,0]")
    a(f"v_mov_b32 v{aT}, v{aM}")
    for p in range(8): a(f"v_pk_add_f32 {vr(aC0+2*p,2)}, {vr(aB0+2*p,2)}, {vr(aM,2)} op_sel_hi:[1,0]")
    for r in range(0, 16, 2): a(f"v_pk_mul_f32 {vr(aCm+r,2)}, {vr(aM,2)}, 1.0 op_sel_hi:[1,0]")
    def S(t): return aS[t % 2]
    def rdV(t):
        vb = aV[t % 2]
        a(f"s_mov_b64 exec, s[{sVMASK}:{sVMASK+1}]")
        a.ds(f"ds_read_b128 {vr(vb,4)}, v{aVA} offset:{t*4096}", ("V", t))
        a.ds(f"ds_read_b128 {vr(vb+4,4)}, v{aVA} offset:{t*4096 + 512}", ("V", t))
        a("s_mov_b64 exec, -1")
    def s2(t):
        a.wait_lg(("K", t))
        c = vr(aC8, 16) if t == 8 else (vr(aC0, 16) if t == 0 else vr(aCm, 16))
        a(f"v_mfma_f32_32x32x16_bf16 {vr(S(t),16)}, {Kf(t)}, {vr(aQ,4)}, {c}")
    if OPT.get("tsa"): ts(a, 28)
    rdV(8)
    s2(8)
    rdK(6)
    a.nop(11)
    for t in range(8, -1, -1):
        s = S(t); vb = aV[t % 2]
        for r in range(0, 4): a(f"v_exp_f32 v{s+r}, v{s+r}")
        if t >= 1:
            s2(t - 1)
            if t >= 3: rdK(t - 3)
        for r in range(4, 8): a(f"v_exp_f32 v{s+r}, v{s+r}")
        for p in range(4): a(f"v_cvt_pk_bf16_f32 v{aP+p}, v{s+2*p}, v{s+2*p+1}")
        a.wait_lg(("V", t))
        a(f"v_exp_f32 v{s+8}, v{s+8}")
        a(f"v_mfma_f32_32x32x16_bf16 {vr(aO,16)}, {vr(vb,4)}, {vr(aP,4)}, {'0' if t == 8 else vr(aO,16)}")
        for r in range(9, 16): a(f"v_exp_f32 v{s+r}, v{s+r}")
        if t >= 1: rdV(t - 1)
        for p in range(4, 8): a(f"v_cvt_pk_bf16_f32 v{aP+p}, v{s+2*p}, v{s+2*p+1}")
        if t >= 1: a(f"s_cmp_eq_u32 s{sTMIN}, {t}")
        a.nop(1 if t >= 1 else 2)
        a(f"v_mfma_f32_32x32x16_bf16 {vr(aO,16)}, {vr(vb+4,4)}, {vr(aP+4,4)}, {vr(aO,16)}")
        if t >= 1: a("s_cbranch_scc1 L_at_p2done")
    a.label("L_at_p2done")
    if OPT.get("tsa"): ts(a, 7)
    a.wait_lg0()
    a.nop(12)
    a(f"v_rcp_f32 v{aT}, v{aO+8}")
    a.nop(1)
    for r in range(8): a(f"v_mul_f32 v{aO+r}, v{aO+r}, v{aT}")
    for p in range(4): a(f"v_cvt_pk_bf16_f32 v{aP+p}, v{aO+2*p}, v{aO+2*p+1}")
    a.nop(1)
    dual_store(a, "buffer_store_dwordx4", vr(aP, 4), vL16, SRD_WS, f"s{sO}")
    a.wait_all0()

def src_patterns(a, regs, t0, t1, t2):
    a(f"v_lshrrev_b32 v{t0}, 3, v{vLANE}")
    a(f"v_bfe_u32 v{t1}, v{vLANE}, 4, 2")
    a(f"v_and_b32 v{t2}, 1, v{t1}"); a(f"v_lshlrev_b32 v{t2}, 1, v{t2}"); a(f"v_lshrrev_b32 v{t1}, 1, v{t1}"); a(f"v_or_b32 v{t1}, v{t1}, v{t2}")
    a(f"v_bfe_u32 v{t2}, v{vLANE}, 1, 2"); a(f"v_xor_b32 v{t1}, v{t1}, v{t2}"); a(f"v_lshlrev_b32 v{t1}, 5, v{t1}")
    a(f"v_and_b32 v{t2}, 1, v{vLANE}"); a(f"v_lshl_add_u32 v{t1}, v{t2}, 4, v{t1}")
    for reg, stride in regs:
        a(f"s_mov_b32 s{sT0}, {stride}"); a(f"v_mul_lo_u32 v{t2}, v{t0}, s{sT0}"); a(f"v_add_u32 v{reg}, v{t2}, v{t1}")

pT0, pT1 = 40, 41
pF = 44
def prep_setup(a):
    a(f"s_mov_b32 s{sT2}, 0"); tr_addr(a, pT0, sT2, tmp=(60, 61, 62, 63))
    a(f"s_mov_b32 s{sT2}, 1"); tr_addr(a, pT1, sT2, tmp=(60, 61, 62, 63))
    a(f"s_lshl_b32 s{sT2}, s{sW}, 12"); a(f"s_add_u32 s{sT2}, s{sT2}, {PREP}")
    a(f"v_add_u32 v{pT0}, s{sT2}, v{pT0}"); a(f"v_add_u32 v{pT1}, s{sT2}, v{pT1}")
def prep_fetch(a, srdn, vpat, stride, ssrc, slot, tag):
    for o in range(2):
        a(f"s_lshl_b32 s{sT3}, s{sW}, 12"); a(f"s_add_u32 m0, s{sT3}, {PREP + slot*2048 + o*1024}")
        a(f"s_add_u32 s{sT0}, s{ssrc}, {o*8*stride}")
        a.vm(f"buffer_load_dwordx4 v{vpat}, s[{srdn}:{srdn+3}], s{sT0} offen lds", tag)
def prep_read(a, f, slot, tag):
    a.wait_vm(tag)
    for ct, ad in ((0, pT0), (1, pT1)):
        for h in range(2):
            a.ds(f"ds_read_b64_tr_b16 {vr(f+4*ct+2*h,2)}, v{ad} offset:{slot*2048 + h*1024}", "pf")
    a.wait_lg0()
def prep_store(a, f, sdst):
    for ct in range(2):
        a.vm(f"buffer_store_dwordx4 {vr(f+4*ct,4)}, v{vL16}, s[{SRD_WS}:{SRD_WS+3}], s{sdst} offen offset:{ct*1024} sc1", "pst")
def prep_emit(a, sdst, slot, tag):
    f = pF + 8 * slot
    prep_read(a, f, slot, tag)
    prep_store(a, f, sdst)
def w2_item(a, ssrc, sdst, ks_sgpr):
    a(f"s_lshl_b32 s{ssrc}, s{ks_sgpr}, 14"); a(f"s_lshl_b32 s{sT0}, s{sJ}, 7"); a(f"s_add_u32 s{ssrc}, s{ssrc}, s{sT0}")
    a(f"s_lshl_b32 s{sdst}, s{ks_sgpr}, 11"); a(f"s_mul_i32 s{sT0}, s{sJ}, {J_W2}"); a(f"s_add_u32 s{sdst}, s{sdst}, s{sT0}"); a(f"s_add_u32 s{sdst}, s{sdst}, {WS_W2P}")

def loader_prep(a):
    pA, pB = 88, 89
    a(f"s_cmp_eq_u32 s{sW}, 7"); a("s_cbranch_scc1 L_prep7")
    src_patterns(a, ((vPQ, 3072),), 16, 17, 18)
    a(f"s_sub_u32 s{sT1}, s{sW}, 4")
    a(f"s_add_u32 s{sT2}, s{sT1}, 1"); a(f"s_cmp_eq_u32 s{sT1}, 2"); a(f"s_cselect_b32 s{sT2}, 0, s{sT2}")
    a(f"s_mul_i32 s{pA}, s{sG}, {16*3072}"); a(f"s_lshl_b32 s{sT2}, s{sT2}, 10"); a(f"s_add_u32 s{pA}, s{pA}, s{sT2}")
    a(f"s_lshl_b32 s{sT2}, s{sJ}, 7"); a(f"s_add_u32 s{pA}, s{pA}, s{sT2}")
    prep_fetch(a, SRD_WQ, vPQ, 3072, pA, 0, "p0")
    a(f"s_mul_i32 s{pB}, s{sJ}, {J_WQ}"); a(f"s_lshl_b32 s{sT2}, s{sG}, 11"); a(f"s_add_u32 s{pB}, s{pB}, s{sT2}")
    a(f"s_lshl_b32 s{sT2}, s{sT1}, 16"); a(f"s_add_u32 s{pB}, s{pB}, s{sT2}"); a(f"s_add_u32 s{pB}, s{pB}, {WS_WQP}")
    a("s_branch L_prep_go")
    a.label("L_prep7")
    a.vmq = []
    src_patterns(a, ((vPO, 1024),), 16, 17, 18)
    a(f"s_lshl_b32 s{pA}, s{sG}, 14"); a(f"s_lshl_b32 s{sT2}, s{sJ}, 7"); a(f"s_add_u32 s{pA}, s{pA}, s{sT2}")
    prep_fetch(a, SRD_WO, vPO, 1024, pA, 0, "p0")
    a(f"s_lshl_b32 s{pB}, s{sG}, 11"); a(f"s_lshl_b32 s{sT2}, s{sJ}, 16"); a(f"s_add_u32 s{pB}, s{pB}, s{sT2}"); a(f"s_add_u32 s{pB}, s{pB}, {WS_WOP}")
    a.label("L_prep_go")
    prep_setup(a)
    if OPT["ts"]:
        a.wait_vm("p0"); ts(a, 1)
    prep_emit(a, pB, 0, "p0")
    ts(a, 2)
    a.vmq = []

qF = 212
sQ1, sQ2 = 92, 93
def prep2_fetch(a):
    pA, pC = 88, 89
    a(f"s_cmp_eq_u32 s{sW}, 4"); a("s_cbranch_scc1 L_p2f_skip")
    src_patterns(a, ((vP1, 2752), (vPO, 1024)), 16, 17, 18)
    a(f"s_sub_u32 s{sT1}, s{sW}, 5")
    a(f"s_mul_i32 s{pA}, s{sG}, {16*2752}"); a(f"s_lshl_b32 s{sT2}, s98, 5"); a(f"s_add_u32 s{pA}, s{pA}, s{sT2}")
    a(f"s_lshl_b32 s{sT2}, s{sT1}, 7"); a(f"s_add_u32 s{pA}, s{pA}, s{sT2}")
    a(f"s_mul_i32 s{sQ1}, s{sJ}, {J_WQ}"); a(f"s_lshl_b32 s{sT2}, s{sG}, 11"); a(f"s_add_u32 s{sQ1}, s{sQ1}, s{sT2}")
    a(f"s_lshl_b32 s{sT2}, s{sT1}, 16"); a(f"s_add_u32 s{sQ1}, s{sQ1}, s{sT2}"); a(f"s_add_u32 s{sQ1}, s{sQ1}, {WS_W1P}")
    prep_fetch(a, SRD_W1, vP1, 2752, pA, 0, "q0")
    a(f"s_lshl_b32 s{sT1}, s{sT1}, 5"); a(f"s_add_u32 s{sT1}, s{sT1}, s{sG}")
    w2_item(a, pC, sQ2, sT1)
    a(f"s_cmp_lt_u32 s{sT1}, 86"); a(f"s_cselect_b32 s{sQ2}, s{sQ2}, 0x7ffff000")
    prep_fetch(a, SRD_W2, vPO, 1024, pC, 1, "q1")
    a.label("L_p2f_skip")
    a.vmq = []
def prep2_emit(a):
    a(f"s_cmp_eq_u32 s{sW}, 4"); a("s_cbranch_scc1 L_p2r_skip")
    a("s_waitcnt vmcnt(0)")
    for slot in range(2):
        for ct, ad in ((0, pT0), (1, pT1)):
            for h in range(2):
                a(f"ds_read_b64_tr_b16 {vr(qF+8*slot+4*ct+2*h,2)}, v{ad} offset:{slot*2048 + h*1024}")
    a("s_waitcnt lgkmcnt(0)")
    for q, sd in ((0, sQ1), (1, sQ2)):
        for ct in range(2):
            a(f"buffer_store_dwordx4 {vr(qF+8*q+4*ct,4)}, v{vL16}, s[{SRD_WS}:{SRD_WS+3}], s{sd} offen offset:{ct*1024} sc1")
    a.label("L_p2r_skip")

def loader_prologue(a):
    t0, t1, t2 = 16, 17, 18
    a(f"s_mul_i32 s{sT0}, s{sJ}, {J_WQ}"); a(f"s_add_u32 s{sT0}, s{sT0}, s{sI1K}")
    a(f"s_add_u32 s{sWQb}, s{sT0}, {WS_WQP}"); a(f"s_add_u32 s{sW1b}, s{sT0}, {WS_W1P}")
    a(f"s_lshl_b32 s{sWOb}, s{sJ}, 16"); a(f"s_add_u32 s{sWOb}, s{sWOb}, s{sI1K}"); a(f"s_add_u32 s{sWOb}, s{sWOb}, {WS_WOP}")
    a(f"s_mul_i32 s{sW2b}, s{sJ}, {J_W2}"); a(f"s_add_u32 s{sW2b}, s{sW2b}, s{sI1K}"); a(f"s_add_u32 s{sW2b}, s{sW2b}, {WS_W2P}")
    a(f"v_add_u32 v{vLI[0]}, s{sI1K}, v{vL16}"); three_bases(a, vLI)
    a(f"s_and_b32 s{sT0}, s{sI}, 1"); a(f"s_lshr_b32 s{sT1}, s{sI}, 1")
    a(f"s_lshl_b32 s{sXA}, s{sG}, 16"); a(f"s_lshl_b32 s{sT2}, s{sT0}, 15"); a(f"s_add_u32 s{sXA}, s{sXA}, s{sT2}")
    a(f"s_lshl_b32 s{sT2}, s{sT1}, 10"); a(f"s_add_u32 s{sXA}, s{sXA}, s{sT2}"); a(f"s_add_u32 s{sXA}, s{sXA}, {WS_XA}")
    a(f"s_mov_b32 s{sTT}, s{sT0}")
    a(f"s_sub_i32 s{sKVr}, s{sG}, 4"); a(f"s_lshl_b32 s{sKVr}, s{sKVr}, 3"); a(f"s_add_i32 s{sKVr}, s{sKVr}, s{sJ}"); a(f"s_lshl_b32 s{sKVr}, s{sKVr}, 14")
    a(f"s_add_i32 s{sKVr}, s{sKVr}, s{sI1K}"); a(f"s_add_i32 s{sKVr}, s{sKVr}, {WS_KV}")
    a(f"s_lshl_b32 s{sT0}, s{sG}, 7")
    a(f"v_and_b32 v{t0}, 7, v{vLANE}"); a(f"v_lshlrev_b32 v{t0}, 2, v{t0}"); a(f"v_add_u32 v{vPOLL}, s{sT0}, v{t0}")
    a(f"s_lshl_b32 s{sT1}, s{sJ}, 2"); a(f"s_add_u32 s{sT0}, s{sT0}, s{sT1}"); a(f"v_mov_b32 v{vFLAG}, s{sT0}")
    a(f"v_lshlrev_b32 v{vSTA}, 6, v{vLANE}")
    a(f"v_and_b32 v{t0}, 31, v{vLANE}"); a(f"v_lshlrev_b32 v{t0}, 2, v{t0}"); a(f"v_lshrrev_b32 v{t1}, 5, v{vLANE}"); a(f"v_lshl_add_u32 v{t0}, v{t1}, 8, v{t0}")
    a(f"s_lshl_b32 s{sT0}, s{sTT}, 7"); a(f"s_add_u32 s{sT0}, s{sT0}, {ST_MEAN}"); a(f"v_add_u32 v{vSTW}, s{sT0}, v{t0}")
    a(f"s_mov_b32 s{sC1}, {f2u(1.0/512.0)}"); a(f"s_mov_b32 s{sC2}, {f2u(EPS)}")

def wq_unit(a, u): dma(a, SRD_WS, vL16, sWQb, u * 4096, slot_p1(u), ("W", u), "sc1")
def w1_unit(a, u): dma(a, SRD_WS, vL16, sW1b, u * 4096, slot_p4(u), ("W", u), "sc1")
def wo_unit(a, m): dma(a, SRD_WS, vL16, sWOb, m * 4096, WOB + 4 * K * m, ("WO", m), "sc1")
def w2_unit(a, m): dma(a, SRD_WS, vL16, sW2b, m * 4096, slot_p5(m), ("W2", m), "sc1")
def a_pair(a, m, abase):
    dma(a, SRD_WS, vL16, sXA, m * 2048, abase + m * 4096, ("A", m), "sc1")

PV = (80, 81, 82, 83, 84, 85)
def poll_loop(a, name, vaddr, vdat):
    lab = f"L_{name}"
    a(f"s_mov_b32 s{sSPIN}, {OPT['spin']}")
    a.label(lab)
    a(f"buffer_load_dword v{vdat}, v{vaddr}, s[{SRD_WS}:{SRD_WS+3}], 0 offen sc1")
    a("s_waitcnt vmcnt(0)")
    a(f"v_subrev_u32 v{vdat}, s{sVAL}, v{vdat}")
    a(f"v_cmp_le_u32 vcc, 8, v{vdat}")
    a(f"s_sub_u32 s{sSPIN}, s{sSPIN}, 1")
    a(f"s_cbranch_scc1 {lab}_x")
    a(f"s_cbranch_vccnz {lab}")
    a.label(f"{lab}_x")
def poll(a, name, vaddr): poll_loop(a, name, vaddr, PV[0])

def publish_local(a, name, ev):
    vf, vp, vv = PV[1], PV[2], PV[3]
    a(f"s_cmp_lg_u32 s{sW}, 0")
    a(f"s_cbranch_scc1 L_{name}_skip")
    a(f"s_lshl_b32 s{sT1}, s{sG}, 7"); a(f"s_lshl_b32 s{sT2}, s{sJ}, 2"); a(f"s_add_u32 s{sT2}, s{sT2}, s{sT1}")
    a(f"s_lshl_b32 s{sVAL}, s{sPAIR}, 2"); a(f"s_add_u32 s{sVAL}, s{sVAL}, {ev}"); a(f"s_add_u32 s{sVAL}, s{sVAL}, s{sEP}")
    a(f"v_mov_b32 v{vf}, s{sT2}"); a(f"v_mov_b32 v{vv}, s{sVAL}")
    a(f"s_mov_b64 s[{sEXEC}:{sEXEC+1}], exec"); a("s_mov_b64 exec, 1")
    a(f"s_cmp_eq_u32 s{sFAST}, 0")
    a(f"s_cbranch_scc1 L_{name}_sl")
    a(f"buffer_store_dword v{vv}, v{vf}, s[{SRD_WS}:{SRD_WS+3}], 0 offen")
    a(f"s_branch L_{name}_st")
    a.label(f"L_{name}_sl")
    a(f"buffer_store_dword v{vv}, v{vf}, s[{SRD_WS}:{SRD_WS+3}], 0 offen sc1")
    a.label(f"L_{name}_st")
    a(f"s_mov_b64 exec, s[{sEXEC}:{sEXEC+1}]")
    a(f"v_and_b32 v{vp}, 7, v{vLANE}"); a(f"v_lshlrev_b32 v{vp}, 2, v{vp}"); a(f"v_add_u32 v{vp}, s{sT1}, v{vp}")
    poll(a, name + "_p", vp)
    a.label(f"L_{name}_skip")

KVP = (20, 21, 22, 23, 24)
def kv_flag_store(a, wave, which, regs, name):
    v1_, v2_ = regs
    a(f"s_cmp_lg_u32 s{sW}, {wave}")
    a(f"s_cbranch_scc1 L_{name}_skip")
    a(f"s_lshl_b32 s{sT1}, s{sG}, 3"); a(f"s_add_u32 s{sT1}, s{sT1}, s{sJ}"); a(f"s_lshl_b32 s{sT1}, s{sT1}, 7"); a(f"s_add_u32 s{sT1}, s{sT1}, {WS_FLAGR + 4*which}")
    a(f"s_add_u32 s{sVAL}, s{sPAIRN}, 1"); a(f"s_add_u32 s{sVAL}, s{sVAL}, s{sEP}")
    a(f"v_mov_b32 v{v1_}, s{sVAL}"); a(f"v_mov_b32 v{v2_}, s{sT1}")
    a(f"s_mov_b64 s[{sEXEC}:{sEXEC+1}], exec"); a("s_mov_b64 exec, 1")
    a(f"buffer_store_dword v{v1_}, v{v2_}, s[{SRD_WS}:{SRD_WS+3}], 0 offen sc1")
    a(f"s_mov_b64 exec, s[{sEXEC}:{sEXEC+1}]")
    a.label(f"L_{name}_skip")

def kv_pred_addr(a, v2_, v3_, which):
    a(f"v_and_b32 v{v2_}, 3, v{vLANE}"); a(f"v_add_u32 v{v2_}, 1, v{v2_}"); a(f"v_sub_u32 v{v2_}, s{sG}, v{v2_}")
    a(f"v_cmp_gt_i32 vcc, 0, v{v2_}"); a(f"v_mov_b32 v{v3_}, s{sG}"); a("s_nop 1"); a(f"v_cndmask_b32 v{v2_}, v{v2_}, v{v3_}, vcc")
    a(f"v_lshlrev_b32 v{v2_}, 3, v{v2_}"); a(f"v_add_u32 v{v2_}, s{sJ}, v{v2_}"); a(f"v_lshlrev_b32 v{v2_}, 7, v{v2_}"); a(f"v_add_u32 v{v2_}, {WS_FLAGR + 4*which}, v{v2_}")

def poll_r(a, name, vaddr, vdat): poll_loop(a, name, vaddr, vdat)

def die_check_issue(a):
    a(f"v_and_b32 v24, 7, v{vLANE}"); a(f"v_lshlrev_b32 v24, 5, v24"); a(f"v_add_u32 v24, s{sG}, v24")
    a(f"v_lshlrev_b32 v24, 7, v24"); a(f"v_add_u32 v24, {WS_PREPF}, v24")
    a.vm(f"buffer_load_dwordx2 v[28:29], v24, s[{SRD_WS}:{SRD_WS+3}], 0 offen sc1", "die")
def die_check(a):
    a.wait_vm("die")
    a(f"s_cmp_lg_u32 s{sW}, 4"); a("s_cbranch_scc1 L_die_skip")
    a(f"s_add_u32 s{sVAL}, s{sEP}, 1")
    a(f"s_mov_b32 s{sSPIN}, {OPT['spin']}")
    a.label("L_die_loop")
    a(f"v_subrev_u32 v28, s{sVAL}, v28")
    a(f"v_cmp_le_u32 vcc, 8, v28")
    a(f"s_sub_u32 s{sSPIN}, s{sSPIN}, 1")
    a("s_cbranch_scc1 L_die_x")
    a("s_cbranch_vccz L_die_x")
    a(f"buffer_load_dwordx2 v[28:29], v24, s[{SRD_WS}:{SRD_WS+3}], 0 offen sc1")
    a("s_waitcnt vmcnt(0)")
    a("s_branch L_die_loop")
    a.label("L_die_x")
    a(f"s_getreg_b32 s{sT2}, hwreg(HW_REG_XCC_ID, 0, 3)")
    a(f"v_cmp_ne_u32 vcc, s{sT2}, v29")
    a("s_nop 4")
    a(f"s_cmp_eq_u64 vcc, 0")
    a(f"s_cselect_b32 s{sT1}, 1, 0")
    if OPT.get("slow"): a(f"s_mov_b32 s{sT1}, 0")
    a(f"v_mov_b32 v28, s{sT1}"); a(f"v_mov_b32 v29, {MODEW}")
    a(f"ds_write_b32 v29, v28")
    a("s_waitcnt lgkmcnt(0)")
    a.label("L_die_skip")

def kv_wait_k(a, ph):
    v0_, v1_, v2_, v3_, v4_ = KVP
    a(f"s_cmp_lg_u32 s{sW}, 4")
    a(f"s_cbranch_scc1 L_{ph}_kw_skip")
    kv_pred_addr(a, v2_, v3_, 0)
    a(f"s_add_u32 s{sVAL}, s{sPAIRN}, 1"); a(f"s_add_u32 s{sVAL}, s{sVAL}, s{sEP}")
    poll_r(a, f"{ph}_kp", v2_, v0_)
    a.label(f"L_{ph}_kw_skip")

def kv_wait_v(a):
    v0_, v1_, v2_, v3_, v4_ = KVP
    a(f"s_cmp_lg_u32 s{sW}, 4")
    a(f"s_cbranch_scc1 L_vw_skip")
    kv_pred_addr(a, v2_, v3_, 1)
    a(f"s_add_u32 s{sVAL}, s{sPAIR}, 1"); a(f"s_add_u32 s{sVAL}, s{sVAL}, s{sEP}")
    poll_r(a, "vp", v2_, v0_)
    a.label(f"L_vw_skip")

def kv_dma(a, part):
    a(f"s_lshl_b32 s{sT2}, s{sPAIR}, 22"); a(f"s_add_i32 s{sT2}, s{sT2}, s{sKVr}")
    for b in range(3, -1, -1):
        lab = f"L_kv{part}{b}"
        a(f"s_cmp_lt_u32 s{sG}, {4-b}")
        a(f"s_cbranch_scc1 {lab}")
        for h in range(2):
            dma(a, SRD_WS, vL16, sT2, b * 8 * 16384 + part * 8192 + h * 4096, (KB if part == 0 else VB) + b * 8192 + h * 4096, "KV", "nt sc1" if OPT.get("nt", 0) & 4 else "sc1")
        a.label(lab)

def xcd_touch_ws(a, base, share, npieces, vpat):
    a(f"s_lshr_b32 s{sT1}, s2, 3"); a(f"s_and_b32 s{sT1}, s{sT1}, 31"); a(f"s_mul_i32 s{sT1}, s{sT1}, {share}")
    a(f"s_lshl_b32 s{sT2}, s{sI}, 13"); a(f"s_add_u32 s{sT1}, s{sT1}, s{sT2}")
    touch(a, SRD_WS, vpat, sT1, base)
    a(f"s_cmp_ge_u32 s{sI}, 2"); a("s_cbranch_scc1 L_xt_skip")
    touch(a, SRD_WS, vpat, sT1, base + 4 * 8192)
    a.label("L_xt_skip")

def xcd_touch(a, srdn, share, npieces, vpat, dst):
    a(f"s_lshr_b32 s{sT1}, s2, 3"); a(f"s_and_b32 s{sT1}, s{sT1}, 31"); a(f"s_mul_i32 s{sT1}, s{sT1}, {share}")
    a(f"s_lshl_b32 s{sT2}, s{sI}, 13"); a(f"s_add_u32 s{sT1}, s{sT1}, s{sT2}")
    for p in range(0, npieces, 4): touch(a, srdn, vpat, sT1, p * 8192, dst)

def loader_stats_issue(a):
    a(f"s_lshl_b32 s{sT1}, s{sTT}, 12"); a(f"s_add_u32 s{sT1}, s{sT1}, s{sSTATS}")
    for q in range(4):
        a.vm(f"buffer_load_dwordx4 {vr(32+4*q,4)}, v{vL16}, s[{SRD_WS}:{SRD_WS+3}], s{sT1} offen offset:{1024*q} sc1", "ST")
def loader_stats_items(a, double_ln):
    I = lambda txt: (lambda: a(txt))
    s1 = [lambda: a.wait_vm("ST")] + [I(f"v_add_f32 v{32+e}, v{32+e}, v{40+e}") for e in range(8)]
    s2 = [I(f"v_add_f32 v{32+e}, v{32+e}, v{36+e}") for e in range(4)] + [I("v_add_f32 v32, v32, v34"), I("v_add_f32 v33, v33, v35"), I("v_add_f32 v32, v32, v33")]
    t0, t1, t2, t3, v = 48, 49, 50, 51, 32
    def f1():
        a(f"v_mov_b32 v{t0}, v{v}")
        a(f"v_cmp_gt_u32 s[{sEXEC}:{sEXEC+1}], 32, v{vLANE}")
        a.nop(1)
        a(f"v_permlane32_swap_b32 v{v}, v{t0}")
        a(f"v_mul_f32 v{v}, s{sC1}, v{v}"); a(f"v_mul_f32 v{t0}, s{sC1}, v{t0}")
        a(f"v_fma_f32 v{t0}, -v{v}, v{v}, v{t0}"); a(f"v_max_f32 v{t0}, 0, v{t0}"); a(f"v_add_f32 v{t1}, s{sC2}, v{t0}")
        a(f"v_rsq_f32 v{t1}, v{t1}")
        a.nop(1)
    def f2():
        if double_ln:
            a(f"v_mul_f32 v{t2}, v{t1}, v{t1}"); a(f"v_mul_f32 v{t2}, v{t2}, v{t0}"); a(f"v_add_f32 v{t2}, s{sC2}, v{t2}")
            a(f"v_rsq_f32 v{t2}, v{t2}")
            a.nop(1)
            a(f"v_mul_f32 v{t1}, v{t1}, v{t2}")
        a(f"v_cndmask_b32 v{t3}, v{t1}, v{v}, s[{sEXEC}:{sEXEC+1}]")
        a.ds(f"ds_write_b32 v{vSTW}, v{t3}", "stw")
    return {6: s1 + s2, 7: [f1, f2]}

def prep_signal(a):
    v0_, v1_, v2_ = 20, 21, 22
    a(f"s_cmp_lg_u32 s{sW}, 4"); a("s_cbranch_scc1 L_sig_skip0")
    a(f"s_getreg_b32 s{sT1}, hwreg(HW_REG_XCC_ID, 0, 3)")
    a(f"s_add_u32 s{sVAL}, s{sEP}, 1")
    a(f"s_lshl_b32 s{sT2}, s{sJ}, 5"); a(f"s_add_u32 s{sT2}, s{sT2}, s{sG}"); a(f"s_lshl_b32 s{sT2}, s{sT2}, 7"); a(f"s_add_u32 s{sT2}, s{sT2}, {WS_PREPF}")
    a(f"v_mov_b32 v{v0_}, s{sVAL}"); a(f"v_mov_b32 v{v0_+1}, s{sT1}"); a(f"v_mov_b32 v{v2_}, s{sT2}")
    a(f"s_mov_b64 s[{sEXEC}:{sEXEC+1}], exec"); a("s_mov_b64 exec, 1")
    a(f"buffer_store_dwordx2 v[{v0_}:{v0_+1}], v{v2_}, s[{SRD_WS}:{SRD_WS+3}], 0 offen sc1")
    a(f"s_mov_b64 exec, s[{sEXEC}:{sEXEC+1}]")
    a.label("L_sig_skip0")
def prep_wait(a):
    v2_ = 22
    a(f"s_cmp_lg_u32 s{sW}, 4"); a("s_cbranch_scc1 L_sig_skip")
    a(f"s_add_u32 s{sVAL}, s{sEP}, 1")
    a(f"v_and_b32 v{v2_}, 31, v{vLANE}"); a(f"s_lshl_b32 s{sT2}, s{sJ}, 5"); a(f"v_add_u32 v{v2_}, s{sT2}, v{v2_}")
    a(f"v_lshlrev_b32 v{v2_}, 7, v{v2_}"); a(f"v_add_u32 v{v2_}, {WS_PREPF}, v{v2_}")
    a(f"s_mov_b32 exec_hi, 0")
    poll_loop(a, "sig", v2_, 23)
    a("s_mov_b64 exec, -1")
    a.label("L_sig_skip")
    ts(a, 19)
    a.bar("prepgo")

def prep_signal2(a):
    a(f"s_cmp_lg_u32 s{sW}, 4"); a("s_cbranch_scc1 L_sig2_skip")
    a(f"s_add_u32 s{sVAL}, s{sEP}, 2")
    a(f"s_lshl_b32 s{sT2}, s{sJ}, 5"); a(f"s_add_u32 s{sT2}, s{sT2}, s{sG}"); a(f"s_lshl_b32 s{sT2}, s{sT2}, 7"); a(f"s_add_u32 s{sT2}, s{sT2}, {WS_PREPF}")
    a(f"v_mov_b32 v20, s{sVAL}"); a(f"v_mov_b32 v22, s{sT2}")
    a(f"s_mov_b64 s[{sEXEC}:{sEXEC+1}], exec"); a("s_mov_b64 exec, 1")
    a(f"buffer_store_dword v20, v22, s[{SRD_WS}:{SRD_WS+3}], 0 offen sc1")
    a(f"s_mov_b64 exec, s[{sEXEC}:{sEXEC+1}]")
    a.label("L_sig2_skip")
def _prep2_addr(a):
    a(f"v_and_b32 v26, 31, v{vLANE}"); a(f"s_lshl_b32 s{sT2}, s{sJ}, 5"); a(f"v_add_u32 v26, s{sT2}, v26")
    a(f"v_lshlrev_b32 v26, 7, v26"); a(f"v_add_u32 v26, {WS_PREPF}, v26")
def prep_check2_issue(a):
    _prep2_addr(a)
    a(f"s_mov_b32 exec_hi, 0")
    a.vm(f"buffer_load_dword v27, v26, s[{SRD_WS}:{SRD_WS+3}], 0 offen sc1", "s2")
    a("s_mov_b64 exec, -1")
def prep_check2(a):
    a.wait_vm("s2")
    a(f"s_add_u32 s{sVAL}, s{sEP}, 2")
    a(f"s_mov_b32 exec_hi, 0")
    a(f"v_subrev_u32 v27, s{sVAL}, v27")
    a(f"v_cmp_le_u32 vcc, 8, v27")
    a("s_cbranch_vccz L_s2_ok")
    poll_loop(a, "s2p", 26, 27)
    a.label("L_s2_ok")
    a("s_mov_b64 exec, -1")

cFB, cACC, cSEL, cAD = (64, 68, 72, 76), 80, 84, 88
def colsum_setup(a, csf):
    a(f"v_bfe_u32 v89, v{vLANE}, 4, 1"); a(f"v_and_b32 v90, 15, v{vLANE}")
    a(f"v_cmp_eq_u32 s[{sEXEC}:{sEXEC+1}], v89, v90")
    a(f"v_mov_b32 v91, 0x3f803f80"); a(f"v_mov_b32 v92, 0")
    a.nop(1)
    for q in range(4): a(f"v_cndmask_b32 v{cSEL+q}, v92, v91, s[{sEXEC}:{sEXEC+1}]")
    a(f"s_lshl_b32 s{sT1}, s{sI}, 7"); a(f"s_add_u32 s{sT1}, s{sT1}, {csf}")
    a(f"v_lshlrev_b32 v{cAD}, 2, v{vLANE}"); a(f"v_add_u32 v{cAD}, s{sT1}, v{cAD}")
def colsum_read(a, slot, st):
    li = LdsBase(vLI)
    for q in range(4):
        r, off = li.at(slot(2*st + (q >> 1)) + (q & 1) * 2048)
        a(f"ds_read_b128 {vr(cFB[q],4)}, v{r} offset:{off}")
def colsum_acc(a, st):
    a("s_waitcnt lgkmcnt(0)")
    first = st % 8 == 0
    for q in range(4):
        a(f"v_mfma_f32_16x16x32_bf16 {vr(cACC,4)}, {vr(cSEL,4)}, {vr(cFB[q],4)}, {'0' if (first and q == 0) else vr(cACC,4)}")
def colsum_flush(a, T):
    a.nop(8)
    a(f"s_mov_b64 exec, s[{sM16}:{sM16+1}]")
    a(f"ds_write_b32 v{cAD}, v{cACC} offset:{T*256}"); a(f"ds_write_b32 v{cAD}, v{cACC+1} offset:{T*256 + 64}")
    a("s_mov_b64 exec, -1")
def colsum_hooks(a, slot, st, ph):
    lab = f"L_{ph}_cs{st}_{len(a.L)}"
    a(f"s_cmp_ge_u32 s{sI}, 2"); a(f"s_cbranch_scc1 {lab}")
    if st >= 1:
        colsum_acc(a, st - 1)
        if (st - 1) % 8 == 7: colsum_flush(a, (st - 1) // 8)
    colsum_read(a, slot, st)
    if st == 23:
        colsum_acc(a, 23); colsum_flush(a, 2); a("s_waitcnt lgkmcnt(0)")
    a.label(lab)

LA = 5
def gemm192_loader(a, ph, unit, slot, abase, double_ln, extra, colsum=None):
    if colsum is not None: colsum_setup(a, colsum)
    for m in range(2 * LA): a_pair(a, m, abase)
    nxt = 22
    extra = list(extra)
    items = loader_stats_items(a, double_ln)
    for st in range(24):
        need = []
        if st < 8: need += [("A", 2*st), ("A", 2*st + 1)]
        need += [("W", 2*st), ("W", 2*st + 1)]
        a.wait_vm(need)
        if st == 9 or (colsum is not None and st == 17): a.wait_lg0()
        a.bar(f"{ph}_B{st}")
        if st == 22 and ph.startswith("p1"): kv_flag_store(a, 4, 0, (KVP[1], KVP[2]), ph + "_kf")
        if OPT.get("ts3") == ph: ts(a, 36 + st)
        elif st in (0, 4, 8, 16) and not OPT.get("ts3"): ts(a, (20 if ph.startswith("p1") else 30) + {0: 0, 4: 5, 8: 1, 16: 2}[st])
        if colsum is not None: colsum_hooks(a, slot, st, ph)
        if st + LA < 8:
            a_pair(a, 2*(st + LA), abase); a_pair(a, 2*(st + LA) + 1, abase)
        elif st == 8 - LA:
            loader_stats_issue(a)
        elif nxt < 48:
            unit(a, nxt); unit(a, nxt + 1); nxt += 2
        else:
            for _ in range(2):
                if extra: extra.pop(0)()
        for f in items.get(st, []): f()
    a.bar(f"{ph}_end")
    while extra: extra.pop(0)()

def p1_loader(a, v1):
    ph = "p1a" if v1 else "p1b"
    wo = [(lambda m=m: wo_unit(a, m)) for m in range(16)]
    if v1:
        colsum_setup(a, CSF_Q)
        pre = OPT.get("p1pre", 12)
        for u in range(pre): wq_unit(a, u)
        nxt = pre
        for st in range(24):
            a.wait_vm([("W", 2*st), ("W", 2*st + 1)])
            if st in (9, 17): a.wait_lg0()
            a.bar(f"{ph}_B{st}")
            if st == 22: kv_flag_store(a, 4, 0, (KVP[1], KVP[2]), ph + "_kf")
            if st == 1: prep_signal2(a)
            if st == 8: die_check_issue(a)
            if st == 12: prep_check2_issue(a)
            if st == 13: die_check(a)
            if st == 17: prep_check2(a)
            if OPT.get("ts3") == ph: ts(a, 36 + st)
            colsum_hooks(a, slot_p1, st, ph)
            if nxt < 48 and (nxt < 22 or st >= (nxt + 1 - 22) // 2 + 2):
                wq_unit(a, nxt); wq_unit(a, nxt + 1); nxt += 2
            elif st >= 18:
                for _ in range(3):
                    if wo: wo.pop(0)()
        a.bar(f"{ph}_end")
        while wo: wo.pop(0)()
    else:
        gemm192_loader(a, ph, wq_unit, slot_p1, A_P1, False, wo)
    kv_wait_k(a, ph)
    a.bar(f"{ph}_pubkv")

def _vf(a):
    kv_flag_store(a, 0, 1, (PV[1], PV[2]), "vf")

def read_mode(a):
    lab = a.name + "_mode"
    a(f"s_cmp_lg_u32 s{sPAIR}, 0")
    a(f"s_cbranch_scc1 {lab}")
    a(f"v_mov_b32 v{aT}, {MODEW}")
    a(f"ds_read_b32 v{aT}, v{aT}")
    a("s_waitcnt lgkmcnt(0)")
    a(f"v_readfirstlane_b32 s{sFAST}, v{aT}")
    a.label(lab)

def ts_real(a, idx):
    if not OPT["ts"]: return
    a.wait_lg0()
    a(f"s_memrealtime s[{sTS}:{sTS+1}]")
    a("s_waitcnt lgkmcnt(0)")
    a(f"v_writelane_b32 v{vTS}, s{sTS}, {idx}")

def span_stamp(a, which):
    if not OPT.get("span"): return
    a(f"s_memrealtime s[{sTS}:{sTS+1}]")
    a("s_waitcnt lgkmcnt(0)")
    a(f"s_cmp_lg_u32 s{sW}, 0"); a(f"s_cbranch_scc1 L_span{which}")
    a(f"s_lshl_b32 s{sT1}, s2, 3"); a(f"s_add_u32 s{sT1}, s{sT1}, {WS_TS + 4*which}")
    a(f"v_mov_b32 v80, s{sTS}"); a(f"v_mov_b32 v81, s{sT1}")
    a("s_mov_b64 exec, 1")
    a(f"buffer_store_dword v80, v81, s[{SRD_WS}:{SRD_WS+3}], 0 offen")
    a("s_mov_b64 exec, -1")
    a.label(f"L_span{which}")

def dump_ts(a):
    if not OPT["ts"]: return
    a(f"s_lshl_b32 s{sT1}, s2, 3"); a(f"s_add_u32 s{sT1}, s{sT1}, s{sW}"); a(f"s_lshl_b32 s{sT1}, s{sT1}, 8"); a(f"s_add_u32 s{sT1}, s{sT1}, {WS_TS}")
    a(f"v_lshlrev_b32 v{aT}, 2, v{vLANE}")
    a(f"buffer_store_dword v{vTS}, v{aT}, s[{SRD_WS}:{SRD_WS+3}], s{sT1} offen")

def stop_here(a, name):
    if OPT["stop"] == name:
        dump_ts(a)
        a("s_waitcnt vmcnt(0) lgkmcnt(0)")
        a("s_endpgm")

def build():
    top = Stream("t")
    common_init(top)
    c = Stream("c")
    span_stamp(c, 0)
    if OPT.get("exit0"):
        span_stamp(c, 1) if False else None
        c("s_waitcnt vmcnt(0)"); c("s_endpgm")
    ts(c, 0)
    ts_real(c, 62)
    compute_prologue(c)
    p1_compute(c, True)
    c.label("L_c_loop")
    ts(c, 3)
    _vf(c)
    read_mode(c)
    attention_setup(c)
    c.bar("kready")
    ts(c, 4)
    c("s_branch L_attn")
    c.label("L_c_postattn")
    ts(c, 5)
    c.bar("pubo")
    publish_local(c, "o", 1)
    c.bar("goo")
    stop_here(c, "p2")
    ts(c, 6)
    p3_compute(c)
    stop_here(c, "p3")
    ts(c, 10)
    p4_compute(c)
    stop_here(c, "p4")
    ts(c, 12)
    p5_compute_main(c)
    ts(c, 14)
    c(f"s_cmp_lg_u32 s{sPAIR}, 0")
    c("s_cbranch_scc1 L_c_final")
    st = c.state()
    red_epilogue(c, "p5a", RB_P5, True, False, False)
    c.wait_all0()
    c.bar("p5a_pub")
    publish_local(c, "x2", 4)
    c.bar("p5a_go")
    stop_here(c, "p5")
    ts(c, 16)
    c(f"s_add_u32 s{sKVw}, s{sKVw}, {1 << 22}")
    c(f"s_mov_b32 s{sPAIRN}, 1")
    p1_compute(c, False)
    c(f"s_mov_b32 s{sPAIR}, 1")
    if OPT["ts"]:
        dump_ts(c); c("s_waitcnt vmcnt(0)"); c(f"v_mov_b32 v{vTS}, 0"); c(f"s_add_u32 s2, s2, 256")
    c("s_branch L_c_loop")
    c.label("L_c_final")
    c.set_state(st)
    red_epilogue(c, "p5b", RB_P5, True, True, False)
    c(f"s_or_b32 s{sT1}, s{sG}, s{sJ}"); c(f"s_or_b32 s{sT1}, s{sT1}, s{sW}")
    c(f"s_cmp_lg_u32 s{sT1}, 0"); c("s_cbranch_scc1 L_c_noep")
    c(f"v_mov_b32 v80, s{sEP}"); c(f"v_mov_b32 v81, {WS_EPOCH}")
    c(f"s_mov_b64 s[{sEXEC}:{sEXEC+1}], exec"); c("s_mov_b64 exec, 1")
    c(f"buffer_store_dword v80, v81, s[{SRD_WS}:{SRD_WS+3}], 0 offen sc1")
    c(f"s_mov_b64 exec, s[{sEXEC}:{sEXEC+1}]")
    c.label("L_c_noep")
    ts(c, 17)
    ts_real(c, 63)
    dump_ts(c)
    if OPT.get("span"): c("s_waitcnt vmcnt(0)")
    span_stamp(c, 1)
    c("s_waitcnt vmcnt(0)")
    c("s_endpgm")
    l = Stream("l")
    vT128 = 10
    l.label("L_loader")
    if OPT.get("exit0"): l("s_endpgm")
    ts(l, 0)
    if OPT.get("lprio", 1): l(f"s_setprio {OPT.get('lprio', 1)}")
    loader_prep(l)
    if OPT.get("early2", 1): prep2_fetch(l)
    loader_prologue(l)
    l(f"v_lshlrev_b32 v{vT128}, 7, v{vLANE}")
    if OPT.get("touch", 1):
        l(f"s_cmp_lg_u32 s{sW}, 7"); l("s_cbranch_scc1 L_l_t3")
        l("s_getpc_b64 s[94:95]")
        l.label("L_l_pc")
        l(f"s_sub_u32 s94, s94, L_l_pc-{NAME}_kernel"); l("s_subb_u32 s95, s95, 0")
        l(f"s_lshr_b32 s{sT1}, s2, 3"); l(f"s_lshl_b32 s{sT2}, s{sT1}, 11"); l(f"v_add_u32 v25, s{sT2}, v{vT128}")
        l(f"s_mov_b32 s{sT2}, L_exit-{NAME}_kernel"); l(f"v_min_u32 v25, s{sT2}, v25")
        l(f"s_mov_b64 exec, s[{sM16}:{sM16+1}]")
        l(f"s_mov_b32 m0, {DUMMY}"); l("s_nop 0")
        l(f"global_load_lds_dword v25, s[94:95]")
        l("s_mov_b64 exec, -1")
        l.label("L_l_t3")
    l(f"v_mov_b32 v20, {CNTW}"); l("v_mov_b32 v21, 0")
    l("ds_write_b32 v20, v21")
    if OPT.get("early2", 1):
        l(f"s_cmp_eq_u32 s{sW}, 4"); l("s_cbranch_scc1 L_l_w40")
        l("s_waitcnt vmcnt(4) lgkmcnt(0)"); l("s_branch L_l_w41")
        l.label("L_l_w40")
        l("s_waitcnt vmcnt(0) lgkmcnt(0)")
        l.label("L_l_w41")
        l.vmq = []; l.lg = []
    else: l.wait_all0()
    l(f"s_add_u32 s{sEP}, s{sEP}, 16")
    ts(l, 13)
    l.bar("prep")
    ts(l, 15)
    prep_signal(l)
    if not OPT.get("early2", 1): prep2_fetch(l)
    prep2_emit(l)
    prep_wait(l)
    ts(l, 18)
    p1_loader(l, True)
    l.label("L_l_loop")
    ts(l, 3)
    kv_dma(l, 0)
    read_mode(l)
    attention_setup(l)
    kv_wait_v(l)
    l.wait_vm0()
    l.bar("kready")
    kv_dma(l, 1)
    warm_w1(l)
    warm_exchange(l)
    l.vmq = []
    ts(l, 4)
    TOUCH = OPT.get("touch", 1)
    if OPT.get("lprio", 1) and not OPT.get("aprio", 0): l("s_setprio 0")
    l("s_branch L_attn")
    l.label("L_l_postattn")
    l.vmq = []; l.lg = []
    if OPT.get("lprio", 1): l(f"s_setprio {OPT.get('lprio', 1)}")
    ts(l, 5)
    l.bar("pubo")
    for u in range(10): w1_unit(l, u)
    l.bar("goo")
    stop_here(l, "p2")
    ts(l, 6)
    l.bar("p3_a")
    l.bar("p3_b")
    for u in range(10, 16): w1_unit(l, u)
    l.bar("p3_red1"); l.bar("p3_red2"); l.bar("p3_pub")
    for u in range(16, 22): w1_unit(l, u)
    l.bar("p3_go")
    stop_here(l, "p3")
    ts(l, 10)
    l(f"s_cmp_lg_u32 s{sPAIR}, 0")
    l("s_cbranch_scc1 L_l_p4b")
    st = l.state()
    ends = []
    nb0 = len(l.bars)
    for v1 in (True, False):
        if not v1:
            l.label("L_l_p4b"); l.set_state(st)
            logged = l.bars[nb0:]; l.bars = l.bars[:nb0]
        gemm192_loader(l, "p4", w1_unit, slot_p4, A_P4, True, [(lambda m=m: w2_unit(l, m)) for m in range(16)], colsum=CSF_1 if v1 else None)
        for m in range(16, 24): w2_unit(l, m)
        l.bar("p4_pubh")
        for m in range(24, 32): w2_unit(l, m)
        l.bar("p4_goh")
        ends.append(l.state())
        if v1: l("s_branch L_l_p5")
    assert ends[0] == ends[1] and l.bars[nb0:] == logged
    l.label("L_l_p5")
    stop_here(l, "p4")
    ts(l, 12)
    l.wait_vm([("W2", m) for m in range(4)])
    l.bar("p5_a")
    w2n = 32
    cond = []
    early = OPT.get("wqe", 0)
    for st5 in range(1, 11):
        need = [("W2", m) for m in range(4*st5, min(4*st5 + 4, 43))]
        l.wait_vm(need)
        l.bar(f"p5_B{st5}")
        if st5 <= 3:
            for m in range(w2n, min(w2n + 2, 38)): w2_unit(l, m)
            w2n = min(w2n + 2, 38)
        if st5 == 4:
            for m in range(38, 42): w2_unit(l, m)
        if st5 == 5: w2_unit(l, 42)
        if st5 >= 9 - early // 2 and st5 <= 8 and len(cond) < early:
            stt = l.state()
            l(f"s_cmp_lg_u32 s{sPAIR}, 0"); l(f"s_cbranch_scc1 L_l_wqe{st5}")
            for _ in range(2):
                wq_unit(l, len(cond)); cond.append(len(cond))
            l.label(f"L_l_wqe{st5}")
            l.set_state(stt)
    ts(l, 14)
    l(f"s_cmp_lg_u32 s{sPAIR}, 0")
    l("s_cbranch_scc1 L_l_final")
    l.vmq = l.vmq + [("W", u) for u in cond]
    n0 = len(cond); n1 = n0 + OPT.get("wq1", 6); n2 = n1 + OPT.get("wq2", 6)
    for u in range(n0, n1): wq_unit(l, u)
    l.bar("p5a_red2")
    for u in range(n1, n2): wq_unit(l, u)
    l.bar("p5a_pub")
    for u in range(n2, 22): wq_unit(l, u)
    l.bar("p5a_go")
    stop_here(l, "p5")
    ts(l, 16)
    l(f"s_mov_b32 s{sPAIRN}, 1")
    p1_loader(l, False)
    l(f"s_mov_b32 s{sPAIR}, 1")
    if OPT["ts"]:
        dump_ts(l); l("s_waitcnt vmcnt(0)"); l(f"v_mov_b32 v{vTS}, 0"); l(f"s_add_u32 s2, s2, 256")
    l("s_branch L_l_loop")
    l.label("L_l_final")
    l.bar("p5b_red2")
    dump_ts(l)
    l("s_waitcnt vmcnt(0)")
    l("s_endpgm")
    at = Stream("a")
    at.label("L_attn")
    attention(at)
    at(f"s_cmp_ge_u32 s{sW}, 4")
    at("s_cbranch_scc1 L_l_postattn")
    at("s_branch L_c_postattn")
    assert c.bars == l.bars, "\n".join(f"{x} | {y}" for x, y in zip(c.bars, l.bars)) + f"\n{len(c.bars)} {len(l.bars)}"
    lines = top.L + c.L + l.L + at.L + ["L_exit:", "s_endpgm"]
    return lines

HEAD = f"""; Fused two-pair transformer block (sliding-window attention + GELU MLP), one persistent launch.
; @launch grid=(256,1,1) block=(512,1,1) lds={LDS_TOTAL}
.amdgcn_target "amdgcn-amd-amdhsa--gfx950"
.text
.globl {NAME}_kernel
.p2align 8
.type {NAME}_kernel,@function
{NAME}_kernel:
"""
TAIL = f"""
.section .rodata,"a"
.p2align 6
.amdhsa_kernel {NAME}_kernel
  .amdhsa_next_free_vgpr 256
  .amdhsa_next_free_sgpr 102
  .amdhsa_accum_offset 256
  .amdhsa_group_segment_fixed_size 0
  .amdhsa_kernarg_size 88
  .amdhsa_user_sgpr_count 2
  .amdhsa_user_sgpr_kernarg_segment_ptr 1
  .amdhsa_system_sgpr_workgroup_id_x 1
.end_amdhsa_kernel
"""
if __name__ == "__main__":
    lines = build()
    errs = lint(lines)
    for e in errs[:40]: print("LINT", e, file=sys.stderr)
    out = OPT.get("out", f"cdna_kernels/{NAME}.s")
    open(out, "w").write(HEAD + "\n".join("    " + x if not x.endswith(":") else x for x in lines) + TAIL)
    print(f"wrote {out}: {len(lines)} lines, {len(errs)} lint findings", file=sys.stderr)
```

```python
import sys, copy
from asmlib import Stream, lint

NAME = "interleave_layers__sliding_block__mixer_channel_mlp__prompt"
OPT = dict(ts=False, stop=None, spin=400000)
for a in sys.argv[1:]:
    if a.startswith("--"):
        k, _, v = a[2:].partition("=")
        OPT[k] = (int(v) if v.lstrip("-").isdigit() else v) if v else True

K = 1024
LDS_TOTAL = 160 * K
MISC = 152 * K
ST_MEAN = MISC
ST_RSTD = MISC + 256
CS_Q = MISC + 512
CS_1 = MISC + 2048
B1F = MISC + 3584
B2F = MISC + 4352
STP = MISC + 4608
CSF_Q = MISC + 5632
CSF_1 = MISC + 6400
MODEW = MISC + 7168
CNTW = MISC + 7172
DUMMY = MISC + 7424
KB, VB, QB, WOB = 0, 40 * K, 80 * K, 88 * K
def slot_p1(u):
    if u < 22: return 64 * K + 4 * K * u
    if u < 32: return 64 * K + 4 * K * (u - 22)
    if u < 40: return 4 * K * (u - 32)
    if u < 46: return 40 * K + 4 * K * (u - 40)
    return 64 * K + 4 * K * (u - 46)
A_P1 = 0
def slot_p4(u):
    if u < 22: return 4 * K * u
    if u < 32: return 4 * K * (u - 22)
    return 88 * K + 4 * K * (u - 32)
A_P4 = 88 * K
def slot_p5(m):
    if m < 12: return 40 * K + 4 * K * m
    if m < 22: return 4 * K * (m - 12)
    if m < 38: return 88 * K + 4 * K * (m - 22)
    return 40 * K + 4 * K * (m - 38)
RB_P3 = 136 * K
RB_P5 = 0
WS_FLAGL = 0x0
WS_FLAGR = 0x2000
WS_STATS = 0x10000
WS_XA = 0x100000
WS_HO = 0x300000
HO_STRIDE = 0x2C000
H_TT = 86 * 1024
WS_KV = 0x900000
WS_TS = 0x1200000
WS_WQP = 0x1400000
WS_W1P = 0x1600000
WS_WOP = 0x1800000
WS_W2P = 0x1900000
J_WQ, J_WO, J_W2 = 0x30000, 0x10000, 0x2C000
PREP = 120 * K
WS_PREPF = 0x1C00000
WS_EPOCH = 0x1F00000
WS_SIZE = 0x2000000
SRD_X, SRD_WQ, SRD_WO, SRD_W1, SRD_W2, SRD_WS, SRD_OUT, SRD_DBG = 4, 8, 12, 16, 20, 24, 28, 32
sG, sJ, sW, sI, sPAIR, sFAST, sTT, sCP = 36, 37, 38, 39, 40, 41, 42, 43
SRD_TMP = 44
sI1K = 48
sT0, sT1, sT2, sT3 = 49, 50, 51, 52
sXA = 53
sHO = 54
sWQb, sW1b, sWOb = 55, 56, 57
sW2b = 100
sKVw = 58
sSTATS = 59
sSPIN = 60
sHST = (61, 62, 63, 64, 65, 66)
sX0 = 63
sKVr = 62
sVMASK = 68
sEXEC = 70
sTMIN = 72
sO = 73
sVAL = 74
sOUTb = 75
sPAIRN = 85
sEP = 87
sTS = 76
sM16 = 78
sM0_32 = 80
sC1, sC2, sC3 = 82, 83, 84
sKPTR = 86
vLANE, vL16 = 0, 1
vTRA = (2, 3, 4)
vTRK = (5, 6, 7)
vTRS = (8, 9, 10)
vAR = 11
vCSA = 12
vTOK = 13
vSTB = 14
vTS = 15
vXR = 16
vACC = (32, 48)
vWF = 64
vE = 88
vA = 128
vPQ, vP1, vPO, vX0, vPOLL, vFLAG, vSTA, vSTW = 2, 3, 4, 5, 6, 7, 8, 9
vLI = (11, 12, 13)

EPS = 1e-5
import struct, math
def f2u(x): return struct.unpack("<I", struct.pack("<f", x))[0]
QSCALE = math.log2(math.e) / 4.0
GC0 = -2.0 * math.sqrt(2.0 / math.pi) * math.log2(math.e)
GC1 = GC0 * 0.044715
NEGBIG = f2u(-1.0e30)

def ts(a, idx):
    if not OPT["ts"]: return
    a.wait_lg0()
    a(f"{'s_memrealtime' if OPT.get('rt') else 's_memtime'} s[{sTS}:{sTS+1}]")
    a("s_waitcnt lgkmcnt(0)")
    a(f"v_writelane_b32 v{vTS}, s{sTS}, {idx}")

def srd(a, d, ptr, size):
    a(f"s_mov_b32 s{d}, s{ptr}")
    a(f"s_and_b32 s{d+1}, s{ptr+1}, 0xffff")
    a(f"s_mov_b32 s{d+2}, {size}")
    a(f"s_mov_b32 s{d+3}, 0x20000")

def vr(b, n): return f"v[{b}:{b+n-1}]"

class LdsBase:
    def __init__(self, regs): self.regs = regs
    def at(self, addr):
        return self.regs[addr >> 16], addr & 0xffff

def dma(a, srdn, vpat, sbase, soff, lds, tag, flags=""):
    a(f"s_add_u32 m0, s{sI1K}, {lds}")
    a(f"s_add_u32 s{sT0}, s{sbase}, {soff}")
    a.vm(f"buffer_load_dwordx4 v{vpat}, s[{srdn}:{srdn+3}], s{sT0} offen {flags} lds".replace("  ", " "), tag)

def dual_store(a, kind, data, vaddr, srdn, soff, extra=""):
    lab = a.name + f"_ds{len(a.L)}"
    a(f"s_cmp_eq_u32 s{sFAST}, 0")
    a(f"s_cbranch_scc1 {lab}_s")
    a(f"{kind} {data}, v{vaddr}, s[{srdn}:{srdn+3}], {soff} offen {extra} nt".replace("  ", " ").rstrip())
    a(f"s_branch {lab}_e")
    a.label(f"{lab}_s")
    a.vm(f"{kind} {data}, v{vaddr}, s[{srdn}:{srdn+3}], {soff} offen {extra} sc1".replace("  ", " "), "st")
    a.label(f"{lab}_e")

def common_init(a):
    if OPT.get("exit1") == 1: a("s_endpgm")
    a("s_cmp_ge_u32 s2, 256")
    a("s_cbranch_scc1 L_exit")
    if OPT.get("perm"):
        a("s_and_b32 s3, s2, 7"); a("s_lshl_b32 s3, s3, 3"); a("s_lshr_b32 s4, s2, 3"); a("s_and_b32 s4, s4, 7"); a("s_or_b32 s3, s3, s4")
        if OPT["perm"] == 2: a("s_xor_b32 s3, s3, 5")
        a("s_and_b32 s2, s2, 0xc0"); a("s_or_b32 s2, s2, s3")
    a(f"s_load_dwordx16 s[{64}:{79}], s[0:1], 0")
    a(f"s_load_dwordx4 s[{88}:{91}], s[0:1], 64")
    a(f"s_load_dwordx2 s[{92}:{93}], s[0:1], 80")
    a(f"v_lshrrev_b32 v1, 6, v0")
    a(f"v_and_b32 v{vLANE}, 63, v0")
    a(f"s_and_b32 s{sT0}, s2, 7")
    a(f"v_readfirstlane_b32 s{sW}, v1")
    a(f"s_lshr_b32 s{sT1}, s2, 3")
    a(f"s_lshr_b32 s{sT2}, s{sT1}, 3")
    a(f"s_lshl_b32 s{sT0}, s{sT0}, 2")
    a(f"s_add_u32 s{sG}, s{sT0}, s{sT2}")
    a(f"s_and_b32 s{sJ}, s{sT1}, 7")
    a(f"s_and_b32 s{sI}, s{sW}, 3")
    a(f"s_lshl_b32 s{sI1K}, s{sI}, 10")
    a(f"s_mov_b32 s{sPAIR}, 0"); a(f"s_mov_b32 s{sPAIRN}, 0")
    a(f"s_mov_b32 s{sFAST}, 0")
    a(f"v_lshlrev_b32 v{vL16}, 4, v{vLANE}")
    a(f"v_mov_b32 v{vTS}, 0")
    a("s_waitcnt lgkmcnt(0)")
    if OPT.get("exit1") == 2: a("s_endpgm")
    srd(a, SRD_X, 64, 2048 * 1024)
    srd(a, SRD_WQ, 66, 512 * 3072)
    srd(a, SRD_WO, 68, 512 * 1024)
    srd(a, SRD_W1, 72, 512 * 2752)
    srd(a, SRD_W2, 76, 1376 * 1024)
    if OPT.get("wsoff", 0):
        a(f"s_add_u32 s92, s92, {OPT['wsoff'] << 20}"); a("s_addc_u32 s93, s93, 0")
    srd(a, SRD_WS, 92, WS_SIZE)
    srd(a, SRD_OUT, 88, 2048 * 1024)
    srd(a, SRD_DBG, 90, 256)
    a(f"s_mov_b32 s{sT3}, {WS_EPOCH}")
    a(f"s_buffer_load_dword s{sEP}, s[{SRD_WS}:{SRD_WS+3}], s{sT3}")
    a("s_mov_b32 s94, s74"); a("s_mov_b32 s95, s75"); a("s_mov_b32 s96, s78"); a("s_mov_b32 s97, s79")
    a(f"s_mul_i32 s98, s{sJ}, 10"); a(f"s_add_u32 s98, s98, 6"); a(f"s_mul_i32 s99, s{sJ}, 12")
    a(f"s_cmp_lt_u32 s{sJ}, 3")
    a(f"s_cselect_b32 s98, s99, s98")
    a(f"s_cselect_b32 s99, 12, 10")
    a(f"s_mov_b32 s{sVMASK}, 0x0000ffff"); a(f"s_mov_b32 s{sVMASK+1}, 0x0000ffff")
    a(f"s_mov_b64 s[{sM16}:{sM16+1}], 0xffff")
    a(f"s_mov_b32 s{sM0_32}, 1"); a(f"s_mov_b32 s{sM0_32+1}, 1")
    a(f"s_lshl_b32 s{sSTATS}, s{sG}, 13"); a(f"s_add_u32 s{sSTATS}, s{sSTATS}, {WS_STATS}")
    if OPT.get("exit1") == 3:
        a("s_waitcnt lgkmcnt(0)"); a("s_endpgm")
    a(f"s_cmp_ge_u32 s{sW}, 4")
    a("s_cbranch_scc1 L_loader")

def tr_addr(a, dst, ct_expr_sgpr, natural_second=None, tmp=(vE, vE+1, vE+2, vE+3)):
    t0, t1, t2, t3 = tmp
    def one(d, kexpr):
        kexpr(t0)
        a(f"v_lshrrev_b32 v{t1}, 1, v{t0}"); a(f"v_and_b32 v{t1}, 3, v{t1}")
        a(f"v_and_b32 v{t2}, 1, v{t1}"); a(f"v_lshlrev_b32 v{t2}, 1, v{t2}"); a(f"v_lshrrev_b32 v{t1}, 1, v{t1}")
        a(f"v_or_b32 v{t1}, v{t1}, v{t2}")
        a(f"v_lshrrev_b32 v{t2}, 4, v{vLANE}"); a(f"v_and_b32 v{t2}, 1, v{t2}")
        a(f"s_lshl_b32 s{sT3}, s{ct_expr_sgpr}, 1")
        a(f"v_add_u32 v{t2}, s{sT3}, v{t2}")
        a(f"v_xor_b32 v{t1}, v{t1}, v{t2}"); a(f"v_lshlrev_b32 v{t1}, 5, v{t1}")
        a(f"v_lshlrev_b32 v{t0}, 7, v{t0}")
        a(f"v_and_b32 v{t2}, 3, v{vLANE}"); a(f"v_lshlrev_b32 v{t2}, 3, v{t2}")
        a(f"v_add3_u32 v{d}, v{t0}, v{t1}, v{t2}")
    def kperm(t):
        a(f"v_lshrrev_b32 v{t}, 5, v{vLANE}"); a(f"v_lshlrev_b32 v{t}, 2, v{t}")
        a(f"v_bfe_u32 v{t3}, v{vLANE}, 2, 2"); a(f"v_add_u32 v{t}, v{t}, v{t3}")
    def knat(off):
        def f(t):
            a(f"v_lshrrev_b32 v{t}, 5, v{vLANE}"); a(f"v_lshlrev_b32 v{t}, 3, v{t}")
            a(f"v_bfe_u32 v{t3}, v{vLANE}, 2, 2"); a(f"v_add_u32 v{t}, v{t}, v{t3}")
            if off: a(f"v_add_u32 v{t}, {off}, v{t}")
        return f
    if natural_second is None: one(dst, kperm)
    else:
        one(dst, knat(0)); one(natural_second, knat(4))

def three_bases(a, regs):
    a(f"v_add_u32 v{regs[1]}, 0x10000, v{regs[0]}")
    a(f"v_add_u32 v{regs[2]}, 0x20000, v{regs[0]}")

vNA = vTRA
vNB = (112, 113, 115)
vSEL = vE + 28
vCSACC = vE + 32

def compute_prologue(a):
    a(f"s_lshr_b32 s{sTT}, s{sW}, 1")
    a(f"s_and_b32 s{sCP}, s{sW}, 1")
    if OPT.get("xtouch", 1):
        a(f"s_cmp_lg_u32 s{sW}, 0"); a("s_cbranch_scc1 L_c_xt")
        a(f"v_lshlrev_b32 v{vE}, 7, v{vLANE}"); a(f"s_lshl_b32 s{sT1}, s{sG}, 16"); a(f"s_lshl_b32 s{sT2}, s{sJ}, 13"); a(f"s_add_u32 s{sT1}, s{sT1}, s{sT2}")
        touch(a, SRD_X, vE, sT1, 0)
        a.label("L_c_xt")
        a.vmq = []
    t = vE
    a(f"s_lshl_b32 s{sT0}, s{sG}, 16"); a(f"s_lshl_b32 s{sT1}, s{sTT}, 15"); a(f"s_add_u32 s{sT0}, s{sT0}, s{sT1}")
    a(f"s_lshl_b32 s{sT1}, s{sJ}, 7"); a(f"s_add_u32 s{sT0}, s{sT0}, s{sT1}"); a(f"s_lshl_b32 s{sT1}, s{sCP}, 6"); a(f"s_add_u32 s{sOUTb}, s{sT0}, s{sT1}")
    a(f"s_cmp_lt_u32 s{sW}, 2")
    a("s_cbranch_scc1 L_c_nob")
    a(f"s_cmp_eq_u32 s{sW}, 2")
    a(f"s_cselect_b32 s{sT0}, s94, s96"); a(f"s_cselect_b32 s{sT1}, s95, s97")
    a(f"s_mov_b32 s{SRD_TMP}, s{sT0}"); a(f"s_and_b32 s{SRD_TMP+1}, s{sT1}, 0xffff")
    a(f"s_movk_i32 s{sT2}, 1024"); a(f"s_cmp_eq_u32 s{sW}, 2"); a(f"s_cselect_b32 s{SRD_TMP+2}, 2752, s{sT2}"); a(f"s_mov_b32 s{SRD_TMP+3}, 0x20000")
    a(f"s_cmp_eq_u32 s{sW}, 2")
    a(f"s_lshl_b32 s{sT0}, s98, 5"); a(f"s_lshl_b32 s{sT1}, s{sJ}, 7")
    a(f"s_cmp_eq_u32 s{sW}, 2")
    a(f"s_cselect_b32 s{sT0}, s{sT0}, s{sT1}")
    a(f"s_mov_b32 s{sT1}, {B2F}"); a(f"s_cselect_b32 s{sT1}, {B1F}, s{sT1}")
    a(f"s_cselect_b32 s{sT2}, 48, 16")
    a(f"v_lshlrev_b32 v{t+2}, 3, v{vLANE}")
    a(f"buffer_load_dwordx2 {vr(vBR,2)}, v{t+2}, s[{SRD_TMP}:{SRD_TMP+3}], s{sT0} offen")
    a(f"v_add_u32 v{vBR+2}, s{sT1}, v{vL16}")
    a(f"s_mov_b32 s{sBL}, s{sT2}")
    a.label("L_c_nob")
    a(f"s_lshl_b32 s{sT0}, s{sCP}, 10"); a(f"v_add_u32 v{vTRA[0]}, s{sT0}, v{vL16}"); three_bases(a, vTRA)
    a(f"s_mul_i32 s{sT0}, s{sCP}, 3072"); a(f"v_add_u32 v{vTRK[0]}, s{sT0}, v{vL16}")
    a(f"s_lshl_b32 s{sT0}, s{sCP}, 10"); a(f"s_add_u32 s{sT0}, s{sT0}, 1024"); a(f"v_add_u32 v{vTRS[0]}, s{sT0}, v{vL16}")
    three_bases(a, vTRK); three_bases(a, vTRS)
    a(f"s_lshl_b32 s{sT0}, s{sTT}, 10"); a(f"v_add_u32 v{vAR}, s{sT0}, v{vL16}")
    a(f"v_lshrrev_b32 v{t}, 5, v{vLANE}"); a(f"v_lshlrev_b32 v{t}, 4, v{t}")
    a(f"s_lshl_b32 s{sT0}, s{sCP}, 7"); a(f"v_add_u32 v{vCSA}, s{sT0}, v{t}")
    a(f"s_lshl_b32 s{sT0}, s{sTT}, 7"); a(f"v_add_u32 v{vSTB}, s{sT0}, v{t}")
    a(f"v_and_b32 v{t}, 31, v{vLANE}"); a(f"v_lshlrev_b32 v{t}, 2, v{t}"); a(f"v_add_u32 v{vTOK}, s{sT0}, v{t}")
    a(f"s_lshl_b32 s{sXA}, s{sG}, 16"); a(f"s_lshl_b32 s{sT0}, s{sTT}, 15"); a(f"s_add_u32 s{sXA}, s{sXA}, s{sT0}")
    a(f"s_lshl_b32 s{sT0}, s{sJ}, 12"); a(f"s_add_u32 s{sXA}, s{sXA}, s{sT0}"); a(f"s_lshl_b32 s{sT0}, s{sCP}, 11"); a(f"s_add_u32 s{sXA}, s{sXA}, s{sT0}")
    a(f"s_add_u32 s{sXA}, s{sXA}, {WS_XA}")
    a(f"s_mul_i32 s{sHO}, s{sG}, {HO_STRIDE}"); a(f"s_add_u32 s{sHO}, s{sHO}, {WS_HO}")
    a(f"s_lshl_b32 s{sKVw}, s{sG}, 3"); a(f"s_add_u32 s{sKVw}, s{sKVw}, s{sJ}"); a(f"s_lshl_b32 s{sKVw}, s{sKVw}, 14")
    a(f"s_lshl_b32 s{sT0}, s{sTT}, 12"); a(f"s_add_u32 s{sKVw}, s{sKVw}, s{sT0}"); a(f"s_lshl_b32 s{sT0}, s{sCP}, 11"); a(f"s_add_u32 s{sKVw}, s{sKVw}, s{sT0}")
    a(f"s_add_u32 s{sKVw}, s{sKVw}, {WS_KV}")
    for s in range(3):
        for sub in range(2):
            d = sHST[2*s+sub]
            a(f"s_lshl_b32 s{sT0}, s{sCP}, 1"); a(f"s_add_u32 s{sT0}, s{sT0}, {4*s+sub}")
            a(f"s_add_u32 s{sT1}, s{sT0}, s98"); a(f"s_lshl_b32 s{sT1}, s{sT1}, 10")
            a(f"s_mul_i32 s{sT2}, s{sTT}, {H_TT}"); a(f"s_add_u32 s{sT1}, s{sT1}, s{sT2}"); a(f"s_add_u32 s{sT1}, s{sT1}, s{sHO}")
            a(f"s_cmp_lt_u32 s{sT0}, s99")
            a(f"s_cselect_b32 s{d}, s{sT1}, 0x7ffff000")
    a(f"s_mov_b32 s{sC1}, {f2u(1.0/512.0)}"); a(f"s_mov_b32 s{sC2}, {f2u(EPS)}"); a(f"s_mov_b32 s{sC3}, {f2u(QSCALE)}")
    a(f"s_lshl_b32 s{sT1}, s{sW}, 14"); a(f"s_lshl_b32 s{sT2}, s{sG}, 16"); a(f"s_add_u32 s{sT2}, s{sT2}, s{sT1}")
    for r in range(16):
        a(f"v_xor_b32 v{vE}, {r << 4}, v{vL16}")
        a(f"s_add_u32 m0, s{sT1}, {A_P1 + r*1024}")
        a(f"s_add_u32 s{sT0}, s{sT2}, {r*1024}")
        a(f"buffer_load_dwordx4 v{vE}, s[{SRD_X}:{SRD_X+3}], s{sT0} offen lds")

vBR, sBL = 240, 101
def after_meet(a):
    a(f"s_cmp_lt_u32 s{sW}, 2")
    a("s_cbranch_scc1 L_c_nob2")
    a(f"v_cmp_gt_u32 vcc, s{sBL}, v{vLANE}")
    a(f"v_lshlrev_b32 v{vBR+4}, 16, v{vBR}"); a(f"v_and_b32 v{vBR+5}, 0xffff0000, v{vBR}")
    a(f"v_lshlrev_b32 v{vBR+6}, 16, v{vBR+1}"); a(f"v_and_b32 v{vBR+7}, 0xffff0000, v{vBR+1}")
    a(f"s_and_saveexec_b64 s[{sEXEC}:{sEXEC+1}], vcc")
    a(f"ds_write_b128 v{vBR+2}, {vr(vBR+4,4)}")
    a(f"s_mov_b64 exec, s[{sEXEC}:{sEXEC+1}]")
    a.label("L_c_nob2")

def touch(a, srdn, vpat, sbase, imm, dst=None):
    a(f"s_mov_b32 m0, {DUMMY}")
    a(f"s_add_u32 s{sT3}, s{sbase}, {imm}")
    a.vm(f"buffer_load_dword v{vpat}, s[{srdn}:{srdn+3}], s{sT3} offen lds", "touch")

def stats_finalize(a, v, tmp, vaddr, double_ln):
    t0, t1, t2, t3 = tmp
    a(f"v_mov_b32 v{t0}, v{v}")
    a.nop(2)
    a(f"v_permlane32_swap_b32 v{v}, v{t0}")
    a(f"v_mul_f32 v{v}, s{sC1}, v{v}")
    a(f"v_mul_f32 v{t0}, s{sC1}, v{t0}")
    a(f"v_fma_f32 v{t0}, -v{v}, v{v}, v{t0}")
    a(f"v_max_f32 v{t0}, 0, v{t0}")
    a(f"v_add_f32 v{t1}, s{sC2}, v{t0}")
    a(f"v_rsq_f32 v{t1}, v{t1}")
    a.nop(1)
    if double_ln:
        a(f"v_mul_f32 v{t2}, v{t1}, v{t1}")
        a(f"v_mul_f32 v{t2}, v{t2}, v{t0}")
        a(f"v_add_f32 v{t2}, s{sC2}, v{t2}")
        a(f"v_rsq_f32 v{t2}, v{t2}")
        a.nop(1)
        a(f"v_mul_f32 v{t1}, v{t1}, v{t2}")
    a(f"v_cmp_gt_u32 s[{sEXEC}:{sEXEC+1}], 32, v{vLANE}")
    a.nop(2)
    a(f"v_cndmask_b32 v{t3}, v{t1}, v{v}, s[{sEXEC}:{sEXEC+1}]")
    a.ds(f"ds_write_b32 v{vaddr}, v{t3}", "stw")

E = 80
ePK = 84
D_AHEAD = 4

class VM:
    def __init__(self, f): self.f = f
    def __call__(self): self.f()

def items_kq(a, ac, T, v1, is_q):
    mean, rs, ad, adc = E, E + 1, E + 2, E + 3
    w = 92
    cs = [96, 100, 104, 108]
    it = []
    it.append(lambda: a(f"v_add_u32 v{ad}, {ST_MEAN}, v{vTOK}"))
    it.append(lambda: a(f"v_add_u32 v{adc}, {MISC}, v{vCSA}"))
    it.append(lambda: a.ds(f"ds_read_b32 v{mean}, v{ad} offset:0", "em"))
    it.append(lambda: a.ds(f"ds_read_b32 v{rs}, v{ad} offset:256", "er"))
    if not v1:
        for g in range(4):
            it.append(lambda g=g: a.ds(f"ds_read_b128 {vr(cs[g],4)}, v{adc} offset:{CSF_Q - MISC + T*256 + g*32}", f"ca{g}"))
        for _ in range(6): it.append(lambda: None)
    if is_q:
        def fq():
            a.wait_lg("er"); a(f"v_mul_f32 v{rs}, s{sC3}, v{rs}")
        it.append(fq)
    for g in range(4):
        c = cs[0] if v1 else cs[g]
        if v1:
            it.append(lambda g=g: a.ds(f"ds_read_b128 {vr(cs[0],4)}, v{adc} offset:{CS_Q - MISC + T*256 + g*32}", f"ca{g}"))
            it.append(lambda g=g: a.ds(f"ds_read_b128 {vr(cs[1],4)}, v{adc} offset:{CS_Q - MISC + 768 + T*256 + g*32}", f"cb{g}"))
            for e in range(4):
                def f(e=e, g=g):
                    a.wait_lg([f"ca{g}", f"cb{g}"]); a(f"v_add_f32 v{cs[0]+e}, v{cs[0]+e}, v{cs[1]+e}")
                it.append(f)
            def fw(g=g):
                a(f"s_mov_b64 exec, s[{sM0_32}:{sM0_32+1}]")
                a.ds(f"ds_write_b128 v{adc}, {vr(cs[0],4)} offset:{CSF_Q - MISC + T*256 + g*32}", "cw")
                a("s_mov_b64 exec, -1")
            it.append(fw)
        for e in range(4):
            def f(e=e, g=g, c=c):
                a.wait_lg(["em", "er", f"ca{g}", f"cb{g}"])
                a(f"v_fma_f32 v{w+e}, -v{mean}, v{c+e}, v{ac+4*g+e}")
            it.append(f)
        for e in range(4):
            it.append(lambda e=e: a(f"v_mul_f32 v{w+e}, v{w+e}, v{rs}"))
        it.append(lambda g=g: a(f"v_cvt_pk_bf16_f32 v{ePK+2*g}, v{w}, v{w+1}"))
        it.append(lambda g=g: a(f"v_cvt_pk_bf16_f32 v{ePK+2*g+1}, v{w+2}, v{w+3}"))
    if not is_q:
        it.append(lambda: a(f"s_lshl_b32 s{sT1}, s{sTT}, 12"))
        it.append(lambda: a(f"s_lshl_b32 s{sT2}, s{sCP}, 11"))
        it.append(lambda: a(f"s_add_u32 s{sT1}, s{sT1}, s{sT2}"))
        it.append(lambda: a(f"v_add_u32 v{ad}, s{sT1}, v{vL16}"))
        for hh in range(2):
            it.append(VM(lambda hh=hh: a.vm(f"buffer_store_dwordx4 {vr(ePK+4*hh,4)}, v{vL16}, s[{SRD_WS}:{SRD_WS+3}], s{sKVw} offen offset:{hh*1024} sc1", "kvK")))
            it.append(lambda hh=hh: a.ds(f"ds_write_b128 v{ad}, {vr(ePK+4*hh,4)} offset:{KB + 32*K + hh*1024}", "kw"))
    else:
        it.append(lambda: a(f"s_lshl_b32 s{sT1}, s{sTT}, 10"))
        it.append(lambda: a(f"s_lshl_b32 s{sT2}, s{sCP}, 12"))
        it.append(lambda: a(f"s_add_u32 s{sT1}, s{sT1}, s{sT2}"))
        it.append(lambda: a(f"s_add_u32 s{sT1}, s{sT1}, {QB}"))
        it.append(lambda: a(f"v_add_u32 v{ad}, s{sT1}, v{vL16}"))
        for hh in range(2):
            it.append(lambda hh=hh: a.ds(f"ds_write_b128 v{ad}, {vr(ePK+4*hh,4)} offset:{hh*2048}", "qw"))
    return it

def items_v(a, ac, T, v1):
    cs, cs2, ad, ads = E, E + 1, E + 2, E + 3
    w = 92
    mb, rb = ((96, 96), (100, 100)) if v1 else ((96, 104), (100, 108))
    it = []
    it.append(lambda: a(f"v_and_b32 v{ad}, 31, v{vLANE}"))
    it.append(lambda: a(f"v_lshlrev_b32 v{ad}, 2, v{ad}"))
    it.append(lambda: a(f"s_lshl_b32 s{sT1}, s{sCP}, 7"))
    it.append(lambda: a(f"s_add_u32 s{sT1}, s{sT1}, {MISC}"))
    it.append(lambda: a(f"v_add_u32 v{ad}, s{sT1}, v{ad}"))
    it.append(lambda: a(f"v_add_u32 v{ads}, {MISC}, v{vSTB}"))
    def rd(g):
        it.append(lambda g=g: a.ds(f"ds_read_b128 {vr(mb[g%2],4)}, v{ads} offset:{ST_MEAN - MISC + g*32}", f"m{g}"))
        it.append(lambda g=g: a.ds(f"ds_read_b128 {vr(rb[g%2],4)}, v{ads} offset:{ST_RSTD - MISC + g*32}", f"r{g}"))
    if v1:
        it.append(lambda: a.ds(f"ds_read_b32 v{cs}, v{ad} offset:{CS_Q - MISC + T*256}", "ca"))
        it.append(lambda: a.ds(f"ds_read_b32 v{cs2}, v{ad} offset:{CS_Q - MISC + 768 + T*256}", "cb"))
        def f():
            a.wait_lg(["ca", "cb"]); a(f"v_add_f32 v{cs}, v{cs}, v{cs2}")
        it.append(f)
        it.append(lambda: a.ds(f"ds_write_b32 v{ad}, v{cs} offset:{CSF_Q - MISC + T*256}", "cw"))
    else:
        it.append(lambda: a.ds(f"ds_read_b32 v{cs}, v{ad} offset:{CSF_Q - MISC + T*256}", "ca"))
        rd(0)
        for _ in range(6): it.append(lambda: None)
    for g in range(4):
        if v1: rd(g)
        elif g < 3: rd(g + 1)
        for e in range(4):
            def f(e=e, g=g):
                a.wait_lg(["ca", f"m{g}"])
                a(f"v_fma_f32 v{w+e}, -v{mb[g%2]+e}, v{cs}, v{ac+4*g+e}")
            it.append(f)
        for e in range(4):
            def f(e=e, g=g):
                a.wait_lg(f"r{g}"); a(f"v_mul_f32 v{w+e}, v{w+e}, v{rb[g%2]+e}")
            it.append(f)
        it.append(lambda g=g: a(f"v_cvt_pk_bf16_f32 v{ePK+2*g}, v{w}, v{w+1}"))
        it.append(lambda g=g: a(f"v_cvt_pk_bf16_f32 v{ePK+2*g+1}, v{w+2}, v{w+3}"))
    it.append(lambda: a(f"v_bfe_u32 v{ad}, v{vLANE}, 4, 1"))
    it.append(lambda: a(f"v_lshlrev_b32 v{ad}, 10, v{ad}"))
    it.append(lambda: a(f"v_lshrrev_b32 v{cs2}, 5, v{vLANE}"))
    it.append(lambda: a(f"v_lshl_add_u32 v{ad}, v{cs2}, 8, v{ad}"))
    it.append(lambda: a(f"v_and_b32 v{cs2}, 15, v{vLANE}"))
    it.append(lambda: a(f"v_lshl_add_u32 v{ad}, v{cs2}, 4, v{ad}"))
    it.append(lambda: a(f"s_lshl_b32 s{sT1}, s{sTT}, 12"))
    it.append(lambda: a(f"s_lshl_b32 s{sT2}, s{sCP}, 11"))
    it.append(lambda: a(f"s_add_u32 s{sT1}, s{sT1}, s{sT2}"))
    it.append(lambda: a(f"s_add_u32 s{sT1}, s{sT1}, {VB + 32*K}"))
    it.append(lambda: a(f"v_add_u32 v{ads}, s{sT1}, v{ad}"))
    it.append(lambda: a(f"s_add_u32 s{sT2}, s{sKVw}, 8192"))
    for s in range(2):
        it.append(VM(lambda s=s: a.vm(f"buffer_store_dwordx4 {vr(ePK+4*s,4)}, v{ad}, s[{SRD_WS}:{SRD_WS+3}], s{sT2} offen offset:{s*512} sc1", "kvV")))
        it.append(lambda s=s: a.ds(f"ds_write_b128 v{ads}, {vr(ePK+4*s,4)} offset:{s*512}", "vw"))
    return it

def items_h(a, ac, T, v1):
    mr, rs, gc, ad2 = E, E + 1, E + 2, E + 3
    u, t = 92, 96
    if v1: csA, bbs, csB = (100, 100), (104, 104), 108
    else:  csA, bbs, csB = (100, 108), (104, 112), None
    CSR = CS_1 if v1 else CSF_1
    it = []
    it.append(lambda: a(f"v_add_u32 v{ad2}, {ST_MEAN}, v{vTOK}"))
    it.append(lambda: a.ds(f"ds_read_b32 v{mr}, v{ad2} offset:0", "em"))
    it.append(lambda: a.ds(f"ds_read_b32 v{rs}, v{ad2} offset:256", "er"))
    it.append(lambda: a(f"v_add_u32 v{ad2}, {MISC}, v{vCSA}"))
    it.append(lambda: a(f"v_mov_b32 v{gc}, {f2u(GC1)}"))
    def rd(g):
        it.append(lambda g=g: a.ds(f"ds_read_b128 {vr(csA[g%2],4)}, v{ad2} offset:{CSR - MISC + T*256 + g*32}", f"ca{g}"))
        if v1: it.append(lambda g=g: a.ds(f"ds_read_b128 {vr(csB,4)}, v{ad2} offset:{CS_1 - MISC + 768 + T*256 + g*32}", f"cb{g}"))
        it.append(lambda g=g: a.ds(f"ds_read_b128 {vr(bbs[g%2],4)}, v{ad2} offset:{B1F - MISC + T*256 + g*32}", f"b{g}"))
    if not v1:
        rd(0)
        for _ in range(5): it.append(lambda: None)
    def fm():
        a.wait_lg(["em", "er"]); a(f"v_mul_f32 v{mr}, v{mr}, v{rs}")
    it.append(fm)
    for g in range(4):
        cA, bb = csA[g % 2], bbs[g % 2]
        if v1:
            rd(g)
            for e in range(4):
                def f(e=e, g=g, cA=cA):
                    a.wait_lg([f"ca{g}", f"cb{g}"]); a(f"v_add_f32 v{cA+e}, v{cA+e}, v{csB+e}")
                it.append(f)
            def fw(g=g, cA=cA):
                a(f"s_mov_b64 exec, s[{sM0_32}:{sM0_32+1}]")
                a.ds(f"ds_write_b128 v{ad2}, {vr(cA,4)} offset:{CSF_1 - MISC + T*256 + g*32}", "cw")
                a("s_mov_b64 exec, -1")
            it.append(fw)
        for e in range(4):
            def f(e=e, g=g, cA=cA, bb=bb):
                a.wait_lg([f"ca{g}", f"b{g}"]); a(f"v_fma_f32 v{bb+e}, -v{mr}, v{cA+e}, v{bb+e}")
            it.append(f)
        for e in range(4): it.append(lambda e=e, g=g, bb=bb: a(f"v_fma_f32 v{u+e}, v{ac+4*g+e}, v{rs}, v{bb+e}"))
        if not v1 and g < 3: rd(g + 1)
        for e in range(4): it.append(lambda e=e: a(f"v_mul_f32 v{t+e}, v{u+e}, v{u+e}"))
        for e in range(4): it.append(lambda e=e: a(f"v_fmaak_f32 v{t+e}, v{t+e}, v{gc}, {f2u(GC0)}"))
        for e in range(4): it.append(lambda e=e: a(f"v_mul_f32 v{t+e}, v{t+e}, v{u+e}"))
        for e in range(4): it.append(lambda e=e: a(f"v_exp_f32 v{t+e}, v{t+e}"))
        for e in range(4): it.append(lambda e=e: a(f"v_add_f32 v{t+e}, 1.0, v{t+e}"))
        for e in range(4): it.append(lambda e=e: a(f"v_rcp_f32 v{t+e}, v{t+e}"))
        for e in range(4): it.append(lambda e=e: a(f"v_mul_f32 v{u+e}, v{u+e}, v{t+e}"))
        it.append(lambda g=g: a(f"v_cvt_pk_bf16_f32 v{ePK+2*g}, v{u}, v{u+1}"))
        it.append(lambda g=g: a(f"v_cvt_pk_bf16_f32 v{ePK+2*g+1}, v{u+2}, v{u+3}"))
        if g % 2 == 1:
            sub = g // 2
            it.append(lambda: a("s_nop 0"))
            it.append(VM(lambda sub=sub: dual_store(a, "buffer_store_dwordx4", vr(ePK + 4*sub, 4), vL16, SRD_WS, f"s{sHST[2*T+sub]}")))
    return it

def tail_h(a, ac, T):
    nmr, rs, gc1, gc0, ad = 80, 82, 120, 122, 124
    cs, b1, u, t = 48, 96, 112, 116
    a(f"v_add_u32 v{ad}, {ST_MEAN}, v{vTOK}"); a(f"v_add_u32 v{ad+1}, {MISC}, v{vCSA}")
    a.ds(f"ds_read_b32 v{nmr}, v{ad} offset:0", "em"); a.ds(f"ds_read_b32 v{rs}, v{ad} offset:256", "er")
    for g in range(4):
        a.ds(f"ds_read_b128 {vr(cs+4*g,4)}, v{ad+1} offset:{CSF_1 - MISC + T*256 + g*32}", f"ca{g}")
        a.ds(f"ds_read_b128 {vr(b1+4*g,4)}, v{ad+1} offset:{B1F - MISC + T*256 + g*32}", f"b{g}")
    a(f"v_mov_b32 v{gc1}, {f2u(GC1)}"); a(f"v_mov_b32 v{gc0}, {f2u(GC0)}")
    a.wait_lg(["em", "er"])
    a(f"v_mul_f32 v{nmr}, v{nmr}, v{rs}"); a(f"v_sub_f32 v{nmr}, 0, v{nmr}")
    P = lambda r: vr(r, 2)
    for g in range(4):
        a.wait_lg([f"ca{g}", f"b{g}"])
        for p in range(2): a(f"v_pk_fma_f32 {P(b1+4*g+2*p)}, {P(cs+4*g+2*p)}, {P(nmr)}, {P(b1+4*g+2*p)} op_sel_hi:[1,0,1]")
        for p in range(2): a(f"v_pk_fma_f32 {P(u+2*p)}, {P(ac+4*g+2*p)}, {P(rs)}, {P(b1+4*g+2*p)} op_sel_hi:[1,0,1]")
        for p in range(2): a(f"v_pk_mul_f32 {P(t+2*p)}, {P(u+2*p)}, {P(u+2*p)}")
        for p in range(2): a(f"v_pk_fma_f32 {P(t+2*p)}, {P(t+2*p)}, {P(gc1)}, {P(gc0)} op_sel_hi:[1,0,0]")
        for p in range(2): a(f"v_pk_mul_f32 {P(t+2*p)}, {P(t+2*p)}, {P(u+2*p)}")
        for e in range(4): a(f"v_exp_f32 v{t+e}, v{t+e}")
        for p in range(2): a(f"v_pk_add_f32 {P(t+2*p)}, {P(t+2*p)}, 1.0 op_sel_hi:[1,0]")
        for e in range(4): a(f"v_rcp_f32 v{t+e}, v{t+e}")
        for p in range(2): a(f"v_pk_mul_f32 {P(u+2*p)}, {P(u+2*p)}, {P(t+2*p)}")
        a(f"v_cvt_pk_bf16_f32 v{ePK+2*g}, v{u}, v{u+1}"); a(f"v_cvt_pk_bf16_f32 v{ePK+2*g+1}, v{u+2}, v{u+3}")
        if g % 2 == 1:
            sub = g // 2
            a.nop(1)
            dual_store(a, "buffer_store_dwordx4", vr(ePK + 4*sub, 4), vL16, SRD_WS, f"s{sHST[2*T+sub]}")

def gemm192(a, ph, slot, abase, tiles, a_interleave, after_b0=None):
    pre = f"{ph}"
    trA = LdsBase(vTRA)
    vAb = 115
    if a_interleave and abase:
        a(f"v_add_u32 v{vAb}, {abase}, v{vAR}")
    areg = vAb if (a_interleave and abase) else vAR
    def issue_reads(n):
        T, ks = divmod(n, 32)
        u = 16 * T + (ks >> 1)
        r, off = trA.at(slot(u) + (ks & 1) * 2048)
        a.ds(f"ds_read_b128 {vr(vWF + 4 * (n % 4),4)}, v{r} offset:{off}", ("W", n))
        if a_interleave and T == 0:
            a.ds(f"ds_read_b128 {vr(vA+4*ks,4)}, v{areg} offset:{ks*2048}", ("W", n))
    a.bar(f"{pre}_B0")
    if after_b0:
        after_b0()
    tsb = 20 if ph.startswith("p1") else 30
    ts(a, tsb)
    for n in range(D_AHEAD): issue_reads(n)
    pending = []; deferred = []
    for n in range(96):
        T, ks = divmod(n, 32)
        form = tiles[T][0]
        ac = vACC[T % 2]
        buf = vWF + 4 * (n % 4)
        a.wait_lg(("W", n))
        c = "0" if ks == 0 else vr(ac, 16)
        if form == "T": a(f"v_mfma_f32_32x32x16_bf16 {vr(ac,16)}, {vr(buf,4)}, {vr(vA+4*ks,4)}, {c}")
        else:           a(f"v_mfma_f32_32x32x16_bf16 {vr(ac,16)}, {vr(vA+4*ks,4)}, {vr(buf,4)}, {c}")
        nn = n + D_AHEAD
        if nn < 96 and nn % 4 == 0:
            if nn == 88: a.wait_vm("kvK")
            a.bar(f"{pre}_B{nn//4}")
        if nn < 96: issue_reads(nn)
        if T >= 1:
            start = 3
            if ks == start:
                pending = tiles[T-1][1](a, vACC[(T - 1) % 2], T - 1, False)
                if OPT.get("noepi") and ph == "p4": pending = []
                if OPT.get("noepi") == 2 and ph == "p4":
                    pending = [(lambda: a("v_add_f32 v100, v101, v102"))] * 136
            if ks >= start:
                left = 31 - ks + 1
                k = max(4, -(-len(pending) // max(left - 1, 1)))
                for _ in range(min(k, len(pending))):
                    if isinstance(pending[0], VM) and OPT.get("defer", 1):
                        deferred.append(pending.pop(0))
                    else: pending.pop(0)()
                if deferred and (n % 4 == 3):
                    while deferred: deferred.pop(0)()
            if ks == 31:
                while pending: pending.pop(0)()
                while deferred: deferred.pop(0)()
    ts(a, tsb + 3)
    a.nop(12)
    a.bar(f"{pre}_end")
    if ph == "p4" and OPT.get("pktail", 1): tail_h(a, vACC[0], 2)
    else:
        for f in tiles[2][1](a, vACC[0], 2, False): f()
    ts(a, tsb + 4)

def p1_compute(a, v1):
    ph = "p1a" if v1 else "p1b"
    tiles = [("T", lambda a_, ac, T, v: items_kq(a_, ac, T, v, False)),
             ("N", lambda a_, ac, T, v: items_v(a_, ac, T, v)),
             ("T", lambda a_, ac, T, v: items_kq(a_, ac, T, v, True))]
    if v1:
        a(f"v_and_b32 v{E+4}, 31, v{vLANE}"); a(f"s_lshl_b32 s{sT1}, s{sTT}, 5"); a(f"v_add_u32 v{E+5}, s{sT1}, v{E+4}")
        a(f"v_lshlrev_b32 v{E+5}, 10, v{E+5}")
        a(f"v_lshrrev_b32 v{E+6}, 5, v{vLANE}"); a(f"v_lshl_add_u32 v{E+5}, v{E+6}, 3, v{E+5}")
        a(f"v_and_b32 v{E+4}, 15, v{vLANE}"); a(f"v_lshl_add_u32 v{E+5}, v{E+4}, 4, v{E+5}")
        a(f"v_and_b32 v{E+16}, 15, v{vLANE}"); a(f"s_lshl_b32 s{sT1}, s{sJ}, 3"); a(f"s_lshl_b32 s{sT2}, s{sCP}, 2"); a(f"s_add_u32 s{sT1}, s{sT1}, s{sT2}")
        a(f"v_and_b32 v{E+17}, 31, v{vLANE}"); a(f"s_lshl_b32 s{sT2}, s{sTT}, 5"); a(f"v_add_u32 v{E+17}, s{sT2}, v{E+17}"); a(f"v_lshlrev_b32 v{E+17}, 10, v{E+17}")
        a(f"v_lshrrev_b32 v{E+18}, 5, v{vLANE}"); a(f"v_lshl_add_u32 v{E+17}, v{E+18}, 3, v{E+17}")
        for q in range(4):
            a(f"s_add_u32 s{sT2}, s{sT1}, {q}"); a(f"v_xor_b32 v{E+18}, s{sT2}, v{E+16}"); a(f"v_lshl_add_u32 v{E+20+q}, v{E+18}, 4, v{E+17}")
        ts(a, 29)
        a("s_waitcnt lgkmcnt(0)")
        a(f"s_add_u32 s{sEP}, s{sEP}, 16")
        a.bar("prep")
        a("s_waitcnt vmcnt(0)")
        a(f"v_mov_b32 v{E+24}, {CNTW}"); a(f"v_mov_b32 v{E+25}, 1")
        a(f"s_mov_b64 exec, 1")
        a(f"ds_add_u32 v{E+24}, v{E+25}")
        a("s_mov_b64 exec, -1")
        a(f"s_mov_b32 s{sSPIN}, {OPT['spin']}")
        a.label("L_p1a_meet")
        a(f"ds_read_b32 v{E+25}, v{E+24}")
        a("s_waitcnt lgkmcnt(0)")
        a(f"v_cmp_gt_u32 vcc, 4, v{E+25}")
        a(f"s_sub_u32 s{sSPIN}, s{sSPIN}, 1")
        a("s_cbranch_scc1 L_p1a_met")
        a("s_cbranch_vccnz L_p1a_meet")
        a.label("L_p1a_met")
        ts(a, 1)
        after_meet(a)
        for q in range(4): a.ds(f"ds_read_b64 {vr(vACC[0]+2*q,2)}, v{E+20+q}", "xr")
        a.wait_lg0()
        for q in range(4):
            for h in range(2):
                a(f"v_lshlrev_b32 v{vXR+4*q+2*h}, 16, v{vACC[0]+2*q+h}")
                a(f"v_and_b32 v{vXR+4*q+2*h+1}, 0xffff0000, v{vACC[0]+2*q+h}")
        for cc in range(16): a(f"v_xor_b32 v{vACC[1]+cc}, {cc << 4}, v{E+5}")
        sm, sq, one = E, E + 1, E + 2
        a(f"v_mov_b32 v{sm}, 0"); a(f"v_mov_b32 v{sq}, 0"); a(f"v_mov_b32 v{one}, 0x3f803f80")
        for ks in range(32):
            for hh in range(2):
                cch = 2 * ks + hh
                a.ds(f"ds_read_b64 {vr(vA+4*ks+2*hh,2)}, v{vACC[1]+(cch & 15)} offset:{(cch >> 4) << 8}", ("A", cch))
                if cch >= 12: a.wait_lg(("A", cch - 12))
        a.wait_lg0()
        a(f"s_cmp_eq_u32 s{sCP}, 0")
        a("s_cbranch_scc0 L_p1a_odd")
        for par in range(2):
            if par == 1: a.label("L_p1a_odd")
            for ks in range(par, 32, 2):
                for q in range(4):
                    a(f"v_dot2c_f32_bf16 v{sm}, v{vA+4*ks+q}, v{one}")
                    a(f"v_dot2c_f32_bf16 v{sq}, v{vA+4*ks+q}, v{vA+4*ks+q}")
            if par == 0: a("s_branch L_p1a_sdone")
        a.label("L_p1a_sdone")
        a.nop(5)
        a(f"v_permlane32_swap_b32 v{sm}, v{sq}")
        a(f"v_add_f32 v{sm}, v{sm}, v{sq}")
        a(f"v_lshrrev_b32 v{E+3}, 5, v{vLANE}"); a(f"v_lshlrev_b32 v{E+3}, 8, v{E+3}"); a(f"v_add_u32 v{E+3}, v{E+3}, v{vTOK}")
        a(f"v_add_u32 v{E+4}, {STP}, v{E+3}")
        a(f"s_lshl_b32 s{sT1}, s{sCP}, 9"); a(f"v_add_u32 v{E+5}, s{sT1}, v{E+4}")
        a.ds(f"ds_write_b32 v{E+5}, v{sm}", "stp")
        a.wait_lg0()
        def fin():
            a.ds(f"ds_read_b32 v{E+6}, v{E+4} offset:0", "x"); a.ds(f"ds_read_b32 v{E+7}, v{E+4} offset:512", "x")
            a(f"v_subrev_u32 v{E+3}, {STP - ST_MEAN}, v{E+4}")
            a.wait_lg0()
            a(f"v_add_f32 v{E+6}, v{E+6}, v{E+7}")
            stats_finalize(a, E + 6, (E + 8, E + 9, E + 10, E + 11), E + 3, False)
            a.wait_lg0()
            ts(a, 2)
        after_b0 = fin
    if v1: a.bar("prepgo")
    gemm192(a, ph, slot_p1, A_P1, tiles, a_interleave=not v1, after_b0=after_b0 if v1 else None)
    a.wait_all0()
    if OPT.get("vearly", 1):
        target = 8 if v1 else 12
        a(f"v_mov_b32 v{E}, {CNTW}"); a(f"v_mov_b32 v{E+1}, 1")
        a("s_mov_b64 exec, 1")
        a(f"ds_add_u32 v{E}, v{E+1}")
        a("s_mov_b64 exec, -1")
        a(f"s_cmp_lg_u32 s{sW}, 0"); a(f"s_cbranch_scc1 L_{ph}_vm_x")
        a(f"s_mov_b32 s{sSPIN}, {OPT['spin']}")
        a.label(f"L_{ph}_vm")
        a(f"ds_read_b32 v{E+1}, v{E}")
        a("s_waitcnt lgkmcnt(0)")
        a(f"v_cmp_gt_u32 vcc, {target}, v{E+1}")
        a(f"s_sub_u32 s{sSPIN}, s{sSPIN}, 1")
        a(f"s_cbranch_scc1 L_{ph}_vm_y")
        a(f"s_cbranch_vccnz L_{ph}_vm")
        a.label(f"L_{ph}_vm_y")
        kv_flag_store(a, 0, 1, (PV[1], PV[2]), ph + "_vf")
        a.label(f"L_{ph}_vm_x")
        a("s_waitcnt lgkmcnt(0)")
    a.bar(f"{ph}_pubkv")

def p4_compute(a):
    tiles = [("T", lambda a_, ac, T, v: items_h(a_, ac, T, v))] * 3
    gemm192(a, "p4", slot_p4, A_P4, tiles, a_interleave=True)
    a.wait_all0()
    a.bar("p4_pubh")
    publish_local(a, "p4h", 3)
    a.bar("p4_goh")

def gemm64(a, ph, nsteps, slot, abase_sgpr, window, stage_bars, midbar=None):
    trK, trS = LdsBase(vTRK), LdsBase(vTRS)
    aK, aS = vACC
    D = 2
    def issue_w(i):
        base = slot(i)
        buf = vWF + 8 * (i % 3)
        for tr, o in ((trK, 0), (trS, 4)):
            r, off = tr.at(base)
            a.ds(f"ds_read_b128 {vr(buf+o,4)}, v{r} offset:{off}", ("W", i))
    def issue_a(i):
        a(f"s_add_u32 s{sT1}, s{abase_sgpr}, {i*2048}")
        a.vm(f"buffer_load_dwordx4 {vr(vA+4*(i % window),4)}, v{vL16}, s[{SRD_WS}:{SRD_WS+3}], s{sT1} offen sc1", ("A", i))
    for i in range(min(window, nsteps)): issue_a(i)
    a.bar(f"{ph}_a")
    for i in range(D): issue_w(i)
    for i in range(nsteps):
        buf = vWF + 8 * (i % 3)
        af = vA + 4 * (i % window)
        a.wait_vm(("A", i)); a.wait_lg(("W", i))
        a(f"v_mfma_f32_32x32x16_bf16 {vr(aK,16)}, {vr(buf,4)}, {vr(af,4)}, {'0' if i == 0 else vr(aK,16)}")
        nn = i + D
        if stage_bars and nn < nsteps and nn % 4 == 0: a.bar(f"{ph}_B{nn//4}")
        if midbar is not None and i == midbar: a.bar(f"{ph}_b")
        if nn < nsteps: issue_w(nn)
        a(f"v_mfma_f32_32x32x16_bf16 {vr(aS,16)}, {vr(buf+4,4)}, {vr(af,4)}, {'0' if i == 0 else vr(aS,16)}")
        if i + window < nsteps: issue_a(i + window)

def red_epilogue(a, ph, rb, add_b2, final, pre_bar):
    aK, aS = vACC
    rv = E
    ad = 96
    if pre_bar: a.bar(f"{ph}_red1")
    a(f"s_lshl_b32 s{sT1}, s{sW}, 12"); a(f"s_add_u32 s{sT1}, s{sT1}, {rb}")
    a(f"v_add_u32 v{ad}, s{sT1}, v{vL16}")
    a(f"s_xor_b32 s{sT2}, s{sW}, 1"); a(f"s_lshl_b32 s{sT2}, s{sT2}, 12"); a(f"s_add_u32 s{sT2}, s{sT2}, {rb}")
    a(f"v_add_u32 v{ad+1}, s{sT2}, v{vL16}")
    if add_b2:
        a(f"v_add_u32 v{ad+2}, {MISC}, v{vCSA}")
        for g in range(4): a.ds(f"ds_read_b128 {vr(100+4*g,4)}, v{ad+2} offset:{B2F - MISC + g*32}", "b2")
    a.nop(8)
    for q in range(4): a.ds(f"ds_write_b128 v{ad}, {vr(aS+4*q,4)} offset:{q*1024}", "rw")
    a.wait_lg0()
    a.bar(f"{ph}_red2")
    for q in range(4): a.ds(f"ds_read_b128 {vr(rv+4*q,4)}, v{ad+1} offset:{q*1024}", "rr")
    for p in range(8): a(f"v_pk_add_f32 {vr(vXR+2*p,2)}, {vr(vXR+2*p,2)}, {vr(aK+2*p,2)}")
    if add_b2:
        for p in range(8): a(f"v_pk_add_f32 {vr(vXR+2*p,2)}, {vr(vXR+2*p,2)}, {vr(100+2*p,2)}")
    a.wait_lg0()
    for p in range(8): a(f"v_pk_add_f32 {vr(vXR+2*p,2)}, {vr(vXR+2*p,2)}, {vr(rv+2*p,2)}")
    pk = 116
    for p in range(8): a(f"v_cvt_pk_bf16_f32 v{pk+p}, v{vXR+2*p}, v{vXR+2*p+1}")
    if final:
        a.nop(2)
        for q in (0, 4):
            a(f"v_permlane32_swap_b32 v{pk+q}, v{pk+q+2}")
            a(f"v_permlane32_swap_b32 v{pk+q+1}, v{pk+q+3}")
        a(f"v_and_b32 v{ad}, 31, v{vLANE}"); a(f"v_lshlrev_b32 v{ad}, 10, v{ad}")
        a(f"v_lshrrev_b32 v{ad+1}, 5, v{vLANE}"); a(f"v_lshl_add_u32 v{ad}, v{ad+1}, 4, v{ad}")
        a.vm(f"buffer_store_dwordx4 {vr(pk,4)}, v{ad}, s[{SRD_OUT}:{SRD_OUT+3}], s{sOUTb} offen nt", "out")
        a.vm(f"buffer_store_dwordx4 {vr(pk+4,4)}, v{ad}, s[{SRD_OUT}:{SRD_OUT+3}], s{sOUTb} offen offset:32 nt", "out")
        return
    dual_store(a, "buffer_store_dwordx4", vr(pk, 4), vL16, SRD_WS, f"s{sXA}")
    dual_store(a, "buffer_store_dwordx4", vr(pk+4, 4), vL16, SRD_WS, f"s{sXA}", "offset:1024")
    s0, q0 = 100, 102
    a(f"v_pk_add_f32 {vr(s0,2)}, {vr(vXR,2)}, {vr(vXR+2,2)}")
    a(f"v_pk_mul_f32 {vr(q0,2)}, {vr(vXR,2)}, {vr(vXR,2)}")
    for p in range(1, 8):
        if p >= 2: a(f"v_pk_add_f32 {vr(s0,2)}, {vr(s0,2)}, {vr(vXR+2*p,2)}")
        a(f"v_pk_fma_f32 {vr(q0,2)}, {vr(vXR+2*p,2)}, {vr(vXR+2*p,2)}, {vr(q0,2)}")
    a(f"v_add_f32 v{s0}, v{s0}, v{s0+1}"); a(f"v_add_f32 v{q0}, v{q0}, v{q0+1}")
    a(f"s_lshl_b32 s{sT1}, s{sJ}, 1"); a(f"s_add_u32 s{sT1}, s{sT1}, s{sCP}")
    a(f"s_lshr_b32 s{sT2}, s{sT1}, 2"); a(f"s_lshl_b32 s{sT2}, s{sT2}, 10"); a(f"s_and_b32 s{sT1}, s{sT1}, 3"); a(f"s_lshl_b32 s{sT1}, s{sT1}, 2")
    a(f"s_add_u32 s{sT1}, s{sT1}, s{sT2}"); a(f"s_lshl_b32 s{sT2}, s{sTT}, 12"); a(f"s_add_u32 s{sT1}, s{sT1}, s{sT2}"); a(f"s_add_u32 s{sT1}, s{sT1}, s{sSTATS}")
    a(f"v_permlane32_swap_b32 v{s0}, v{q0}")
    a(f"v_add_f32 v{s0}, v{s0}, v{q0}")
    a.nop(1)
    dual_store(a, "buffer_store_dword", f"v{s0}", vL16, SRD_WS, f"s{sT1}")

def p3_compute(a):
    a(f"s_lshl_b32 s{sT2}, s{sTT}, 15"); a(f"s_add_u32 s{sT2}, s{sT2}, s{sHO}"); a(f"s_lshl_b32 s{sT3}, s{sCP}, 10"); a(f"s_add_u32 s{sT2}, s{sT2}, s{sT3}")
    gemm64(a, "p3", 16, lambda m: WOB + 4 * K * m, sT2, 16, False, midbar=OPT.get("p3mid", 10))
    ts(a, 9)
    red_epilogue(a, "p3", RB_P3, False, False, True)
    a.wait_all0()
    a.bar("p3_pub")
    publish_local(a, "x1", 2)
    a.bar("p3_go")

def p5_compute_main(a):
    a(f"s_mul_i32 s{sT2}, s{sTT}, {H_TT}"); a(f"s_add_u32 s{sT2}, s{sT2}, s{sHO}"); a(f"s_lshl_b32 s{sT3}, s{sCP}, 10"); a(f"s_add_u32 s{sT2}, s{sT2}, s{sT3}")
    gemm64(a, "p5", 43, slot_p5, sT2, OPT.get("p5w", 12), True)

aQ, aKa, aKb = 32, 36, 40
aS = (48, 64)
aO, aP = 80, 96
aV = (104, 112)
aM, aT, aT2 = 120, 121, 122
aB8, aB0, aCm, aC8, aC0 = 128, 144, 160, 176, 192
aKA, aVA, aQA, aOA = 208, 209, 210, 211

def attention_setup(a):
    a(f"s_and_b32 s{sT1}, s{sW}, 3"); a(f"s_lshr_b32 s{sT2}, s{sW}, 2")
    a(f"s_lshl_b32 s{sT3}, s{sT1}, 10"); a(f"s_lshl_b32 s{sT0}, s{sT2}, 12"); a(f"s_add_u32 s{sT3}, s{sT3}, s{sT0}")
    a(f"v_add_u32 v{aKA}, s{sT3}, v{vL16}")
    a(f"v_lshrrev_b32 v{aT}, 5, v{vLANE}"); a(f"v_lshlrev_b32 v{aT}, 8, v{aT}")
    a(f"v_and_b32 v{aT2}, 15, v{vLANE}"); a(f"v_lshl_add_u32 v{aT}, v{aT2}, 4, v{aT}")
    a(f"s_add_u32 s{sT3}, s{sT3}, {VB}"); a(f"v_add_u32 v{aVA}, s{sT3}, v{aT}")
    a(f"s_lshl_b32 s{sT3}, s{sT1}, 11"); a(f"s_lshl_b32 s{sT0}, s{sT2}, 10"); a(f"s_add_u32 s{sT3}, s{sT3}, s{sT0}"); a(f"s_add_u32 s{sT3}, s{sT3}, {QB}")
    a(f"v_add_u32 v{aQA}, s{sT3}, v{vL16}")
    a(f"s_lshl_b32 s{sT3}, s{sG}, 1"); a(f"s_add_u32 s{sT3}, s{sT3}, s{sT2}")
    a(f"s_sub_i32 s{sTMIN}, 8, s{sT3}"); a(f"s_max_i32 s{sTMIN}, s{sTMIN}, 0")
    a(f"s_mul_i32 s{sO}, s{sG}, {HO_STRIDE}"); a(f"s_add_u32 s{sO}, s{sO}, {WS_HO}")
    a(f"s_lshl_b32 s{sT3}, s{sT2}, 15"); a(f"s_add_u32 s{sO}, s{sO}, s{sT3}")
    a(f"s_lshl_b32 s{sT3}, s{sJ}, 2"); a(f"s_add_u32 s{sT3}, s{sT3}, s{sT1}"); a(f"s_lshl_b32 s{sT3}, s{sT3}, 10"); a(f"s_add_u32 s{sO}, s{sO}, s{sT3}")
    a(f"v_and_b32 v{aT}, 31, v{vLANE}"); a(f"v_lshrrev_b32 v{aT2}, 5, v{vLANE}"); a(f"v_lshlrev_b32 v{aT2}, 2, v{aT2}")
    a(f"v_sub_u32 v{aT}, v{aT}, v{aT2}")
    a(f"v_mov_b32 v{aM}, {NEGBIG}"); a(f"v_mov_b32 v{aT2}, 0")
    for r in range(16):
        m0 = (r & 3) + 8 * (r >> 2)
        pair = 88 + 2 * (r % 2)
        a(f"v_cmp_le_i32 s[{pair}:{pair+1}], {m0}, v{aT}")
        if r >= 1:
            pp = 88 + 2 * ((r - 1) % 2)
            a(f"v_cndmask_b32 v{aB8+r-1}, v{aM}, v{aT2}, s[{pp}:{pp+1}]") if False else None
        a.nop(2)
        a(f"v_cndmask_b32 v{aB8+r}, v{aM}, v{aT2}, s[{pair}:{pair+1}]")
        a(f"v_cndmask_b32 v{aB0+r}, v{aT2}, v{aM}, s[{pair}:{pair+1}]")
    for q in range(16): a(f"v_mov_b32 v{aV[0]+q}, 0x3f803f80")

def warm_exchange(a):
    a(f"s_cmp_eq_u32 s{sI}, 3"); a("s_cbranch_scc1 L_we_x")
    a(f"s_mul_i32 s{sT1}, s{sG}, {HO_STRIDE}"); a(f"s_mul_i32 s{sT2}, s{sJ}, 22528"); a(f"s_add_u32 s{sT1}, s{sT1}, s{sT2}")
    a(f"s_lshl_b32 s{sT2}, s{sI}, 13"); a(f"s_add_u32 s{sT1}, s{sT1}, s{sT2}")
    touch(a, SRD_WS, 10, sT1, WS_HO)
    a("s_branch L_we_e")
    a.label("L_we_x")
    a(f"s_lshl_b32 s{sT2}, s{sG}, 16"); a(f"s_lshl_b32 s{sT0}, s{sJ}, 13"); a(f"s_add_u32 s{sT2}, s{sT2}, s{sT0}")
    touch(a, SRD_WS, 10, sT2, WS_XA)
    touch(a, SRD_WS, 10, sSTATS, 0)
    a.label("L_we_e")
def warm_w1(a):
    a(f"s_cmp_eq_u32 s{sI}, 3"); a("s_cbranch_scc1 L_ww_e")
    a(f"s_mul_i32 s{sT1}, s{sJ}, {J_WQ}"); a(f"s_and_b32 s{sT2}, s{sG}, 3"); a(f"s_mul_i32 s{sT2}, s{sT2}, 22528"); a(f"s_add_u32 s{sT1}, s{sT1}, s{sT2}")
    a(f"s_lshl_b32 s{sT2}, s{sI}, 13"); a(f"s_add_u32 s{sT1}, s{sT1}, s{sT2}")
    touch(a, SRD_WS, 10, sT1, WS_W1P)
    a.label("L_ww_e")

def _p2c2(a):
    a(f"s_cmp_lt_u32 s{sW}, 4"); a("s_cbranch_scc1 L_p2c2_skip")
    a(f"s_cmp_lg_u32 s{sPAIR}, 0"); a("s_cbranch_scc1 L_p2c2_skip")
    prep2_check_addr(a, 230)
    a(f"buffer_load_dwordx3 v[232:234], v230, s[{SRD_WS}:{SRD_WS+3}], 0 offen sc1")
    a.label("L_p2c2_skip")

def attention(a):
    S3 = (aS[0], aS[1], aO)
    def rdK(t):
        buf = aKa if t % 2 == 0 else aKb
        a.ds(f"ds_read_b128 {vr(buf,4)}, v{aKA} offset:{KB + t*4096}", ("K", t))
    def Kf(t): return vr(aKa if t % 2 == 0 else aKb, 4)
    def s1(t):
        a.wait_lg(("K", t))
        c = vr(aB8, 16) if t == 8 else (vr(aB0, 16) if t == 0 else "0")
        a(f"v_mfma_f32_32x32x16_bf16 {vr(S3[t % 3],16)}, {Kf(t)}, {vr(aQ,4)}, {c}")
        if t >= 2: rdK(t - 2)
    a.ds(f"ds_read_b128 {vr(aQ,4)}, v{aQA}", "Q")
    rdK(8); rdK(7)
    a.wait_lg("Q")
    s1(8); s1(7)
    a.nop(6)
    for t in range(8, -1, -1):
        if t >= 2: s1(t - 2)
        elif t == 1: a.nop(2)
        else: a.nop(3)
        s = S3[t % 3]
        if t == 8:
            a.nop(2)
            a(f"v_max3_f32 v{aM}, v{s}, v{s+1}, v{s+2}")
            a(f"v_max_f32 v{aM}, v{aM}, v{s+3}")
            for p in range(2, 8): a(f"v_max3_f32 v{aM}, v{aM}, v{s+2*p}, v{s+2*p+1}")
        else:
            for p in range(8): a(f"v_max3_f32 v{aM}, v{aM}, v{s+2*p}, v{s+2*p+1}")
        if t >= 1:
            a(f"s_cmp_eq_u32 s{sTMIN}, {t}")
            a("s_cbranch_scc1 L_at_p1done")
    a.label("L_at_p1done")
    a.wait_lg0()
    if OPT.get("tsa"): ts(a, 26)
    a(f"s_cmp_lt_u32 s{sW}, 4"); a("s_cbranch_scc1 L_at_vw0")
    nb = 11 if OPT.get("w2reg", 0) else 0
    if OPT.get("ww1", 1): a(f"s_waitcnt vmcnt({2 + nb})")
    else:
        a(f"s_cmp_eq_u32 s{sW}, 7"); a("s_cbranch_scc1 L_at_vw5")
        a(f"s_waitcnt vmcnt({1 + nb})"); a("s_branch L_at_vw1")
        a.label("L_at_vw5")
        a(f"s_waitcnt vmcnt({2 + nb})")
    a("s_branch L_at_vw1")
    a.label("L_at_vw0")
    a("s_waitcnt vmcnt(0)")
    a.label("L_at_vw1")
    a("s_barrier")
    if OPT.get("tsa"): ts(a, 27)
    a(f"v_mov_b32 v{aT}, v{aM}")
    rdK(8); rdK(7)
    a(f"v_permlane32_swap_b32 v{aM}, v{aT}")
    a(f"v_max_f32 v{aM}, v{aM}, v{aT}")
    a(f"v_sub_f32 v{aM}, 0, v{aM}")
    a.nop(8)
    for p in range(8): a(f"v_pk_add_f32 {vr(aC8+2*p,2)}, {vr(aB8+2*p,2)}, {vr(aM,2)} op_sel_hi:[1,0]")
    a(f"v_mov_b32 v{aT}, v{aM}")
    for p in range(8): a(f"v_pk_add_f32 {vr(aC0+2*p,2)}, {vr(aB0+2*p,2)}, {vr(aM,2)} op_sel_hi:[1,0]")
    for r in range(0, 16, 2): a(f"v_pk_mul_f32 {vr(aCm+r,2)}, {vr(aM,2)}, 1.0 op_sel_hi:[1,0]")
    def S(t): return aS[t % 2]
    def rdV(t):
        vb = aV[t % 2]
        a(f"s_mov_b64 exec, s[{sVMASK}:{sVMASK+1}]")
        a.ds(f"ds_read_b128 {vr(vb,4)}, v{aVA} offset:{t*4096}", ("V", t))
        a.ds(f"ds_read_b128 {vr(vb+4,4)}, v{aVA} offset:{t*4096 + 512}", ("V", t))
        a("s_mov_b64 exec, -1")
    def s2(t):
        a.wait_lg(("K", t))
        c = vr(aC8, 16) if t == 8 else (vr(aC0, 16) if t == 0 else vr(aCm, 16))
        a(f"v_mfma_f32_32x32x16_bf16 {vr(S(t),16)}, {Kf(t)}, {vr(aQ,4)}, {c}")
    if OPT.get("tsa"): ts(a, 28)
    rdV(8)
    s2(8)
    rdK(6)
    a.nop(11)
    for t in range(8, -1, -1):
        s = S(t); vb = aV[t % 2]
        for r in range(0, 4): a(f"v_exp_f32 v{s+r}, v{s+r}")
        if t >= 1:
            s2(t - 1)
            if t >= 3: rdK(t - 3)
        for r in range(4, 8): a(f"v_exp_f32 v{s+r}, v{s+r}")
        for p in range(4): a(f"v_cvt_pk_bf16_f32 v{aP+p}, v{s+2*p}, v{s+2*p+1}")
        a.wait_lg(("V", t))
        a(f"v_exp_f32 v{s+8}, v{s+8}")
        a(f"v_mfma_f32_32x32x16_bf16 {vr(aO,16)}, {vr(vb,4)}, {vr(aP,4)}, {'0' if t == 8 else vr(aO,16)}")
        for r in range(9, 16): a(f"v_exp_f32 v{s+r}, v{s+r}")
        if t >= 1: rdV(t - 1)
        for p in range(4, 8): a(f"v_cvt_pk_bf16_f32 v{aP+p}, v{s+2*p}, v{s+2*p+1}")
        if t >= 1: a(f"s_cmp_eq_u32 s{sTMIN}, {t}")
        a.nop(1 if t >= 1 else 2)
        a(f"v_mfma_f32_32x32x16_bf16 {vr(aO,16)}, {vr(vb+4,4)}, {vr(aP+4,4)}, {vr(aO,16)}")
        if t >= 1: a("s_cbranch_scc1 L_at_p2done")
    a.label("L_at_p2done")
    if OPT.get("tsa"): ts(a, 7)
    a.wait_lg0()
    a.nop(12)
    a(f"v_rcp_f32 v{aT}, v{aO+8}")
    a.nop(1)
    for r in range(8): a(f"v_mul_f32 v{aO+r}, v{aO+r}, v{aT}")
    for p in range(4): a(f"v_cvt_pk_bf16_f32 v{aP+p}, v{aO+2*p}, v{aO+2*p+1}")
    a.nop(1)
    dual_store(a, "buffer_store_dwordx4", vr(aP, 4), vL16, SRD_WS, f"s{sO}")
    a.wait_all0()

def src_patterns(a, regs, t0, t1, t2):
    a(f"v_lshrrev_b32 v{t0}, 3, v{vLANE}")
    a(f"v_bfe_u32 v{t1}, v{vLANE}, 4, 2")
    a(f"v_and_b32 v{t2}, 1, v{t1}"); a(f"v_lshlrev_b32 v{t2}, 1, v{t2}"); a(f"v_lshrrev_b32 v{t1}, 1, v{t1}"); a(f"v_or_b32 v{t1}, v{t1}, v{t2}")
    a(f"v_bfe_u32 v{t2}, v{vLANE}, 1, 2"); a(f"v_xor_b32 v{t1}, v{t1}, v{t2}"); a(f"v_lshlrev_b32 v{t1}, 5, v{t1}")
    a(f"v_and_b32 v{t2}, 1, v{vLANE}"); a(f"v_lshl_add_u32 v{t1}, v{t2}, 4, v{t1}")
    for reg, stride in regs:
        a(f"s_mov_b32 s{sT0}, {stride}"); a(f"v_mul_lo_u32 v{t2}, v{t0}, s{sT0}"); a(f"v_add_u32 v{reg}, v{t2}, v{t1}")

pT0, pT1 = 40, 41
pF = 44
def prep_setup(a):
    a(f"s_mov_b32 s{sT2}, 0"); tr_addr(a, pT0, sT2, tmp=(60, 61, 62, 63))
    a(f"s_mov_b32 s{sT2}, 1"); tr_addr(a, pT1, sT2, tmp=(60, 61, 62, 63))
    a(f"s_lshl_b32 s{sT2}, s{sW}, 12"); a(f"s_add_u32 s{sT2}, s{sT2}, {PREP}")
    a(f"v_add_u32 v{pT0}, s{sT2}, v{pT0}"); a(f"v_add_u32 v{pT1}, s{sT2}, v{pT1}")
def prep_fetch(a, srdn, vpat, stride, ssrc, slot, tag):
    for o in range(2):
        a(f"s_lshl_b32 s{sT3}, s{sW}, 12"); a(f"s_add_u32 m0, s{sT3}, {PREP + slot*2048 + o*1024}")
        a(f"s_add_u32 s{sT0}, s{ssrc}, {o*8*stride}")
        a.vm(f"buffer_load_dwordx4 v{vpat}, s[{srdn}:{srdn+3}], s{sT0} offen lds", tag)
def prep_read(a, f, slot, tag):
    a.wait_vm(tag)
    for ct, ad in ((0, pT0), (1, pT1)):
        for h in range(2):
            a.ds(f"ds_read_b64_tr_b16 {vr(f+4*ct+2*h,2)}, v{ad} offset:{slot*2048 + h*1024}", "pf")
    a.wait_lg0()
def prep_store(a, f, sdst):
    for ct in range(2):
        a.vm(f"buffer_store_dwordx4 {vr(f+4*ct,4)}, v{vL16}, s[{SRD_WS}:{SRD_WS+3}], s{sdst} offen offset:{ct*1024} sc1", "pst")
def prep_emit(a, sdst, slot, tag):
    f = pF + 8 * slot
    prep_read(a, f, slot, tag)
    prep_store(a, f, sdst)
def w2_item(a, ssrc, sdst, ks_sgpr):
    a(f"s_lshl_b32 s{ssrc}, s{ks_sgpr}, 14"); a(f"s_lshl_b32 s{sT0}, s{sJ}, 7"); a(f"s_add_u32 s{ssrc}, s{ssrc}, s{sT0}")
    a(f"s_lshl_b32 s{sdst}, s{ks_sgpr}, 11"); a(f"s_mul_i32 s{sT0}, s{sJ}, {J_W2}"); a(f"s_add_u32 s{sdst}, s{sdst}, s{sT0}"); a(f"s_add_u32 s{sdst}, s{sdst}, {WS_W2P}")

def loader_prep(a):
    pA, pB = 88, 89
    a(f"s_cmp_eq_u32 s{sW}, 7"); a("s_cbranch_scc1 L_prep7")
    src_patterns(a, ((vPQ, 3072),), 16, 17, 18)
    a(f"s_sub_u32 s{sT1}, s{sW}, 4")
    a(f"s_add_u32 s{sT2}, s{sT1}, 1"); a(f"s_cmp_eq_u32 s{sT1}, 2"); a(f"s_cselect_b32 s{sT2}, 0, s{sT2}")
    a(f"s_mul_i32 s{pA}, s{sG}, {16*3072}"); a(f"s_lshl_b32 s{sT2}, s{sT2}, 10"); a(f"s_add_u32 s{pA}, s{pA}, s{sT2}")
    a(f"s_lshl_b32 s{sT2}, s{sJ}, 7"); a(f"s_add_u32 s{pA}, s{pA}, s{sT2}")
    prep_fetch(a, SRD_WQ, vPQ, 3072, pA, 0, "p0")
    a(f"s_mul_i32 s{pB}, s{sJ}, {J_WQ}"); a(f"s_lshl_b32 s{sT2}, s{sG}, 11"); a(f"s_add_u32 s{pB}, s{pB}, s{sT2}")
    a(f"s_lshl_b32 s{sT2}, s{sT1}, 16"); a(f"s_add_u32 s{pB}, s{pB}, s{sT2}"); a(f"s_add_u32 s{pB}, s{pB}, {WS_WQP}")
    a("s_branch L_prep_go")
    a.label("L_prep7")
    a.vmq = []
    src_patterns(a, ((vPO, 1024),), 16, 17, 18)
    a(f"s_lshl_b32 s{pA}, s{sG}, 14"); a(f"s_lshl_b32 s{sT2}, s{sJ}, 7"); a(f"s_add_u32 s{pA}, s{pA}, s{sT2}")
    prep_fetch(a, SRD_WO, vPO, 1024, pA, 0, "p0")
    a(f"s_lshl_b32 s{pB}, s{sG}, 11"); a(f"s_lshl_b32 s{sT2}, s{sJ}, 16"); a(f"s_add_u32 s{pB}, s{pB}, s{sT2}"); a(f"s_add_u32 s{pB}, s{pB}, {WS_WOP}")
    a.label("L_prep_go")
    prep_setup(a)
    if OPT["ts"]:
        a.wait_vm("p0"); ts(a, 1)
    prep_emit(a, pB, 0, "p0")
    ts(a, 2)
    a.vmq = []

qF = 212
sQ1, sQ2 = 92, 93
def prep2_fetch(a):
    pA, pC = 88, 89
    a(f"s_cmp_eq_u32 s{sW}, 4"); a("s_cbranch_scc1 L_p2f_skip")
    src_patterns(a, ((vP1, 2752), (vPO, 1024)), 16, 17, 18)
    a(f"s_sub_u32 s{sT1}, s{sW}, 5")
    a(f"s_mul_i32 s{pA}, s{sG}, {16*2752}"); a(f"s_lshl_b32 s{sT2}, s98, 5"); a(f"s_add_u32 s{pA}, s{pA}, s{sT2}")
    a(f"s_lshl_b32 s{sT2}, s{sT1}, 7"); a(f"s_add_u32 s{pA}, s{pA}, s{sT2}")
    a(f"s_mul_i32 s{sQ1}, s{sJ}, {J_WQ}"); a(f"s_lshl_b32 s{sT2}, s{sG}, 11"); a(f"s_add_u32 s{sQ1}, s{sQ1}, s{sT2}")
    a(f"s_lshl_b32 s{sT2}, s{sT1}, 16"); a(f"s_add_u32 s{sQ1}, s{sQ1}, s{sT2}"); a(f"s_add_u32 s{sQ1}, s{sQ1}, {WS_W1P}")
    prep_fetch(a, SRD_W1, vP1, 2752, pA, 0, "q0")
    a(f"s_lshl_b32 s{sT1}, s{sT1}, 5"); a(f"s_add_u32 s{sT1}, s{sT1}, s{sG}")
    w2_item(a, pC, sQ2, sT1)
    a(f"s_cmp_lt_u32 s{sT1}, 86"); a(f"s_cselect_b32 s{sQ2}, s{sQ2}, 0x7ffff000")
    prep_fetch(a, SRD_W2, vPO, 1024, pC, 1, "q1")
    a.label("L_p2f_skip")
    a.vmq = []
def prep2_emit(a):
    a(f"s_cmp_eq_u32 s{sW}, 4"); a("s_cbranch_scc1 L_p2r_skip")
    a("s_waitcnt vmcnt(0)")
    for slot in range(2):
        for ct, ad in ((0, pT0), (1, pT1)):
            for h in range(2):
                a(f"ds_read_b64_tr_b16 {vr(qF+8*slot+4*ct+2*h,2)}, v{ad} offset:{slot*2048 + h*1024}")
    a("s_waitcnt lgkmcnt(0)")
    for q, sd in ((0, sQ1), (1, sQ2)):
        for ct in range(2):
            a(f"buffer_store_dwordx4 {vr(qF+8*q+4*ct,4)}, v{vL16}, s[{SRD_WS}:{SRD_WS+3}], s{sd} offen offset:{ct*1024} sc1")
    a.label("L_p2r_skip")

def loader_prologue(a):
    t0, t1, t2 = 16, 17, 18
    a(f"s_mul_i32 s{sT0}, s{sJ}, {J_WQ}"); a(f"s_add_u32 s{sT0}, s{sT0}, s{sI1K}")
    a(f"s_add_u32 s{sWQb}, s{sT0}, {WS_WQP}"); a(f"s_add_u32 s{sW1b}, s{sT0}, {WS_W1P}")
    a(f"s_lshl_b32 s{sWOb}, s{sJ}, 16"); a(f"s_add_u32 s{sWOb}, s{sWOb}, s{sI1K}"); a(f"s_add_u32 s{sWOb}, s{sWOb}, {WS_WOP}")
    a(f"s_mul_i32 s{sW2b}, s{sJ}, {J_W2}"); a(f"s_add_u32 s{sW2b}, s{sW2b}, s{sI1K}"); a(f"s_add_u32 s{sW2b}, s{sW2b}, {WS_W2P}")
    a(f"v_add_u32 v{vLI[0]}, s{sI1K}, v{vL16}"); three_bases(a, vLI)
    a(f"s_and_b32 s{sT0}, s{sI}, 1"); a(f"s_lshr_b32 s{sT1}, s{sI}, 1")
    a(f"s_lshl_b32 s{sXA}, s{sG}, 16"); a(f"s_lshl_b32 s{sT2}, s{sT0}, 15"); a(f"s_add_u32 s{sXA}, s{sXA}, s{sT2}")
    a(f"s_lshl_b32 s{sT2}, s{sT1}, 10"); a(f"s_add_u32 s{sXA}, s{sXA}, s{sT2}"); a(f"s_add_u32 s{sXA}, s{sXA}, {WS_XA}")
    a(f"s_mov_b32 s{sTT}, s{sT0}")
    a(f"s_sub_i32 s{sKVr}, s{sG}, 4"); a(f"s_lshl_b32 s{sKVr}, s{sKVr}, 3"); a(f"s_add_i32 s{sKVr}, s{sKVr}, s{sJ}"); a(f"s_lshl_b32 s{sKVr}, s{sKVr}, 14")
    a(f"s_add_i32 s{sKVr}, s{sKVr}, s{sI1K}"); a(f"s_add_i32 s{sKVr}, s{sKVr}, {WS_KV}")
    a(f"s_lshl_b32 s{sT0}, s{sG}, 7")
    a(f"v_and_b32 v{t0}, 7, v{vLANE}"); a(f"v_lshlrev_b32 v{t0}, 2, v{t0}"); a(f"v_add_u32 v{vPOLL}, s{sT0}, v{t0}")
    a(f"s_lshl_b32 s{sT1}, s{sJ}, 2"); a(f"s_add_u32 s{sT0}, s{sT0}, s{sT1}"); a(f"v_mov_b32 v{vFLAG}, s{sT0}")
    a(f"v_lshlrev_b32 v{vSTA}, 6, v{vLANE}")
    a(f"v_and_b32 v{t0}, 31, v{vLANE}"); a(f"v_lshlrev_b32 v{t0}, 2, v{t0}"); a(f"v_lshrrev_b32 v{t1}, 5, v{vLANE}"); a(f"v_lshl_add_u32 v{t0}, v{t1}, 8, v{t0}")
    a(f"s_lshl_b32 s{sT0}, s{sTT}, 7"); a(f"s_add_u32 s{sT0}, s{sT0}, {ST_MEAN}"); a(f"v_add_u32 v{vSTW}, s{sT0}, v{t0}")
    a(f"s_mov_b32 s{sC1}, {f2u(1.0/512.0)}"); a(f"s_mov_b32 s{sC2}, {f2u(EPS)}")

def wq_unit(a, u): dma(a, SRD_WS, vL16, sWQb, u * 4096, slot_p1(u), ("W", u), "sc1")
def w1_unit(a, u): dma(a, SRD_WS, vL16, sW1b, u * 4096, slot_p4(u), ("W", u), "sc1")
def wo_unit(a, m): dma(a, SRD_WS, vL16, sWOb, m * 4096, WOB + 4 * K * m, ("WO", m), "sc1")
def w2_unit(a, m): dma(a, SRD_WS, vL16, sW2b, m * 4096, slot_p5(m), ("W2", m), "sc1")
def w2_from_regs(a, m):
    li = LdsBase(vLI)
    r, off = li.at(slot_p5(m))
    a.ds(f"ds_write_b128 v{r}, {vr(212 + 4*(m - 32), 4)} offset:{off}", ("w2r", m))
def a_pair(a, m, abase):
    dma(a, SRD_WS, vL16, sXA, m * 2048, abase + m * 4096, ("A", m), "sc1")

PV = (80, 81, 82, 83, 84, 85)
def poll_loop(a, name, vaddr, vdat):
    lab = f"L_{name}"
    a(f"s_mov_b32 s{sSPIN}, {OPT['spin']}")
    a.label(lab)
    a(f"buffer_load_dword v{vdat}, v{vaddr}, s[{SRD_WS}:{SRD_WS+3}], 0 offen sc1")
    a("s_waitcnt vmcnt(0)")
    a(f"v_subrev_u32 v{vdat}, s{sVAL}, v{vdat}")
    a(f"v_cmp_le_u32 vcc, 8, v{vdat}")
    a(f"s_sub_u32 s{sSPIN}, s{sSPIN}, 1")
    a(f"s_cbranch_scc1 {lab}_x")
    a(f"s_cbranch_vccnz {lab}")
    a.label(f"{lab}_x")
def poll(a, name, vaddr): poll_loop(a, name, vaddr, PV[0])

def publish_local(a, name, ev):
    vf, vp, vv = PV[1], PV[2], PV[3]
    a(f"s_cmp_lg_u32 s{sW}, 0")
    a(f"s_cbranch_scc1 L_{name}_skip")
    a(f"s_lshl_b32 s{sT1}, s{sG}, 7"); a(f"s_lshl_b32 s{sT2}, s{sJ}, 2"); a(f"s_add_u32 s{sT2}, s{sT2}, s{sT1}")
    a(f"s_lshl_b32 s{sVAL}, s{sPAIR}, 2"); a(f"s_add_u32 s{sVAL}, s{sVAL}, {ev}"); a(f"s_add_u32 s{sVAL}, s{sVAL}, s{sEP}")
    a(f"v_mov_b32 v{vf}, s{sT2}"); a(f"v_mov_b32 v{vv}, s{sVAL}")
    a(f"s_mov_b64 s[{sEXEC}:{sEXEC+1}], exec"); a("s_mov_b64 exec, 1")
    a(f"s_cmp_eq_u32 s{sFAST}, 0")
    a(f"s_cbranch_scc1 L_{name}_sl")
    a(f"buffer_store_dword v{vv}, v{vf}, s[{SRD_WS}:{SRD_WS+3}], 0 offen")
    a(f"s_branch L_{name}_st")
    a.label(f"L_{name}_sl")
    a(f"buffer_store_dword v{vv}, v{vf}, s[{SRD_WS}:{SRD_WS+3}], 0 offen sc1")
    a.label(f"L_{name}_st")
    a(f"s_mov_b64 exec, s[{sEXEC}:{sEXEC+1}]")
    a(f"v_and_b32 v{vp}, 7, v{vLANE}"); a(f"v_lshlrev_b32 v{vp}, 2, v{vp}"); a(f"v_add_u32 v{vp}, s{sT1}, v{vp}")
    poll(a, name + "_p", vp)
    a.label(f"L_{name}_skip")

KVP = (20, 21, 22, 23, 24)
def kv_flag_store(a, wave, which, regs, name):
    v1_, v2_ = regs
    a(f"s_cmp_lg_u32 s{sW}, {wave}")
    a(f"s_cbranch_scc1 L_{name}_skip")
    a(f"s_lshl_b32 s{sT1}, s{sG}, 3"); a(f"s_add_u32 s{sT1}, s{sT1}, s{sJ}"); a(f"s_lshl_b32 s{sT1}, s{sT1}, 7"); a(f"s_add_u32 s{sT1}, s{sT1}, {WS_FLAGR + 4*which}")
    a(f"s_add_u32 s{sVAL}, s{sPAIRN}, 1"); a(f"s_add_u32 s{sVAL}, s{sVAL}, s{sEP}")
    a(f"v_mov_b32 v{v1_}, s{sVAL}"); a(f"v_mov_b32 v{v2_}, s{sT1}")
    a(f"s_mov_b64 s[{sEXEC}:{sEXEC+1}], exec"); a("s_mov_b64 exec, 1")
    a(f"buffer_store_dword v{v1_}, v{v2_}, s[{SRD_WS}:{SRD_WS+3}], 0 offen sc1")
    a(f"s_mov_b64 exec, s[{sEXEC}:{sEXEC+1}]")
    a.label(f"L_{name}_skip")

def kv_pred_addr(a, v2_, v3_, which):
    a(f"v_and_b32 v{v2_}, 3, v{vLANE}"); a(f"v_add_u32 v{v2_}, 1, v{v2_}"); a(f"v_sub_u32 v{v2_}, s{sG}, v{v2_}")
    a(f"v_cmp_gt_i32 vcc, 0, v{v2_}"); a(f"v_mov_b32 v{v3_}, s{sG}"); a("s_nop 1"); a(f"v_cndmask_b32 v{v2_}, v{v2_}, v{v3_}, vcc")
    a(f"v_lshlrev_b32 v{v2_}, 3, v{v2_}"); a(f"v_add_u32 v{v2_}, s{sJ}, v{v2_}"); a(f"v_lshlrev_b32 v{v2_}, 7, v{v2_}"); a(f"v_add_u32 v{v2_}, {WS_FLAGR + 4*which}, v{v2_}")

def poll_r(a, name, vaddr, vdat): poll_loop(a, name, vaddr, vdat)

def die_check_issue(a):
    a(f"v_and_b32 v24, 7, v{vLANE}"); a(f"v_lshlrev_b32 v24, 5, v24"); a(f"v_add_u32 v24, s{sG}, v24")
    a(f"v_lshlrev_b32 v24, 7, v24"); a(f"v_add_u32 v24, {WS_PREPF}, v24")
    a.vm(f"buffer_load_dwordx2 v[28:29], v24, s[{SRD_WS}:{SRD_WS+3}], 0 offen sc1", "die")
def die_check(a):
    a.wait_vm("die")
    a(f"s_cmp_lg_u32 s{sW}, 4"); a("s_cbranch_scc1 L_die_skip")
    a(f"s_add_u32 s{sVAL}, s{sEP}, 1")
    a(f"s_mov_b32 s{sSPIN}, {OPT['spin']}")
    a.label("L_die_loop")
    a(f"v_subrev_u32 v28, s{sVAL}, v28")
    a(f"v_cmp_le_u32 vcc, 8, v28")
    a(f"s_sub_u32 s{sSPIN}, s{sSPIN}, 1")
    a("s_cbranch_scc1 L_die_x")
    a("s_cbranch_vccz L_die_x")
    a(f"buffer_load_dwordx2 v[28:29], v24, s[{SRD_WS}:{SRD_WS+3}], 0 offen sc1")
    a("s_waitcnt vmcnt(0)")
    a("s_branch L_die_loop")
    a.label("L_die_x")
    a(f"s_getreg_b32 s{sT2}, hwreg(HW_REG_XCC_ID, 0, 3)")
    a(f"v_cmp_ne_u32 vcc, s{sT2}, v29")
    a("s_nop 4")
    a(f"s_cmp_eq_u64 vcc, 0")
    a(f"s_cselect_b32 s{sT1}, 1, 0")
    if OPT.get("slow"): a(f"s_mov_b32 s{sT1}, 0")
    a(f"v_mov_b32 v28, s{sT1}"); a(f"v_mov_b32 v29, {MODEW}")
    a(f"ds_write_b32 v29, v28")
    a("s_waitcnt lgkmcnt(0)")
    a.label("L_die_skip")

def kv_wait_k(a, ph):
    v0_, v1_, v2_, v3_, v4_ = KVP
    a(f"s_cmp_lg_u32 s{sW}, 4")
    a(f"s_cbranch_scc1 L_{ph}_kw_skip")
    kv_pred_addr(a, v2_, v3_, 0)
    a(f"s_add_u32 s{sVAL}, s{sPAIRN}, 1"); a(f"s_add_u32 s{sVAL}, s{sVAL}, s{sEP}")
    poll_r(a, f"{ph}_kp", v2_, v0_)
    a.label(f"L_{ph}_kw_skip")

def kv_wait_v(a):
    v0_, v1_, v2_, v3_, v4_ = KVP
    a(f"s_cmp_lg_u32 s{sW}, 4")
    a(f"s_cbranch_scc1 L_vw_skip")
    kv_pred_addr(a, v2_, v3_, 1)
    a(f"s_add_u32 s{sVAL}, s{sPAIR}, 1"); a(f"s_add_u32 s{sVAL}, s{sVAL}, s{sEP}")
    poll_r(a, "vp", v2_, v0_)
    a.label(f"L_vw_skip")

def kv_dma(a, part):
    a(f"s_lshl_b32 s{sT2}, s{sPAIR}, 22"); a(f"s_add_i32 s{sT2}, s{sT2}, s{sKVr}")
    for b in range(3, -1, -1):
        lab = f"L_kv{part}{b}"
        a(f"s_cmp_lt_u32 s{sG}, {4-b}")
        a(f"s_cbranch_scc1 {lab}")
        for h in range(2):
            dma(a, SRD_WS, vL16, sT2, b * 8 * 16384 + part * 8192 + h * 4096, (KB if part == 0 else VB) + b * 8192 + h * 4096, "KV", "nt sc1" if OPT.get("nt", 0) & 4 else "sc1")
        a.label(lab)

def xcd_touch_ws(a, base, share, npieces, vpat):
    a(f"s_lshr_b32 s{sT1}, s2, 3"); a(f"s_and_b32 s{sT1}, s{sT1}, 31"); a(f"s_mul_i32 s{sT1}, s{sT1}, {share}")
    a(f"s_lshl_b32 s{sT2}, s{sI}, 13"); a(f"s_add_u32 s{sT1}, s{sT1}, s{sT2}")
    touch(a, SRD_WS, vpat, sT1, base)
    a(f"s_cmp_ge_u32 s{sI}, 2"); a("s_cbranch_scc1 L_xt_skip")
    touch(a, SRD_WS, vpat, sT1, base + 4 * 8192)
    a.label("L_xt_skip")

def xcd_touch(a, srdn, share, npieces, vpat, dst):
    a(f"s_lshr_b32 s{sT1}, s2, 3"); a(f"s_and_b32 s{sT1}, s{sT1}, 31"); a(f"s_mul_i32 s{sT1}, s{sT1}, {share}")
    a(f"s_lshl_b32 s{sT2}, s{sI}, 13"); a(f"s_add_u32 s{sT1}, s{sT1}, s{sT2}")
    for p in range(0, npieces, 4): touch(a, srdn, vpat, sT1, p * 8192, dst)

def loader_stats_issue(a):
    a(f"s_lshl_b32 s{sT1}, s{sTT}, 12"); a(f"s_add_u32 s{sT1}, s{sT1}, s{sSTATS}")
    for q in range(4):
        a.vm(f"buffer_load_dwordx4 {vr(32+4*q,4)}, v{vL16}, s[{SRD_WS}:{SRD_WS+3}], s{sT1} offen offset:{1024*q} sc1", "ST")
def loader_stats_items(a, double_ln):
    I = lambda txt: (lambda: a(txt))
    s1 = [lambda: a.wait_vm("ST")] + [I(f"v_add_f32 v{32+e}, v{32+e}, v{40+e}") for e in range(8)]
    s2 = [I(f"v_add_f32 v{32+e}, v{32+e}, v{36+e}") for e in range(4)] + [I("v_add_f32 v32, v32, v34"), I("v_add_f32 v33, v33, v35"), I("v_add_f32 v32, v32, v33")]
    t0, t1, t2, t3, v = 48, 49, 50, 51, 32
    def f1():
        a(f"v_mov_b32 v{t0}, v{v}")
        a(f"v_cmp_gt_u32 s[{sEXEC}:{sEXEC+1}], 32, v{vLANE}")
        a.nop(1)
        a(f"v_permlane32_swap_b32 v{v}, v{t0}")
        a(f"v_mul_f32 v{v}, s{sC1}, v{v}"); a(f"v_mul_f32 v{t0}, s{sC1}, v{t0}")
        a(f"v_fma_f32 v{t0}, -v{v}, v{v}, v{t0}"); a(f"v_max_f32 v{t0}, 0, v{t0}"); a(f"v_add_f32 v{t1}, s{sC2}, v{t0}")
        a(f"v_rsq_f32 v{t1}, v{t1}")
        a.nop(1)
    def f2():
        if double_ln:
            a(f"v_mul_f32 v{t2}, v{t1}, v{t1}"); a(f"v_mul_f32 v{t2}, v{t2}, v{t0}"); a(f"v_add_f32 v{t2}, s{sC2}, v{t2}")
            a(f"v_rsq_f32 v{t2}, v{t2}")
            a.nop(1)
            a(f"v_mul_f32 v{t1}, v{t1}, v{t2}")
        a(f"v_cndmask_b32 v{t3}, v{t1}, v{v}, s[{sEXEC}:{sEXEC+1}]")
        a.ds(f"ds_write_b32 v{vSTW}, v{t3}", "stw")
    return {6: s1 + s2, 7: [f1, f2]}

def prep_signal(a):
    v0_, v1_, v2_ = 20, 21, 22
    a(f"s_cmp_lg_u32 s{sW}, 4"); a("s_cbranch_scc1 L_sig_skip0")
    a(f"s_getreg_b32 s{sT1}, hwreg(HW_REG_XCC_ID, 0, 3)")
    a(f"s_add_u32 s{sVAL}, s{sEP}, 1")
    a(f"s_lshl_b32 s{sT2}, s{sJ}, 5"); a(f"s_add_u32 s{sT2}, s{sT2}, s{sG}"); a(f"s_lshl_b32 s{sT2}, s{sT2}, 7"); a(f"s_add_u32 s{sT2}, s{sT2}, {WS_PREPF}")
    a(f"v_mov_b32 v{v0_}, s{sVAL}"); a(f"v_mov_b32 v{v0_+1}, s{sT1}"); a(f"v_mov_b32 v{v2_}, s{sT2}")
    a(f"s_mov_b64 s[{sEXEC}:{sEXEC+1}], exec"); a("s_mov_b64 exec, 1")
    a(f"buffer_store_dwordx2 v[{v0_}:{v0_+1}], v{v2_}, s[{SRD_WS}:{SRD_WS+3}], 0 offen sc1")
    a(f"s_mov_b64 exec, s[{sEXEC}:{sEXEC+1}]")
    a.label("L_sig_skip0")
def prep_wait(a):
    v2_ = 22
    a(f"s_cmp_lg_u32 s{sW}, 4"); a("s_cbranch_scc1 L_sig_skip")
    a(f"s_add_u32 s{sVAL}, s{sEP}, 1")
    a(f"v_and_b32 v{v2_}, 31, v{vLANE}"); a(f"s_lshl_b32 s{sT2}, s{sJ}, 5"); a(f"v_add_u32 v{v2_}, s{sT2}, v{v2_}")
    a(f"v_lshlrev_b32 v{v2_}, 7, v{v2_}"); a(f"v_add_u32 v{v2_}, {WS_PREPF}, v{v2_}")
    a(f"s_mov_b32 exec_hi, 0")
    poll_loop(a, "sig", v2_, 23)
    a("s_mov_b64 exec, -1")
    a.label("L_sig_skip")
    ts(a, 19)
    a.bar("prepgo")

def prep_signal2(a):
    a(f"s_cmp_lg_u32 s{sW}, 4"); a("s_cbranch_scc1 L_sig2_skip")
    a(f"s_add_u32 s{sVAL}, s{sEP}, 2")
    a(f"s_lshl_b32 s{sT2}, s{sJ}, 5"); a(f"s_add_u32 s{sT2}, s{sT2}, s{sG}"); a(f"s_lshl_b32 s{sT2}, s{sT2}, 7"); a(f"s_add_u32 s{sT2}, s{sT2}, {WS_PREPF}")
    a(f"v_mov_b32 v20, s{sVAL}"); a(f"v_mov_b32 v22, s{sT2}")
    a(f"s_mov_b64 s[{sEXEC}:{sEXEC+1}], exec"); a("s_mov_b64 exec, 1")
    a(f"buffer_store_dword v20, v22, s[{SRD_WS}:{SRD_WS+3}], 0 offen sc1")
    a(f"s_mov_b64 exec, s[{sEXEC}:{sEXEC+1}]")
    a.label("L_sig2_skip")
def _prep2_addr(a):
    a(f"v_and_b32 v26, 31, v{vLANE}"); a(f"s_lshl_b32 s{sT2}, s{sJ}, 5"); a(f"v_add_u32 v26, s{sT2}, v26")
    a(f"v_lshlrev_b32 v26, 7, v26"); a(f"v_add_u32 v26, {WS_PREPF}, v26")
def prep_check2_issue(a):
    _prep2_addr(a)
    a(f"s_mov_b32 exec_hi, 0")
    a.vm(f"buffer_load_dword v27, v26, s[{SRD_WS}:{SRD_WS+3}], 0 offen sc1", "s2")
    a("s_mov_b64 exec, -1")
def prep_check2(a):
    a.wait_vm("s2")
    a(f"s_add_u32 s{sVAL}, s{sEP}, 2")
    a(f"s_mov_b32 exec_hi, 0")
    a(f"v_subrev_u32 v27, s{sVAL}, v27")
    a(f"v_cmp_le_u32 vcc, 8, v27")
    a("s_cbranch_vccz L_s2_ok")
    poll_loop(a, "s2p", 26, 27)
    a.label("L_s2_ok")
    a("s_mov_b64 exec, -1")

cFB, cACC, cSEL, cAD = (64, 68, 72, 76), 80, 84, 88
def colsum_setup(a, csf):
    a(f"v_bfe_u32 v89, v{vLANE}, 4, 1"); a(f"v_and_b32 v90, 15, v{vLANE}")
    a(f"v_cmp_eq_u32 s[{sEXEC}:{sEXEC+1}], v89, v90")
    a(f"v_mov_b32 v91, 0x3f803f80"); a(f"v_mov_b32 v92, 0")
    a.nop(1)
    for q in range(4): a(f"v_cndmask_b32 v{cSEL+q}, v92, v91, s[{sEXEC}:{sEXEC+1}]")
    a(f"s_lshl_b32 s{sT1}, s{sI}, 7"); a(f"s_add_u32 s{sT1}, s{sT1}, {csf}")
    a(f"v_lshlrev_b32 v{cAD}, 2, v{vLANE}"); a(f"v_add_u32 v{cAD}, s{sT1}, v{cAD}")
def colsum_read(a, slot, st):
    li = LdsBase(vLI)
    for q in range(4):
        r, off = li.at(slot(2*st + (q >> 1)) + (q & 1) * 2048)
        a(f"ds_read_b128 {vr(cFB[q],4)}, v{r} offset:{off}")
def colsum_acc(a, st):
    a("s_waitcnt lgkmcnt(0)")
    first = st % 8 == 0
    for q in range(4):
        a(f"v_mfma_f32_16x16x32_bf16 {vr(cACC,4)}, {vr(cSEL,4)}, {vr(cFB[q],4)}, {'0' if (first and q == 0) else vr(cACC,4)}")
def colsum_flush(a, T):
    a.nop(8)
    a(f"s_mov_b64 exec, s[{sM16}:{sM16+1}]")
    a(f"ds_write_b32 v{cAD}, v{cACC} offset:{T*256}"); a(f"ds_write_b32 v{cAD}, v{cACC+1} offset:{T*256 + 64}")
    a("s_mov_b64 exec, -1")
def colsum_hooks(a, slot, st, ph):
    lab = f"L_{ph}_cs{st}_{len(a.L)}"
    a(f"s_cmp_ge_u32 s{sI}, 2"); a(f"s_cbranch_scc1 {lab}")
    if st >= 1:
        colsum_acc(a, st - 1)
        if (st - 1) % 8 == 7: colsum_flush(a, (st - 1) // 8)
    colsum_read(a, slot, st)
    if st == 23:
        colsum_acc(a, 23); colsum_flush(a, 2); a("s_waitcnt lgkmcnt(0)")
    a.label(lab)

LA = OPT.get('la', 6)
def gemm192_loader(a, ph, unit, slot, abase, double_ln, extra, colsum=None):
    if colsum is not None: colsum_setup(a, colsum)
    for m in range(2 * LA): a_pair(a, m, abase)
    nxt = 22
    extra = list(extra)
    items = loader_stats_items(a, double_ln)
    for st in range(24):
        need = []
        if st < 8: need += [("A", 2*st), ("A", 2*st + 1)]
        need += [("W", 2*st), ("W", 2*st + 1)]
        a.wait_vm(need)
        if st == 9 or (colsum is not None and st == 17): a.wait_lg0()
        a.bar(f"{ph}_B{st}")
        if st == 22 and ph.startswith("p1"): kv_flag_store(a, 4, 0, (KVP[1], KVP[2]), ph + "_kf")
        if OPT.get("ts3") == ph: ts(a, 36 + st)
        elif st in (0, 4, 8, 16) and not OPT.get("ts3"): ts(a, (20 if ph.startswith("p1") else 30) + {0: 0, 4: 5, 8: 1, 16: 2}[st])
        if colsum is not None: colsum_hooks(a, slot, st, ph)
        if st + LA < 8:
            a_pair(a, 2*(st + LA), abase); a_pair(a, 2*(st + LA) + 1, abase)
        elif st == 8 - LA:
            loader_stats_issue(a)
        elif nxt < 48:
            unit(a, nxt); unit(a, nxt + 1); nxt += 2
        else:
            for _ in range(2):
                if extra: extra.pop(0)()
        for f in items.get(st, []): f()
    a.bar(f"{ph}_end")
    while extra: extra.pop(0)()

def p1_loader(a, v1):
    ph = "p1a" if v1 else "p1b"
    wo = [(lambda m=m: wo_unit(a, m)) for m in range(16)]
    if v1:
        colsum_setup(a, CSF_Q)
        pre = OPT.get("p1pre", 12)
        for u in range(pre): wq_unit(a, u)
        nxt = pre
        for st in range(24):
            a.wait_vm([("W", 2*st), ("W", 2*st + 1)])
            if st in (9, 17): a.wait_lg0()
            a.bar(f"{ph}_B{st}")
            if st == 22: kv_flag_store(a, 4, 0, (KVP[1], KVP[2]), ph + "_kf")
            if st == 1: prep_signal2(a)
            if st == 8: die_check_issue(a)
            if st == 12: prep_check2_issue(a)
            if st == 13: die_check(a)
            if st == 17: prep_check2(a)
            if OPT.get("ts3") == ph: ts(a, 36 + st)
            colsum_hooks(a, slot_p1, st, ph)
            if nxt < 48 and (nxt < 22 or st >= (nxt + 1 - 22) // 2 + 2):
                wq_unit(a, nxt); wq_unit(a, nxt + 1); nxt += 2
            elif st >= 18:
                for _ in range(3):
                    if wo: wo.pop(0)()
        a.bar(f"{ph}_end")
        while wo: wo.pop(0)()
    else:
        gemm192_loader(a, ph, wq_unit, slot_p1, A_P1, False, wo)
    kv_wait_k(a, ph)
    a.bar(f"{ph}_pubkv")

def _vf(a):
    kv_flag_store(a, 0, 1, (PV[1], PV[2]), "vf")

def read_mode(a):
    lab = a.name + "_mode"
    a(f"s_cmp_lg_u32 s{sPAIR}, 0")
    a(f"s_cbranch_scc1 {lab}")
    a(f"v_mov_b32 v{aT}, {MODEW}")
    a(f"ds_read_b32 v{aT}, v{aT}")
    a("s_waitcnt lgkmcnt(0)")
    a(f"v_readfirstlane_b32 s{sFAST}, v{aT}")
    a.label(lab)

def ts_real(a, idx):
    if not OPT["ts"]: return
    a.wait_lg0()
    a(f"s_memrealtime s[{sTS}:{sTS+1}]")
    a("s_waitcnt lgkmcnt(0)")
    a(f"v_writelane_b32 v{vTS}, s{sTS}, {idx}")

def span_stamp(a, which):
    if not OPT.get("span"): return
    a(f"s_memrealtime s[{sTS}:{sTS+1}]")
    a("s_waitcnt lgkmcnt(0)")
    a(f"s_cmp_lg_u32 s{sW}, 0"); a(f"s_cbranch_scc1 L_span{which}")
    a(f"s_lshl_b32 s{sT1}, s2, 3"); a(f"s_add_u32 s{sT1}, s{sT1}, {WS_TS + 4*which}")
    a(f"v_mov_b32 v80, s{sTS}"); a(f"v_mov_b32 v81, s{sT1}")
    a("s_mov_b64 exec, 1")
    a(f"buffer_store_dword v80, v81, s[{SRD_WS}:{SRD_WS+3}], 0 offen")
    a("s_mov_b64 exec, -1")
    a.label(f"L_span{which}")

def dump_ts(a):
    if not OPT["ts"]: return
    a(f"s_lshl_b32 s{sT1}, s2, 3"); a(f"s_add_u32 s{sT1}, s{sT1}, s{sW}"); a(f"s_lshl_b32 s{sT1}, s{sT1}, 8"); a(f"s_add_u32 s{sT1}, s{sT1}, {WS_TS}")
    a(f"v_lshlrev_b32 v{aT}, 2, v{vLANE}")
    a(f"buffer_store_dword v{vTS}, v{aT}, s[{SRD_WS}:{SRD_WS+3}], s{sT1} offen")

def stop_here(a, name):
    if OPT["stop"] == name:
        dump_ts(a)
        a("s_waitcnt vmcnt(0) lgkmcnt(0)")
        a("s_endpgm")

def build():
    top = Stream("t")
    common_init(top)
    c = Stream("c")
    span_stamp(c, 0)
    if OPT.get("exit0"):
        span_stamp(c, 1) if False else None
        c("s_waitcnt vmcnt(0)"); c("s_endpgm")
    ts(c, 0)
    ts_real(c, 62)
    compute_prologue(c)
    p1_compute(c, True)
    c.label("L_c_loop")
    ts(c, 3)
    if not OPT.get("vearly", 1): _vf(c)
    read_mode(c)
    attention_setup(c)
    c.bar("kready")
    ts(c, 4)
    c("s_branch L_attn")
    c.label("L_c_postattn")
    ts(c, 5)
    c.bar("pubo")
    publish_local(c, "o", 1)
    c.bar("goo")
    stop_here(c, "p2")
    ts(c, 6)
    p3_compute(c)
    stop_here(c, "p3")
    ts(c, 10)
    p4_compute(c)
    stop_here(c, "p4")
    ts(c, 12)
    p5_compute_main(c)
    ts(c, 14)
    c(f"s_cmp_lg_u32 s{sPAIR}, 0")
    c("s_cbranch_scc1 L_c_final")
    st = c.state()
    red_epilogue(c, "p5a", RB_P5, True, False, False)
    c.wait_all0()
    c.bar("p5a_pub")
    publish_local(c, "x2", 4)
    c.bar("p5a_go")
    stop_here(c, "p5")
    ts(c, 16)
    c(f"s_add_u32 s{sKVw}, s{sKVw}, {1 << 22}")
    c(f"s_mov_b32 s{sPAIRN}, 1")
    p1_compute(c, False)
    c(f"s_mov_b32 s{sPAIR}, 1")
    if OPT["ts"]:
        dump_ts(c); c("s_waitcnt vmcnt(0)"); c(f"v_mov_b32 v{vTS}, 0"); c(f"s_add_u32 s2, s2, 256")
    c("s_branch L_c_loop")
    c.label("L_c_final")
    c.set_state(st)
    red_epilogue(c, "p5b", RB_P5, True, True, False)
    c(f"s_or_b32 s{sT1}, s{sG}, s{sJ}"); c(f"s_or_b32 s{sT1}, s{sT1}, s{sW}")
    c(f"s_cmp_lg_u32 s{sT1}, 0"); c("s_cbranch_scc1 L_c_noep")
    c(f"v_mov_b32 v80, s{sEP}"); c(f"v_mov_b32 v81, {WS_EPOCH}")
    c(f"s_mov_b64 s[{sEXEC}:{sEXEC+1}], exec"); c("s_mov_b64 exec, 1")
    c(f"buffer_store_dword v80, v81, s[{SRD_WS}:{SRD_WS+3}], 0 offen sc1")
    c(f"s_mov_b64 exec, s[{sEXEC}:{sEXEC+1}]")
    c.label("L_c_noep")
    ts(c, 17)
    ts_real(c, 63)
    dump_ts(c)
    if OPT.get("span"): c("s_waitcnt vmcnt(0)")
    span_stamp(c, 1)
    c("s_waitcnt vmcnt(0)")
    c("s_endpgm")
    l = Stream("l")
    vT128 = 10
    l.label("L_loader")
    if OPT.get("exit0"): l("s_endpgm")
    ts(l, 0)
    if OPT.get("lprio", 1): l(f"s_setprio {OPT.get('lprio', 1)}")
    loader_prep(l)
    if OPT.get("early2", 1): prep2_fetch(l)
    loader_prologue(l)
    l(f"v_lshlrev_b32 v{vT128}, 7, v{vLANE}")
    if OPT.get("touch", 1):
        l(f"s_cmp_lg_u32 s{sW}, 7"); l("s_cbranch_scc1 L_l_t3")
        l("s_getpc_b64 s[94:95]")
        l.label("L_l_pc")
        l(f"s_sub_u32 s94, s94, L_l_pc-{NAME}_kernel"); l("s_subb_u32 s95, s95, 0")
        l(f"s_lshr_b32 s{sT1}, s2, 3"); l(f"s_lshl_b32 s{sT2}, s{sT1}, 11"); l(f"v_add_u32 v25, s{sT2}, v{vT128}")
        l(f"s_mov_b32 s{sT2}, L_exit-{NAME}_kernel"); l(f"v_min_u32 v25, s{sT2}, v25")
        l(f"s_mov_b64 exec, s[{sM16}:{sM16+1}]")
        l(f"s_mov_b32 m0, {DUMMY}"); l("s_nop 0")
        l(f"global_load_lds_dword v25, s[94:95]")
        l("s_mov_b64 exec, -1")
        l.label("L_l_t3")
    l(f"v_mov_b32 v20, {CNTW}"); l("v_mov_b32 v21, 0")
    l("ds_write_b32 v20, v21")
    if OPT.get("early2", 1):
        l(f"s_cmp_eq_u32 s{sW}, 4"); l("s_cbranch_scc1 L_l_w40")
        l("s_waitcnt vmcnt(4) lgkmcnt(0)"); l("s_branch L_l_w41")
        l.label("L_l_w40")
        l("s_waitcnt vmcnt(0) lgkmcnt(0)")
        l.label("L_l_w41")
        l.vmq = []; l.lg = []
    else: l.wait_all0()
    l(f"s_add_u32 s{sEP}, s{sEP}, 16")
    ts(l, 13)
    l.bar("prep")
    ts(l, 15)
    prep_signal(l)
    if not OPT.get("early2", 1): prep2_fetch(l)
    prep2_emit(l)
    prep_wait(l)
    ts(l, 18)
    p1_loader(l, True)
    l.label("L_l_loop")
    ts(l, 3)
    kv_dma(l, 0)
    read_mode(l)
    attention_setup(l)
    kv_wait_v(l)
    l.wait_vm0()
    l.bar("kready")
    kv_dma(l, 1)
    if OPT.get("ww1", 1): warm_w1(l)
    warm_exchange(l)
    if OPT.get("w2reg", 0):
        for q in range(11):
            l(f"s_add_u32 s{sT0}, s{sW2b}, {(32 + q) * 4096}")
            l(f"buffer_load_dwordx4 {vr(212 + 4*q, 4)}, v{vL16}, s[{SRD_WS}:{SRD_WS+3}], s{sT0} offen sc1")
    l.vmq = []
    ts(l, 4)
    TOUCH = OPT.get("touch", 1)
    if OPT.get("lprio", 1) and not OPT.get("aprio", 0): l("s_setprio 0")
    l("s_branch L_attn")
    l.label("L_l_postattn")
    l.vmq = []; l.lg = []
    if OPT.get("lprio", 1): l(f"s_setprio {OPT.get('lprio', 1)}")
    ts(l, 5)
    l.bar("pubo")
    o1 = OPT.get("o1", 10); o2 = o1 + OPT.get("o2", 6); o3 = o2 + OPT.get("o3", 0)
    for u in range(o1): w1_unit(l, u)
    l.bar("goo")
    stop_here(l, "p2")
    ts(l, 6)
    l.bar("p3_a")
    l.bar("p3_b")
    for u in range(o1, o2): w1_unit(l, u)
    l.bar("p3_red1"); l.bar("p3_red2")
    for u in range(o2, o3): w1_unit(l, u)
    l.bar("p3_pub")
    for u in range(o3, 22): w1_unit(l, u)
    l.bar("p3_go")
    stop_here(l, "p3")
    ts(l, 10)
    l(f"s_cmp_lg_u32 s{sPAIR}, 0")
    l("s_cbranch_scc1 L_l_p4b")
    st = l.state()
    ends = []
    nb0 = len(l.bars)
    for v1 in (True, False):
        if not v1:
            l.label("L_l_p4b"); l.set_state(st)
            logged = l.bars[nb0:]; l.bars = l.bars[:nb0]
        gemm192_loader(l, "p4", w1_unit, slot_p4, A_P4, True, [(lambda m=m: w2_unit(l, m)) for m in range(16)], colsum=CSF_1 if v1 else None)
        h1 = 16 + OPT.get("h1", 8); h2 = h1 + OPT.get("h2", 8)
        for m in range(16, h1): w2_unit(l, m)
        if OPT.get("w2reg", 0):
            for m in range(32, 38): w2_from_regs(l, m)
        l.bar("p4_pubh")
        for m in range(h1, h2): w2_unit(l, m)
        l.bar("p4_goh")
        ends.append(l.state())
        if v1: l("s_branch L_l_p5")
    assert ends[0] == ends[1] and l.bars[nb0:] == logged
    l.label("L_l_p5")
    stop_here(l, "p4")
    ts(l, 12)
    l.wait_vm([("W2", m) for m in range(4)])
    l.bar("p5_a")
    w2n = 16 + OPT.get("h1", 8) + OPT.get("h2", 8)
    cond = []
    late5 = list(range(38, 43))
    early = OPT.get("wqe", 0)
    for st5 in range(1, 11):
        need = [("W2", m) for m in range(4*st5, min(4*st5 + 4, 43))]
        l.wait_vm(need)
        if OPT.get("w2reg", 0) and st5 in (8, 9): l.wait_lg0()
        l.bar(f"p5_B{st5}")
        if OPT.get("w2reg", 0):
            if st5 == 4:
                for m in range(38, 43): w2_from_regs(l, m)
        else:
            k_ = 0
            while w2n < 38 and k_ < 3:
                w2_unit(l, w2n); w2n += 1; k_ += 1
            if w2n >= 38 and st5 >= 4 and late5:
                for _ in range(min(3 - k_, len(late5))): w2_unit(l, late5.pop(0))
        if st5 >= 9 - early // 2 and st5 <= 8 and len(cond) < early:
            stt = l.state()
            l(f"s_cmp_lg_u32 s{sPAIR}, 0"); l(f"s_cbranch_scc1 L_l_wqe{st5}")
            for _ in range(2):
                wq_unit(l, len(cond)); cond.append(len(cond))
            l.label(f"L_l_wqe{st5}")
            l.set_state(stt)
    ts(l, 14)
    l(f"s_cmp_lg_u32 s{sPAIR}, 0")
    l("s_cbranch_scc1 L_l_final")
    l.vmq = l.vmq + [("W", u) for u in cond]
    n0 = len(cond); n1 = n0 + OPT.get("wq1", 6); n2 = n1 + OPT.get("wq2", 6)
    for u in range(n0, n1): wq_unit(l, u)
    l.bar("p5a_red2")
    for u in range(n1, n2): wq_unit(l, u)
    l.bar("p5a_pub")
    for u in range(n2, 22): wq_unit(l, u)
    l.bar("p5a_go")
    stop_here(l, "p5")
    ts(l, 16)
    l(f"s_mov_b32 s{sPAIRN}, 1")
    p1_loader(l, False)
    l(f"s_mov_b32 s{sPAIR}, 1")
    if OPT["ts"]:
        dump_ts(l); l("s_waitcnt vmcnt(0)"); l(f"v_mov_b32 v{vTS}, 0"); l(f"s_add_u32 s2, s2, 256")
    l("s_branch L_l_loop")
    l.label("L_l_final")
    l.bar("p5b_red2")
    dump_ts(l)
    l("s_waitcnt vmcnt(0)")
    l("s_endpgm")
    at = Stream("a")
    at.label("L_attn")
    attention(at)
    at(f"s_cmp_ge_u32 s{sW}, 4")
    at("s_cbranch_scc1 L_l_postattn")
    at("s_branch L_c_postattn")
    assert c.bars == l.bars, "\n".join(f"{x} | {y}" for x, y in zip(c.bars, l.bars)) + f"\n{len(c.bars)} {len(l.bars)}"
    lines = top.L + c.L + l.L + at.L + ["L_exit:", "s_endpgm"]
    return lines

HEAD = f"""; Fused two-pair transformer block (sliding-window attention + GELU MLP), one persistent launch.
; @launch grid=(256,1,1) block=(512,1,1) lds={LDS_TOTAL}
.amdgcn_target "amdgcn-amd-amdhsa--gfx950"
.text
.globl {NAME}_kernel
.p2align 8
.type {NAME}_kernel,@function
{NAME}_kernel:
"""
TAIL = f"""
.section .rodata,"a"
.p2align 6
.amdhsa_kernel {NAME}_kernel
  .amdhsa_next_free_vgpr 256
  .amdhsa_next_free_sgpr 102
  .amdhsa_accum_offset 256
  .amdhsa_group_segment_fixed_size 0
  .amdhsa_kernarg_size 88
  .amdhsa_user_sgpr_count 2
  .amdhsa_user_sgpr_kernarg_segment_ptr 1
  .amdhsa_system_sgpr_workgroup_id_x 1
.end_amdhsa_kernel
"""
if __name__ == "__main__":
    lines = build()
    errs = lint(lines)
    for e in errs[:40]: print("LINT", e, file=sys.stderr)
    out = OPT.get("out", f"cdna_kernels/{NAME}.s")
    open(out, "w").write(HEAD + "\n".join("    " + x if not x.endswith(":") else x for x in lines) + TAIL)
    print(f"wrote {out}: {len(lines)} lines, {len(errs)} lint findings", file=sys.stderr)
```

```python
import sys, copy
from asmlib import Stream, lint

NAME = "interleave_layers__sliding_block__mixer_channel_mlp__prompt"
OPT = dict(ts=False, stop=None, spin=400000)
for a in sys.argv[1:]:
    if a.startswith("--"):
        k, _, v = a[2:].partition("=")
        OPT[k] = (int(v) if v.lstrip("-").isdigit() else v) if v else True

K = 1024
LDS_TOTAL = 160 * K
MISC = 152 * K
ST_MEAN = MISC
ST_RSTD = MISC + 256
CS_Q = MISC + 512
CS_1 = MISC + 2048
B1F = MISC + 3584
B2F = MISC + 4352
STP = MISC + 4608
CSF_Q = MISC + 5632
CSF_1 = MISC + 6400
MODEW = MISC + 7168
CNTW = MISC + 7172
DUMMY = MISC + 7424
KB, VB, QB, WOB = 0, 40 * K, 80 * K, 88 * K
def slot_p1(u):
    if u < 22: return 64 * K + 4 * K * u
    if u < 32: return 64 * K + 4 * K * (u - 22)
    if u < 40: return 4 * K * (u - 32)
    if u < 46: return 40 * K + 4 * K * (u - 40)
    return 64 * K + 4 * K * (u - 46)
A_P1 = 0
def slot_p4(u):
    if u < 22: return 4 * K * u
    if u < 32: return 4 * K * (u - 22)
    return 88 * K + 4 * K * (u - 32)
A_P4 = 88 * K
def slot_p5(m):
    if m < 12: return 40 * K + 4 * K * m
    if m < 22: return 4 * K * (m - 12)
    if m < 38: return 88 * K + 4 * K * (m - 22)
    return 40 * K + 4 * K * (m - 38)
RB_P3 = 136 * K
RB_P5 = 0
WS_FLAGL = 0x0
WS_FLAGR = 0x2000
WS_STATS = 0x10000
WS_XA = 0x100000
WS_HO = 0x300000
HO_STRIDE = 0x2C000
H_TT = 86 * 1024
WS_KV = 0x900000
WS_TS = 0x1200000
WS_WQP = 0x1400000
WS_W1P = 0x1600000
WS_WOP = 0x1800000
WS_W2P = 0x1900000
J_WQ, J_WO, J_W2 = 0x30000, 0x10000, 0x2C000
PREP = 120 * K
WS_PREPF = 0x1C00000
WS_EPOCH = 0x1F00000
WS_SIZE = 0x2000000
SRD_X, SRD_WQ, SRD_WO, SRD_W1, SRD_W2, SRD_WS, SRD_OUT, SRD_DBG = 4, 8, 12, 16, 20, 24, 28, 32
sG, sJ, sW, sI, sPAIR, sFAST, sTT, sCP = 36, 37, 38, 39, 40, 41, 42, 43
SRD_TMP = 44
sI1K = 48
sT0, sT1, sT2, sT3 = 49, 50, 51, 52
sXA = 53
sHO = 54
sWQb, sW1b, sWOb = 55, 56, 57
sW2b = 100
sKVw = 58
sSTATS = 59
sSPIN = 60
sHST = (61, 62, 63, 64, 65, 66)
sX0 = 63
sKVr = 62
sVMASK = 68
sEXEC = 70
sTMIN = 72
sO = 73
sVAL = 74
sOUTb = 75
sPAIRN = 85
sEP = 87
sTS = 76
sM16 = 78
sM0_32 = 80
sC1, sC2, sC3 = 82, 83, 84
sKPTR = 86
vLANE, vL16 = 0, 1
vTRA = (2, 3, 4)
vTRK = (5, 6, 7)
vTRS = (8, 9, 10)
vAR = 11
vCSA = 12
vTOK = 13
vSTB = 14
vTS = 15
vXR = 16
vACC = (32, 48)
vWF = 64
vE = 88
vA = 128
vPQ, vP1, vPO, vX0, vPOLL, vFLAG, vSTA, vSTW = 2, 3, 4, 5, 6, 7, 8, 9
vLI = (11, 12, 13)

EPS = 1e-5
import struct, math
def f2u(x): return struct.unpack("<I", struct.pack("<f", x))[0]
QSCALE = math.log2(math.e) / 4.0
GC0 = -2.0 * math.sqrt(2.0 / math.pi) * math.log2(math.e)
GC1 = GC0 * 0.044715
NEGBIG = f2u(-1.0e30)

def ts(a, idx):
    if not OPT["ts"]: return
    a.wait_lg0()
    a(f"{'s_memrealtime' if OPT.get('rt') else 's_memtime'} s[{sTS}:{sTS+1}]")
    a("s_waitcnt lgkmcnt(0)")
    a(f"v_writelane_b32 v{vTS}, s{sTS}, {idx}")

def srd(a, d, ptr, size):
    a(f"s_mov_b32 s{d}, s{ptr}")
    a(f"s_and_b32 s{d+1}, s{ptr+1}, 0xffff")
    a(f"s_mov_b32 s{d+2}, {size}")
    a(f"s_mov_b32 s{d+3}, 0x20000")

def vr(b, n): return f"v[{b}:{b+n-1}]"

class LdsBase:
    def __init__(self, regs): self.regs = regs
    def at(self, addr):
        return self.regs[addr >> 16], addr & 0xffff

def dma(a, srdn, vpat, sbase, soff, lds, tag, flags=""):
    a(f"s_add_u32 m0, s{sI1K}, {lds}")
    a(f"s_add_u32 s{sT0}, s{sbase}, {soff}")
    a.vm(f"buffer_load_dwordx4 v{vpat}, s[{srdn}:{srdn+3}], s{sT0} offen {flags} lds".replace("  ", " "), tag)

def dual_store(a, kind, data, vaddr, srdn, soff, extra=""):
    lab = a.name + f"_ds{len(a.L)}"
    a(f"s_cmp_eq_u32 s{sFAST}, 0")
    a(f"s_cbranch_scc1 {lab}_s")
    a(f"{kind} {data}, v{vaddr}, s[{srdn}:{srdn+3}], {soff} offen {extra} nt".replace("  ", " ").rstrip())
    a(f"s_branch {lab}_e")
    a.label(f"{lab}_s")
    a.vm(f"{kind} {data}, v{vaddr}, s[{srdn}:{srdn+3}], {soff} offen {extra} sc1".replace("  ", " "), "st")
    a.label(f"{lab}_e")

def common_init(a):
    if OPT.get("exit1") == 1: a("s_endpgm")
    a("s_cmp_ge_u32 s2, 256")
    a("s_cbranch_scc1 L_exit")
    if OPT.get("perm"):
        a("s_and_b32 s3, s2, 7"); a("s_lshl_b32 s3, s3, 3"); a("s_lshr_b32 s4, s2, 3"); a("s_and_b32 s4, s4, 7"); a("s_or_b32 s3, s3, s4")
        if OPT["perm"] == 2: a("s_xor_b32 s3, s3, 5")
        a("s_and_b32 s2, s2, 0xc0"); a("s_or_b32 s2, s2, s3")
    a(f"s_load_dwordx16 s[{64}:{79}], s[0:1], 0")
    if OPT.get("cpf", 3) == 3:
        a(f"s_getpc_b64 s[94:95]")
        a.label("L_pf_pc3")
        a(f"s_mov_b32 m0, {DUMMY}")
        a(f"v_lshlrev_b32 v2, 7, v0")
        a(f"v_min_u32 v2, L_exit-L_pf_pc3, v2")
        a(f"global_load_lds_dword v2, s[94:95]")
    a(f"s_load_dwordx4 s[{88}:{91}], s[0:1], 64")
    a(f"s_load_dwordx2 s[{92}:{93}], s[0:1], 80")
    a(f"v_lshrrev_b32 v1, 6, v0")
    a(f"v_and_b32 v{vLANE}, 63, v0")
    a(f"s_and_b32 s{sT0}, s2, 7")
    a(f"v_readfirstlane_b32 s{sW}, v1")
    if OPT.get("cpf", 3) in (1, 2):
        a(f"s_getpc_b64 s[94:95]")
        a.label("L_pf_pc")
        a(f"v_lshlrev_b32 v2, 7, v{vLANE}")
        a(f"s_cmp_lt_u32 s{sW}, 6"); a("s_cbranch_scc1 L_pf_no")
        a(f"s_cmp_eq_u32 s{sW}, 6"); a(f"s_cselect_b32 s{sT1}, 0, L_loader-L_pf_pc")
        a(f"s_add_u32 s94, s94, s{sT1}"); a("s_addc_u32 s95, s95, 0")
        a("global_load_dword v255, v2, s[94:95]")
        a.label("L_pf_no")
        if OPT.get("cpf", 3) == 2:
            a(f"s_cmp_lg_u32 s{sW}, 5"); a("s_cbranch_scc1 L_pf_no2")
            a(f"s_lshr_b32 s{sT1}, s2, 3"); a(f"s_lshl_b32 s{sT1}, s{sT1}, 11"); a(f"v_add_u32 v2, s{sT1}, v2")
            a(f"s_mov_b32 s{sT1}, L_exit-L_pf_pc"); a(f"v_min_u32 v2, s{sT1}, v2")
            a("s_mov_b64 exec, 0xffff")
            a("global_load_dword v255, v2, s[94:95]")
            a("s_mov_b64 exec, -1")
            a.label("L_pf_no2")
    a(f"s_lshr_b32 s{sT1}, s2, 3")
    a(f"s_lshr_b32 s{sT2}, s{sT1}, 3")
    a(f"s_lshl_b32 s{sT0}, s{sT0}, 2")
    a(f"s_add_u32 s{sG}, s{sT0}, s{sT2}")
    a(f"s_and_b32 s{sJ}, s{sT1}, 7")
    a(f"s_and_b32 s{sI}, s{sW}, 3")
    a(f"s_lshl_b32 s{sI1K}, s{sI}, 10")
    a(f"s_mov_b32 s{sPAIR}, 0"); a(f"s_mov_b32 s{sPAIRN}, 0")
    a(f"s_mov_b32 s{sFAST}, 0")
    a(f"v_lshlrev_b32 v{vL16}, 4, v{vLANE}")
    a(f"v_mov_b32 v{vTS}, 0")
    a("s_waitcnt lgkmcnt(0)")
    if OPT.get("exit1") == 2: a("s_endpgm")
    srd(a, SRD_X, 64, 2048 * 1024)
    srd(a, SRD_WQ, 66, 512 * 3072)
    srd(a, SRD_WO, 68, 512 * 1024)
    srd(a, SRD_W1, 72, 512 * 2752)
    srd(a, SRD_W2, 76, 1376 * 1024)
    if OPT.get("wsoff", 0):
        a(f"s_add_u32 s92, s92, {OPT['wsoff'] << 20}"); a("s_addc_u32 s93, s93, 0")
    srd(a, SRD_WS, 92, WS_SIZE)
    srd(a, SRD_OUT, 88, 2048 * 1024)
    srd(a, SRD_DBG, 90, 256)
    a(f"s_mov_b32 s{sT3}, {WS_EPOCH}")
    a(f"s_buffer_load_dword s{sEP}, s[{SRD_WS}:{SRD_WS+3}], s{sT3}")
    if OPT.get("tlb", 0):
        a(f"s_cmp_lg_u32 s{sW}, {OPT.get('tlbw', 3)}"); a("s_cbranch_scc1 L_tlb_no")
        for k in range(15):
            a(f"s_mov_b32 s{sT3}, {k << 21}")
            a(f"s_buffer_load_dword s{86}, s[{SRD_WS}:{SRD_WS+3}], s{sT3}")
        a(f"s_buffer_load_dword s86, s[{SRD_OUT}:{SRD_OUT+3}], 0")
        a(f"s_buffer_load_dword s86, s[{SRD_W1}:{SRD_W1+3}], 0")
        a(f"s_buffer_load_dword s86, s[{SRD_W2}:{SRD_W2+3}], 0")
        a.label("L_tlb_no")
    a("s_mov_b32 s94, s74"); a("s_mov_b32 s95, s75"); a("s_mov_b32 s96, s78"); a("s_mov_b32 s97, s79")
    a(f"s_mul_i32 s98, s{sJ}, 10"); a(f"s_add_u32 s98, s98, 6"); a(f"s_mul_i32 s99, s{sJ}, 12")
    a(f"s_cmp_lt_u32 s{sJ}, 3")
    a(f"s_cselect_b32 s98, s99, s98")
    a(f"s_cselect_b32 s99, 12, 10")
    a(f"s_mov_b32 s{sVMASK}, 0x0000ffff"); a(f"s_mov_b32 s{sVMASK+1}, 0x0000ffff")
    a(f"s_mov_b64 s[{sM16}:{sM16+1}], 0xffff")
    a(f"s_mov_b32 s{sM0_32}, 1"); a(f"s_mov_b32 s{sM0_32+1}, 1")
    a(f"s_lshl_b32 s{sSTATS}, s{sG}, 13"); a(f"s_add_u32 s{sSTATS}, s{sSTATS}, {WS_STATS}")
    if OPT.get("exit1") == 3:
        a("s_waitcnt lgkmcnt(0)"); a("s_endpgm")
    a(f"s_cmp_ge_u32 s{sW}, 4")
    a("s_cbranch_scc1 L_loader")

def tr_addr(a, dst, ct_expr_sgpr, natural_second=None, tmp=(vE, vE+1, vE+2, vE+3)):
    t0, t1, t2, t3 = tmp
    def one(d, kexpr):
        kexpr(t0)
        a(f"v_lshrrev_b32 v{t1}, 1, v{t0}"); a(f"v_and_b32 v{t1}, 3, v{t1}")
        a(f"v_and_b32 v{t2}, 1, v{t1}"); a(f"v_lshlrev_b32 v{t2}, 1, v{t2}"); a(f"v_lshrrev_b32 v{t1}, 1, v{t1}")
        a(f"v_or_b32 v{t1}, v{t1}, v{t2}")
        a(f"v_lshrrev_b32 v{t2}, 4, v{vLANE}"); a(f"v_and_b32 v{t2}, 1, v{t2}")
        a(f"s_lshl_b32 s{sT3}, s{ct_expr_sgpr}, 1")
        a(f"v_add_u32 v{t2}, s{sT3}, v{t2}")
        a(f"v_xor_b32 v{t1}, v{t1}, v{t2}"); a(f"v_lshlrev_b32 v{t1}, 5, v{t1}")
        a(f"v_lshlrev_b32 v{t0}, 7, v{t0}")
        a(f"v_and_b32 v{t2}, 3, v{vLANE}"); a(f"v_lshlrev_b32 v{t2}, 3, v{t2}")
        a(f"v_add3_u32 v{d}, v{t0}, v{t1}, v{t2}")
    def kperm(t):
        a(f"v_lshrrev_b32 v{t}, 5, v{vLANE}"); a(f"v_lshlrev_b32 v{t}, 2, v{t}")
        a(f"v_bfe_u32 v{t3}, v{vLANE}, 2, 2"); a(f"v_add_u32 v{t}, v{t}, v{t3}")
    def knat(off):
        def f(t):
            a(f"v_lshrrev_b32 v{t}, 5, v{vLANE}"); a(f"v_lshlrev_b32 v{t}, 3, v{t}")
            a(f"v_bfe_u32 v{t3}, v{vLANE}, 2, 2"); a(f"v_add_u32 v{t}, v{t}, v{t3}")
            if off: a(f"v_add_u32 v{t}, {off}, v{t}")
        return f
    if natural_second is None: one(dst, kperm)
    else:
        one(dst, knat(0)); one(natural_second, knat(4))

def three_bases(a, regs):
    a(f"v_add_u32 v{regs[1]}, 0x10000, v{regs[0]}")
    a(f"v_add_u32 v{regs[2]}, 0x20000, v{regs[0]}")

vNA = vTRA
vNB = (112, 113, 115)
vSEL = vE + 28
vCSACC = vE + 32

def compute_prologue(a):
    a(f"s_lshr_b32 s{sTT}, s{sW}, 1")
    a(f"s_and_b32 s{sCP}, s{sW}, 1")
    if OPT.get("xtouch", 1):
        a(f"s_cmp_lg_u32 s{sW}, 0"); a("s_cbranch_scc1 L_c_xt")
        a(f"v_lshlrev_b32 v{vE}, 7, v{vLANE}"); a(f"s_lshl_b32 s{sT1}, s{sG}, 16"); a(f"s_lshl_b32 s{sT2}, s{sJ}, 13"); a(f"s_add_u32 s{sT1}, s{sT1}, s{sT2}")
        touch(a, SRD_X, vE, sT1, 0)
        a.label("L_c_xt")
        a.vmq = []
    t = vE
    a(f"s_lshl_b32 s{sT0}, s{sG}, 16"); a(f"s_lshl_b32 s{sT1}, s{sTT}, 15"); a(f"s_add_u32 s{sT0}, s{sT0}, s{sT1}")
    a(f"s_lshl_b32 s{sT1}, s{sJ}, 7"); a(f"s_add_u32 s{sT0}, s{sT0}, s{sT1}"); a(f"s_lshl_b32 s{sT1}, s{sCP}, 6"); a(f"s_add_u32 s{sOUTb}, s{sT0}, s{sT1}")
    a(f"s_cmp_lt_u32 s{sW}, 2")
    a("s_cbranch_scc1 L_c_nob")
    a(f"s_cmp_eq_u32 s{sW}, 2")
    a(f"s_cselect_b32 s{sT0}, s94, s96"); a(f"s_cselect_b32 s{sT1}, s95, s97")
    a(f"s_mov_b32 s{SRD_TMP}, s{sT0}"); a(f"s_and_b32 s{SRD_TMP+1}, s{sT1}, 0xffff")
    a(f"s_movk_i32 s{sT2}, 1024"); a(f"s_cmp_eq_u32 s{sW}, 2"); a(f"s_cselect_b32 s{SRD_TMP+2}, 2752, s{sT2}"); a(f"s_mov_b32 s{SRD_TMP+3}, 0x20000")
    a(f"s_cmp_eq_u32 s{sW}, 2")
    a(f"s_lshl_b32 s{sT0}, s98, 5"); a(f"s_lshl_b32 s{sT1}, s{sJ}, 7")
    a(f"s_cmp_eq_u32 s{sW}, 2")
    a(f"s_cselect_b32 s{sT0}, s{sT0}, s{sT1}")
    a(f"s_mov_b32 s{sT1}, {B2F}"); a(f"s_cselect_b32 s{sT1}, {B1F}, s{sT1}")
    a(f"s_cselect_b32 s{sT2}, 48, 16")
    a(f"v_lshlrev_b32 v{t+2}, 3, v{vLANE}")
    a(f"buffer_load_dwordx2 {vr(vBR,2)}, v{t+2}, s[{SRD_TMP}:{SRD_TMP+3}], s{sT0} offen")
    a(f"v_add_u32 v{vBR+2}, s{sT1}, v{vL16}")
    a(f"s_mov_b32 s{sBL}, s{sT2}")
    a.label("L_c_nob")
    a(f"s_lshl_b32 s{sT0}, s{sCP}, 10"); a(f"v_add_u32 v{vTRA[0]}, s{sT0}, v{vL16}"); three_bases(a, vTRA)
    a(f"s_mul_i32 s{sT0}, s{sCP}, 3072"); a(f"v_add_u32 v{vTRK[0]}, s{sT0}, v{vL16}")
    a(f"s_lshl_b32 s{sT0}, s{sCP}, 10"); a(f"s_add_u32 s{sT0}, s{sT0}, 1024"); a(f"v_add_u32 v{vTRS[0]}, s{sT0}, v{vL16}")
    three_bases(a, vTRK); three_bases(a, vTRS)
    a(f"s_lshl_b32 s{sT0}, s{sTT}, 10"); a(f"v_add_u32 v{vAR}, s{sT0}, v{vL16}")
    a(f"v_lshrrev_b32 v{t}, 5, v{vLANE}"); a(f"v_lshlrev_b32 v{t}, 4, v{t}")
    a(f"s_lshl_b32 s{sT0}, s{sCP}, 7"); a(f"v_add_u32 v{vCSA}, s{sT0}, v{t}")
    a(f"s_lshl_b32 s{sT0}, s{sTT}, 7"); a(f"v_add_u32 v{vSTB}, s{sT0}, v{t}")
    a(f"v_and_b32 v{t}, 31, v{vLANE}"); a(f"v_lshlrev_b32 v{t}, 2, v{t}"); a(f"v_add_u32 v{vTOK}, s{sT0}, v{t}")
    a(f"s_lshl_b32 s{sXA}, s{sG}, 16"); a(f"s_lshl_b32 s{sT0}, s{sTT}, 15"); a(f"s_add_u32 s{sXA}, s{sXA}, s{sT0}")
    a(f"s_lshl_b32 s{sT0}, s{sJ}, 12"); a(f"s_add_u32 s{sXA}, s{sXA}, s{sT0}"); a(f"s_lshl_b32 s{sT0}, s{sCP}, 11"); a(f"s_add_u32 s{sXA}, s{sXA}, s{sT0}")
    a(f"s_add_u32 s{sXA}, s{sXA}, {WS_XA}")
    a(f"s_mul_i32 s{sHO}, s{sG}, {HO_STRIDE}"); a(f"s_add_u32 s{sHO}, s{sHO}, {WS_HO}")
    a(f"s_lshl_b32 s{sKVw}, s{sG}, 3"); a(f"s_add_u32 s{sKVw}, s{sKVw}, s{sJ}"); a(f"s_lshl_b32 s{sKVw}, s{sKVw}, 14")
    a(f"s_lshl_b32 s{sT0}, s{sTT}, 12"); a(f"s_add_u32 s{sKVw}, s{sKVw}, s{sT0}"); a(f"s_lshl_b32 s{sT0}, s{sCP}, 11"); a(f"s_add_u32 s{sKVw}, s{sKVw}, s{sT0}")
    a(f"s_add_u32 s{sKVw}, s{sKVw}, {WS_KV}")
    for s in range(3):
        for sub in range(2):
            d = sHST[2*s+sub]
            a(f"s_lshl_b32 s{sT0}, s{sCP}, 1"); a(f"s_add_u32 s{sT0}, s{sT0}, {4*s+sub}")
            a(f"s_add_u32 s{sT1}, s{sT0}, s98"); a(f"s_lshl_b32 s{sT1}, s{sT1}, 10")
            a(f"s_mul_i32 s{sT2}, s{sTT}, {H_TT}"); a(f"s_add_u32 s{sT1}, s{sT1}, s{sT2}"); a(f"s_add_u32 s{sT1}, s{sT1}, s{sHO}")
            a(f"s_cmp_lt_u32 s{sT0}, s99")
            a(f"s_cselect_b32 s{d}, s{sT1}, 0x7ffff000")
    a(f"s_mov_b32 s{sC1}, {f2u(1.0/512.0)}"); a(f"s_mov_b32 s{sC2}, {f2u(EPS)}"); a(f"s_mov_b32 s{sC3}, {f2u(QSCALE)}")
    a(f"s_lshl_b32 s{sT1}, s{sW}, 14"); a(f"s_lshl_b32 s{sT2}, s{sG}, 16"); a(f"s_add_u32 s{sT2}, s{sT2}, s{sT1}")
    for r in range(16):
        a(f"v_xor_b32 v{vE}, {r << 4}, v{vL16}")
        a(f"s_add_u32 m0, s{sT1}, {A_P1 + r*1024}")
        a(f"s_add_u32 s{sT0}, s{sT2}, {r*1024}")
        a(f"buffer_load_dwordx4 v{vE}, s[{SRD_X}:{SRD_X+3}], s{sT0} offen lds")

vBR, sBL = 240, 101
def after_meet(a):
    a(f"s_cmp_lt_u32 s{sW}, 2")
    a("s_cbranch_scc1 L_c_nob2")
    a(f"v_cmp_gt_u32 vcc, s{sBL}, v{vLANE}")
    a(f"v_lshlrev_b32 v{vBR+4}, 16, v{vBR}"); a(f"v_and_b32 v{vBR+5}, 0xffff0000, v{vBR}")
    a(f"v_lshlrev_b32 v{vBR+6}, 16, v{vBR+1}"); a(f"v_and_b32 v{vBR+7}, 0xffff0000, v{vBR+1}")
    a(f"s_and_saveexec_b64 s[{sEXEC}:{sEXEC+1}], vcc")
    a(f"ds_write_b128 v{vBR+2}, {vr(vBR+4,4)}")
    a(f"s_mov_b64 exec, s[{sEXEC}:{sEXEC+1}]")
    a.label("L_c_nob2")

def touch(a, srdn, vpat, sbase, imm, dst=None):
    a(f"s_mov_b32 m0, {DUMMY}")
    a(f"s_add_u32 s{sT3}, s{sbase}, {imm}")
    a.vm(f"buffer_load_dword v{vpat}, s[{srdn}:{srdn+3}], s{sT3} offen lds", "touch")

def stats_finalize(a, v, tmp, vaddr, double_ln):
    t0, t1, t2, t3 = tmp
    a(f"v_mov_b32 v{t0}, v{v}")
    a.nop(2)
    a(f"v_permlane32_swap_b32 v{v}, v{t0}")
    a(f"v_mul_f32 v{v}, s{sC1}, v{v}")
    a(f"v_mul_f32 v{t0}, s{sC1}, v{t0}")
    a(f"v_fma_f32 v{t0}, -v{v}, v{v}, v{t0}")
    a(f"v_max_f32 v{t0}, 0, v{t0}")
    a(f"v_add_f32 v{t1}, s{sC2}, v{t0}")
    a(f"v_rsq_f32 v{t1}, v{t1}")
    a.nop(1)
    if double_ln:
        a(f"v_mul_f32 v{t2}, v{t1}, v{t1}")
        a(f"v_mul_f32 v{t2}, v{t2}, v{t0}")
        a(f"v_add_f32 v{t2}, s{sC2}, v{t2}")
        a(f"v_rsq_f32 v{t2}, v{t2}")
        a.nop(1)
        a(f"v_mul_f32 v{t1}, v{t1}, v{t2}")
    a(f"v_cmp_gt_u32 s[{sEXEC}:{sEXEC+1}], 32, v{vLANE}")
    a.nop(2)
    a(f"v_cndmask_b32 v{t3}, v{t1}, v{v}, s[{sEXEC}:{sEXEC+1}]")
    a.ds(f"ds_write_b32 v{vaddr}, v{t3}", "stw")

E = 80
ePK = 84
D_AHEAD = 4

class VM:
    def __init__(self, f): self.f = f
    def __call__(self): self.f()

def items_kq(a, ac, T, v1, is_q):
    mean, rs, ad, adc = E, E + 1, E + 2, E + 3
    w = 92
    cs = [96, 100, 104, 108]
    it = []
    it.append(lambda: a(f"v_add_u32 v{ad}, {ST_MEAN}, v{vTOK}"))
    it.append(lambda: a(f"v_add_u32 v{adc}, {MISC}, v{vCSA}"))
    it.append(lambda: a.ds(f"ds_read_b32 v{mean}, v{ad} offset:0", "em"))
    it.append(lambda: a.ds(f"ds_read_b32 v{rs}, v{ad} offset:256", "er"))
    if not v1:
        for g in range(4):
            it.append(lambda g=g: a.ds(f"ds_read_b128 {vr(cs[g],4)}, v{adc} offset:{CSF_Q - MISC + T*256 + g*32}", f"ca{g}"))
        for _ in range(6): it.append(lambda: None)
    if is_q:
        def fq():
            a.wait_lg("er"); a(f"v_mul_f32 v{rs}, s{sC3}, v{rs}")
        it.append(fq)
    for g in range(4):
        c = cs[0] if v1 else cs[g]
        if v1:
            it.append(lambda g=g: a.ds(f"ds_read_b128 {vr(cs[0],4)}, v{adc} offset:{CS_Q - MISC + T*256 + g*32}", f"ca{g}"))
            it.append(lambda g=g: a.ds(f"ds_read_b128 {vr(cs[1],4)}, v{adc} offset:{CS_Q - MISC + 768 + T*256 + g*32}", f"cb{g}"))
            for e in range(4):
                def f(e=e, g=g):
                    a.wait_lg([f"ca{g}", f"cb{g}"]); a(f"v_add_f32 v{cs[0]+e}, v{cs[0]+e}, v{cs[1]+e}")
                it.append(f)
            def fw(g=g):
                a(f"s_mov_b64 exec, s[{sM0_32}:{sM0_32+1}]")
                a.ds(f"ds_write_b128 v{adc}, {vr(cs[0],4)} offset:{CSF_Q - MISC + T*256 + g*32}", "cw")
                a("s_mov_b64 exec, -1")
            it.append(fw)
        for e in range(4):
            def f(e=e, g=g, c=c):
                a.wait_lg(["em", "er", f"ca{g}", f"cb{g}"])
                a(f"v_fma_f32 v{w+e}, -v{mean}, v{c+e}, v{ac+4*g+e}")
            it.append(f)
        for e in range(4):
            it.append(lambda e=e: a(f"v_mul_f32 v{w+e}, v{w+e}, v{rs}"))
        it.append(lambda g=g: a(f"v_cvt_pk_bf16_f32 v{ePK+2*g}, v{w}, v{w+1}"))
        it.append(lambda g=g: a(f"v_cvt_pk_bf16_f32 v{ePK+2*g+1}, v{w+2}, v{w+3}"))
    if not is_q:
        it.append(lambda: a(f"s_lshl_b32 s{sT1}, s{sTT}, 12"))
        it.append(lambda: a(f"s_lshl_b32 s{sT2}, s{sCP}, 11"))
        it.append(lambda: a(f"s_add_u32 s{sT1}, s{sT1}, s{sT2}"))
        it.append(lambda: a(f"v_add_u32 v{ad}, s{sT1}, v{vL16}"))
        for hh in range(2):
            it.append(VM(lambda hh=hh: a.vm(f"buffer_store_dwordx4 {vr(ePK+4*hh,4)}, v{vL16}, s[{SRD_WS}:{SRD_WS+3}], s{sKVw} offen offset:{hh*1024} sc1", "kvK")))
            it.append(lambda hh=hh: a.ds(f"ds_write_b128 v{ad}, {vr(ePK+4*hh,4)} offset:{KB + 32*K + hh*1024}", "kw"))
    else:
        it.append(lambda: a(f"s_lshl_b32 s{sT1}, s{sTT}, 10"))
        it.append(lambda: a(f"s_lshl_b32 s{sT2}, s{sCP}, 12"))
        it.append(lambda: a(f"s_add_u32 s{sT1}, s{sT1}, s{sT2}"))
        it.append(lambda: a(f"s_add_u32 s{sT1}, s{sT1}, {QB}"))
        it.append(lambda: a(f"v_add_u32 v{ad}, s{sT1}, v{vL16}"))
        for hh in range(2):
            it.append(lambda hh=hh: a.ds(f"ds_write_b128 v{ad}, {vr(ePK+4*hh,4)} offset:{hh*2048}", "qw"))
    return it

def items_v(a, ac, T, v1):
    cs, cs2, ad, ads = E, E + 1, E + 2, E + 3
    w = 92
    mb, rb = ((96, 96), (100, 100)) if v1 else ((96, 104), (100, 108))
    it = []
    it.append(lambda: a(f"v_and_b32 v{ad}, 31, v{vLANE}"))
    it.append(lambda: a(f"v_lshlrev_b32 v{ad}, 2, v{ad}"))
    it.append(lambda: a(f"s_lshl_b32 s{sT1}, s{sCP}, 7"))
    it.append(lambda: a(f"s_add_u32 s{sT1}, s{sT1}, {MISC}"))
    it.append(lambda: a(f"v_add_u32 v{ad}, s{sT1}, v{ad}"))
    it.append(lambda: a(f"v_add_u32 v{ads}, {MISC}, v{vSTB}"))
    def rd(g):
        it.append(lambda g=g: a.ds(f"ds_read_b128 {vr(mb[g%2],4)}, v{ads} offset:{ST_MEAN - MISC + g*32}", f"m{g}"))
        it.append(lambda g=g: a.ds(f"ds_read_b128 {vr(rb[g%2],4)}, v{ads} offset:{ST_RSTD - MISC + g*32}", f"r{g}"))
    if v1:
        it.append(lambda: a.ds(f"ds_read_b32 v{cs}, v{ad} offset:{CS_Q - MISC + T*256}", "ca"))
        it.append(lambda: a.ds(f"ds_read_b32 v{cs2}, v{ad} offset:{CS_Q - MISC + 768 + T*256}", "cb"))
        def f():
            a.wait_lg(["ca", "cb"]); a(f"v_add_f32 v{cs}, v{cs}, v{cs2}")
        it.append(f)
        it.append(lambda: a.ds(f"ds_write_b32 v{ad}, v{cs} offset:{CSF_Q - MISC + T*256}", "cw"))
    else:
        it.append(lambda: a.ds(f"ds_read_b32 v{cs}, v{ad} offset:{CSF_Q - MISC + T*256}", "ca"))
        rd(0)
        for _ in range(6): it.append(lambda: None)
    for g in range(4):
        if v1: rd(g)
        elif g < 3: rd(g + 1)
        for e in range(4):
            def f(e=e, g=g):
                a.wait_lg(["ca", f"m{g}"])
                a(f"v_fma_f32 v{w+e}, -v{mb[g%2]+e}, v{cs}, v{ac+4*g+e}")
            it.append(f)
        for e in range(4):
            def f(e=e, g=g):
                a.wait_lg(f"r{g}"); a(f"v_mul_f32 v{w+e}, v{w+e}, v{rb[g%2]+e}")
            it.append(f)
        it.append(lambda g=g: a(f"v_cvt_pk_bf16_f32 v{ePK+2*g}, v{w}, v{w+1}"))
        it.append(lambda g=g: a(f"v_cvt_pk_bf16_f32 v{ePK+2*g+1}, v{w+2}, v{w+3}"))
    it.append(lambda: a(f"v_bfe_u32 v{ad}, v{vLANE}, 4, 1"))
    it.append(lambda: a(f"v_lshlrev_b32 v{ad}, 10, v{ad}"))
    it.append(lambda: a(f"v_lshrrev_b32 v{cs2}, 5, v{vLANE}"))
    it.append(lambda: a(f"v_lshl_add_u32 v{ad}, v{cs2}, 8, v{ad}"))
    it.append(lambda: a(f"v_and_b32 v{cs2}, 15, v{vLANE}"))
    it.append(lambda: a(f"v_lshl_add_u32 v{ad}, v{cs2}, 4, v{ad}"))
    it.append(lambda: a(f"s_lshl_b32 s{sT1}, s{sTT}, 12"))
    it.append(lambda: a(f"s_lshl_b32 s{sT2}, s{sCP}, 11"))
    it.append(lambda: a(f"s_add_u32 s{sT1}, s{sT1}, s{sT2}"))
    it.append(lambda: a(f"s_add_u32 s{sT1}, s{sT1}, {VB + 32*K}"))
    it.append(lambda: a(f"v_add_u32 v{ads}, s{sT1}, v{ad}"))
    it.append(lambda: a(f"s_add_u32 s{sT2}, s{sKVw}, 8192"))
    for s in range(2):
        it.append(VM(lambda s=s: a.vm(f"buffer_store_dwordx4 {vr(ePK+4*s,4)}, v{ad}, s[{SRD_WS}:{SRD_WS+3}], s{sT2} offen offset:{s*512} sc1", "kvV")))
        it.append(lambda s=s: a.ds(f"ds_write_b128 v{ads}, {vr(ePK+4*s,4)} offset:{s*512}", "vw"))
    return it

def items_h(a, ac, T, v1):
    mr, rs, gc, ad2 = E, E + 1, E + 2, E + 3
    u, t = 92, 96
    if v1: csA, bbs, csB = (100, 100), (104, 104), 108
    else:  csA, bbs, csB = (100, 108), (104, 112), None
    CSR = CS_1 if v1 else CSF_1
    it = []
    it.append(lambda: a(f"v_add_u32 v{ad2}, {ST_MEAN}, v{vTOK}"))
    it.append(lambda: a.ds(f"ds_read_b32 v{mr}, v{ad2} offset:0", "em"))
    it.append(lambda: a.ds(f"ds_read_b32 v{rs}, v{ad2} offset:256", "er"))
    it.append(lambda: a(f"v_add_u32 v{ad2}, {MISC}, v{vCSA}"))
    it.append(lambda: a(f"v_mov_b32 v{gc}, {f2u(GC1)}"))
    def rd(g):
        it.append(lambda g=g: a.ds(f"ds_read_b128 {vr(csA[g%2],4)}, v{ad2} offset:{CSR - MISC + T*256 + g*32}", f"ca{g}"))
        if v1: it.append(lambda g=g: a.ds(f"ds_read_b128 {vr(csB,4)}, v{ad2} offset:{CS_1 - MISC + 768 + T*256 + g*32}", f"cb{g}"))
        it.append(lambda g=g: a.ds(f"ds_read_b128 {vr(bbs[g%2],4)}, v{ad2} offset:{B1F - MISC + T*256 + g*32}", f"b{g}"))
    if not v1:
        rd(0)
        for _ in range(5): it.append(lambda: None)
    def fm():
        a.wait_lg(["em", "er"]); a(f"v_mul_f32 v{mr}, v{mr}, v{rs}")
    it.append(fm)
    for g in range(4):
        cA, bb = csA[g % 2], bbs[g % 2]
        if v1:
            rd(g)
            for e in range(4):
                def f(e=e, g=g, cA=cA):
                    a.wait_lg([f"ca{g}", f"cb{g}"]); a(f"v_add_f32 v{cA+e}, v{cA+e}, v{csB+e}")
                it.append(f)
            def fw(g=g, cA=cA):
                a(f"s_mov_b64 exec, s[{sM0_32}:{sM0_32+1}]")
                a.ds(f"ds_write_b128 v{ad2}, {vr(cA,4)} offset:{CSF_1 - MISC + T*256 + g*32}", "cw")
                a("s_mov_b64 exec, -1")
            it.append(fw)
        for e in range(4):
            def f(e=e, g=g, cA=cA, bb=bb):
                a.wait_lg([f"ca{g}", f"b{g}"]); a(f"v_fma_f32 v{bb+e}, -v{mr}, v{cA+e}, v{bb+e}")
            it.append(f)
        for e in range(4): it.append(lambda e=e, g=g, bb=bb: a(f"v_fma_f32 v{u+e}, v{ac+4*g+e}, v{rs}, v{bb+e}"))
        if not v1 and g < 3: rd(g + 1)
        for e in range(4): it.append(lambda e=e: a(f"v_mul_f32 v{t+e}, v{u+e}, v{u+e}"))
        for e in range(4): it.append(lambda e=e: a(f"v_fmaak_f32 v{t+e}, v{t+e}, v{gc}, {f2u(GC0)}"))
        for e in range(4): it.append(lambda e=e: a(f"v_mul_f32 v{t+e}, v{t+e}, v{u+e}"))
        for e in range(4): it.append(lambda e=e: a(f"v_exp_f32 v{t+e}, v{t+e}"))
        for e in range(4): it.append(lambda e=e: a(f"v_add_f32 v{t+e}, 1.0, v{t+e}"))
        for e in range(4): it.append(lambda e=e: a(f"v_rcp_f32 v{t+e}, v{t+e}"))
        for e in range(4): it.append(lambda e=e: a(f"v_mul_f32 v{u+e}, v{u+e}, v{t+e}"))
        it.append(lambda g=g: a(f"v_cvt_pk_bf16_f32 v{ePK+2*g}, v{u}, v{u+1}"))
        it.append(lambda g=g: a(f"v_cvt_pk_bf16_f32 v{ePK+2*g+1}, v{u+2}, v{u+3}"))
        if g % 2 == 1:
            sub = g // 2
            it.append(lambda: a("s_nop 0"))
            it.append(VM(lambda sub=sub: dual_store(a, "buffer_store_dwordx4", vr(ePK + 4*sub, 4), vL16, SRD_WS, f"s{sHST[2*T+sub]}")))
    return it

def tail_h(a, ac, T):
    nmr, rs, gc1, gc0, ad = 80, 82, 120, 122, 124
    cs, b1, u, t = 48, 96, 112, 116
    a(f"v_add_u32 v{ad}, {ST_MEAN}, v{vTOK}"); a(f"v_add_u32 v{ad+1}, {MISC}, v{vCSA}")
    a.ds(f"ds_read_b32 v{nmr}, v{ad} offset:0", "em"); a.ds(f"ds_read_b32 v{rs}, v{ad} offset:256", "er")
    for g in range(4):
        a.ds(f"ds_read_b128 {vr(cs+4*g,4)}, v{ad+1} offset:{CSF_1 - MISC + T*256 + g*32}", f"ca{g}")
        a.ds(f"ds_read_b128 {vr(b1+4*g,4)}, v{ad+1} offset:{B1F - MISC + T*256 + g*32}", f"b{g}")
    a(f"v_mov_b32 v{gc1}, {f2u(GC1)}"); a(f"v_mov_b32 v{gc0}, {f2u(GC0)}")
    a.wait_lg(["em", "er"])
    a(f"v_mul_f32 v{nmr}, v{nmr}, v{rs}"); a(f"v_sub_f32 v{nmr}, 0, v{nmr}")
    P = lambda r: vr(r, 2)
    for g in range(4):
        a.wait_lg([f"ca{g}", f"b{g}"])
        for p in range(2): a(f"v_pk_fma_f32 {P(b1+4*g+2*p)}, {P(cs+4*g+2*p)}, {P(nmr)}, {P(b1+4*g+2*p)} op_sel_hi:[1,0,1]")
        for p in range(2): a(f"v_pk_fma_f32 {P(u+2*p)}, {P(ac+4*g+2*p)}, {P(rs)}, {P(b1+4*g+2*p)} op_sel_hi:[1,0,1]")
        for p in range(2): a(f"v_pk_mul_f32 {P(t+2*p)}, {P(u+2*p)}, {P(u+2*p)}")
        for p in range(2): a(f"v_pk_fma_f32 {P(t+2*p)}, {P(t+2*p)}, {P(gc1)}, {P(gc0)} op_sel_hi:[1,0,0]")
        for p in range(2): a(f"v_pk_mul_f32 {P(t+2*p)}, {P(t+2*p)}, {P(u+2*p)}")
        for e in range(4): a(f"v_exp_f32 v{t+e}, v{t+e}")
        for p in range(2): a(f"v_pk_add_f32 {P(t+2*p)}, {P(t+2*p)}, 1.0 op_sel_hi:[1,0]")
        for e in range(4): a(f"v_rcp_f32 v{t+e}, v{t+e}")
        for p in range(2): a(f"v_pk_mul_f32 {P(u+2*p)}, {P(u+2*p)}, {P(t+2*p)}")
        a(f"v_cvt_pk_bf16_f32 v{ePK+2*g}, v{u}, v{u+1}"); a(f"v_cvt_pk_bf16_f32 v{ePK+2*g+1}, v{u+2}, v{u+3}")
        if g % 2 == 1:
            sub = g // 2
            a.nop(1)
            dual_store(a, "buffer_store_dwordx4", vr(ePK + 4*sub, 4), vL16, SRD_WS, f"s{sHST[2*T+sub]}")

def gemm192(a, ph, slot, abase, tiles, a_interleave, after_b0=None):
    pre = f"{ph}"
    trA = LdsBase(vTRA)
    vAb = 115
    if a_interleave and abase:
        a(f"v_add_u32 v{vAb}, {abase}, v{vAR}")
    areg = vAb if (a_interleave and abase) else vAR
    def issue_reads(n):
        T, ks = divmod(n, 32)
        u = 16 * T + (ks >> 1)
        r, off = trA.at(slot(u) + (ks & 1) * 2048)
        a.ds(f"ds_read_b128 {vr(vWF + 4 * (n % 4),4)}, v{r} offset:{off}", ("W", n))
        if a_interleave and T == 0:
            a.ds(f"ds_read_b128 {vr(vA+4*ks,4)}, v{areg} offset:{ks*2048}", ("W", n))
    a.bar(f"{pre}_B0")
    if after_b0:
        after_b0()
    tsb = 20 if ph.startswith("p1") else 30
    ts(a, tsb)
    for n in range(D_AHEAD): issue_reads(n)
    pending = []; deferred = []
    for n in range(96):
        T, ks = divmod(n, 32)
        form = tiles[T][0]
        ac = vACC[T % 2]
        buf = vWF + 4 * (n % 4)
        a.wait_lg(("W", n))
        c = "0" if ks == 0 else vr(ac, 16)
        if form == "T": a(f"v_mfma_f32_32x32x16_bf16 {vr(ac,16)}, {vr(buf,4)}, {vr(vA+4*ks,4)}, {c}")
        else:           a(f"v_mfma_f32_32x32x16_bf16 {vr(ac,16)}, {vr(vA+4*ks,4)}, {vr(buf,4)}, {c}")
        nn = n + D_AHEAD
        if nn < 96 and nn % 4 == 0:
            if nn == 88: a.wait_vm("kvK")
            a.bar(f"{pre}_B{nn//4}")
        if nn < 96: issue_reads(nn)
        if T >= 1:
            start = 3
            if ks == start:
                pending = tiles[T-1][1](a, vACC[(T - 1) % 2], T - 1, False)
                if OPT.get("noepi") and ph == "p4": pending = []
                if OPT.get("noepi") == 2 and ph == "p4":
                    pending = [(lambda: a("v_add_f32 v100, v101, v102"))] * 136
            if ks >= start:
                left = 31 - ks + 1
                k = max(4, -(-len(pending) // max(left - 1, 1)))
                for _ in range(min(k, len(pending))):
                    if isinstance(pending[0], VM) and OPT.get("defer", 1):
                        deferred.append(pending.pop(0))
                    else: pending.pop(0)()
                if deferred and (n % 4 == 3):
                    while deferred: deferred.pop(0)()
            if ks == 31:
                while pending: pending.pop(0)()
                while deferred: deferred.pop(0)()
    ts(a, tsb + 3)
    a.nop(12)
    a.bar(f"{pre}_end")
    if ph == "p4" and OPT.get("pktail", 1): tail_h(a, vACC[0], 2)
    else:
        for f in tiles[2][1](a, vACC[0], 2, False): f()
    ts(a, tsb + 4)

def p1_compute(a, v1):
    ph = "p1a" if v1 else "p1b"
    tiles = [("T", lambda a_, ac, T, v: items_kq(a_, ac, T, v, False)),
             ("N", lambda a_, ac, T, v: items_v(a_, ac, T, v)),
             ("T", lambda a_, ac, T, v: items_kq(a_, ac, T, v, True))]
    if v1:
        a(f"v_and_b32 v{E+4}, 31, v{vLANE}"); a(f"s_lshl_b32 s{sT1}, s{sTT}, 5"); a(f"v_add_u32 v{E+5}, s{sT1}, v{E+4}")
        a(f"v_lshlrev_b32 v{E+5}, 10, v{E+5}")
        a(f"v_lshrrev_b32 v{E+6}, 5, v{vLANE}"); a(f"v_lshl_add_u32 v{E+5}, v{E+6}, 3, v{E+5}")
        a(f"v_and_b32 v{E+4}, 15, v{vLANE}"); a(f"v_lshl_add_u32 v{E+5}, v{E+4}, 4, v{E+5}")
        a(f"v_and_b32 v{E+16}, 15, v{vLANE}"); a(f"s_lshl_b32 s{sT1}, s{sJ}, 3"); a(f"s_lshl_b32 s{sT2}, s{sCP}, 2"); a(f"s_add_u32 s{sT1}, s{sT1}, s{sT2}")
        a(f"v_and_b32 v{E+17}, 31, v{vLANE}"); a(f"s_lshl_b32 s{sT2}, s{sTT}, 5"); a(f"v_add_u32 v{E+17}, s{sT2}, v{E+17}"); a(f"v_lshlrev_b32 v{E+17}, 10, v{E+17}")
        a(f"v_lshrrev_b32 v{E+18}, 5, v{vLANE}"); a(f"v_lshl_add_u32 v{E+17}, v{E+18}, 3, v{E+17}")
        for q in range(4):
            a(f"s_add_u32 s{sT2}, s{sT1}, {q}"); a(f"v_xor_b32 v{E+18}, s{sT2}, v{E+16}"); a(f"v_lshl_add_u32 v{E+20+q}, v{E+18}, 4, v{E+17}")
        ts(a, 29)
        a("s_waitcnt lgkmcnt(0)")
        a(f"s_add_u32 s{sEP}, s{sEP}, 16")
        a.bar("prep")
        a("s_waitcnt vmcnt(0)")
        a(f"v_mov_b32 v{E+24}, {CNTW}"); a(f"v_mov_b32 v{E+25}, 1")
        a(f"s_mov_b64 exec, 1")
        a(f"ds_add_u32 v{E+24}, v{E+25}")
        a("s_mov_b64 exec, -1")
        a(f"s_mov_b32 s{sSPIN}, {OPT['spin']}")
        a.label("L_p1a_meet")
        a(f"ds_read_b32 v{E+25}, v{E+24}")
        a("s_waitcnt lgkmcnt(0)")
        a(f"v_cmp_gt_u32 vcc, 4, v{E+25}")
        a(f"s_sub_u32 s{sSPIN}, s{sSPIN}, 1")
        a("s_cbranch_scc1 L_p1a_met")
        a("s_cbranch_vccnz L_p1a_meet")
        a.label("L_p1a_met")
        ts(a, 1)
        after_meet(a)
        for q in range(4): a.ds(f"ds_read_b64 {vr(vACC[0]+2*q,2)}, v{E+20+q}", "xr")
        a.wait_lg0()
        for q in range(4):
            for h in range(2):
                a(f"v_lshlrev_b32 v{vXR+4*q+2*h}, 16, v{vACC[0]+2*q+h}")
                a(f"v_and_b32 v{vXR+4*q+2*h+1}, 0xffff0000, v{vACC[0]+2*q+h}")
        for cc in range(16): a(f"v_xor_b32 v{vACC[1]+cc}, {cc << 4}, v{E+5}")
        sm, sq, one = E, E + 1, E + 2
        a(f"v_mov_b32 v{sm}, 0"); a(f"v_mov_b32 v{sq}, 0"); a(f"v_mov_b32 v{one}, 0x3f803f80")
        for ks in range(32):
            for hh in range(2):
                cch = 2 * ks + hh
                a.ds(f"ds_read_b64 {vr(vA+4*ks+2*hh,2)}, v{vACC[1]+(cch & 15)} offset:{(cch >> 4) << 8}", ("A", cch))
                if cch >= 12: a.wait_lg(("A", cch - 12))
        a.wait_lg0()
        a(f"s_cmp_eq_u32 s{sCP}, 0")
        a("s_cbranch_scc0 L_p1a_odd")
        for par in range(2):
            if par == 1: a.label("L_p1a_odd")
            for ks in range(par, 32, 2):
                for q in range(4):
                    a(f"v_dot2c_f32_bf16 v{sm}, v{vA+4*ks+q}, v{one}")
                    a(f"v_dot2c_f32_bf16 v{sq}, v{vA+4*ks+q}, v{vA+4*ks+q}")
            if par == 0: a("s_branch L_p1a_sdone")
        a.label("L_p1a_sdone")
        a.nop(5)
        a(f"v_permlane32_swap_b32 v{sm}, v{sq}")
        a(f"v_add_f32 v{sm}, v{sm}, v{sq}")
        a(f"v_lshrrev_b32 v{E+3}, 5, v{vLANE}"); a(f"v_lshlrev_b32 v{E+3}, 8, v{E+3}"); a(f"v_add_u32 v{E+3}, v{E+3}, v{vTOK}")
        a(f"v_add_u32 v{E+4}, {STP}, v{E+3}")
        a(f"s_lshl_b32 s{sT1}, s{sCP}, 9"); a(f"v_add_u32 v{E+5}, s{sT1}, v{E+4}")
        a.ds(f"ds_write_b32 v{E+5}, v{sm}", "stp")
        a.wait_lg0()
        def fin():
            a.ds(f"ds_read_b32 v{E+6}, v{E+4} offset:0", "x"); a.ds(f"ds_read_b32 v{E+7}, v{E+4} offset:512", "x")
            a(f"v_subrev_u32 v{E+3}, {STP - ST_MEAN}, v{E+4}")
            a.wait_lg0()
            a(f"v_add_f32 v{E+6}, v{E+6}, v{E+7}")
            stats_finalize(a, E + 6, (E + 8, E + 9, E + 10, E + 11), E + 3, False)
            a.wait_lg0()
            ts(a, 2)
        after_b0 = fin
    if v1: a.bar("prepgo")
    gemm192(a, ph, slot_p1, A_P1, tiles, a_interleave=not v1, after_b0=after_b0 if v1 else None)
    a.wait_all0()
    if OPT.get("vearly", 1):
        target = 8 if v1 else 12
        a(f"v_mov_b32 v{E}, {CNTW}"); a(f"v_mov_b32 v{E+1}, 1")
        a("s_mov_b64 exec, 1")
        a(f"ds_add_u32 v{E}, v{E+1}")
        a("s_mov_b64 exec, -1")
        a(f"s_cmp_lg_u32 s{sW}, 0"); a(f"s_cbranch_scc1 L_{ph}_vm_x")
        a(f"s_mov_b32 s{sSPIN}, {OPT['spin']}")
        a.label(f"L_{ph}_vm")
        a(f"ds_read_b32 v{E+1}, v{E}")
        a("s_waitcnt lgkmcnt(0)")
        a(f"v_cmp_gt_u32 vcc, {target}, v{E+1}")
        a(f"s_sub_u32 s{sSPIN}, s{sSPIN}, 1")
        a(f"s_cbranch_scc1 L_{ph}_vm_y")
        a(f"s_cbranch_vccnz L_{ph}_vm")
        a.label(f"L_{ph}_vm_y")
        kv_flag_store(a, 0, 1, (PV[1], PV[2]), ph + "_vf")
        a.label(f"L_{ph}_vm_x")
        a("s_waitcnt lgkmcnt(0)")
    a.bar(f"{ph}_pubkv")

def p4_compute(a):
    tiles = [("T", lambda a_, ac, T, v: items_h(a_, ac, T, v))] * 3
    gemm192(a, "p4", slot_p4, A_P4, tiles, a_interleave=True)
    a.wait_all0()
    a.bar("p4_pubh")
    publish_local(a, "p4h", 3)
    a.bar("p4_goh")

def gemm64(a, ph, nsteps, slot, abase_sgpr, window, stage_bars, midbar=None):
    trK, trS = LdsBase(vTRK), LdsBase(vTRS)
    aK, aS = vACC
    D = 2
    def issue_w(i):
        base = slot(i)
        buf = vWF + 8 * (i % 3)
        for tr, o in ((trK, 0), (trS, 4)):
            r, off = tr.at(base)
            a.ds(f"ds_read_b128 {vr(buf+o,4)}, v{r} offset:{off}", ("W", i))
    def issue_a(i):
        a(f"s_add_u32 s{sT1}, s{abase_sgpr}, {i*2048}")
        a.vm(f"buffer_load_dwordx4 {vr(vA+4*(i % window),4)}, v{vL16}, s[{SRD_WS}:{SRD_WS+3}], s{sT1} offen sc1", ("A", i))
    for i in range(min(window, nsteps)): issue_a(i)
    a.bar(f"{ph}_a")
    for i in range(D): issue_w(i)
    for i in range(nsteps):
        buf = vWF + 8 * (i % 3)
        af = vA + 4 * (i % window)
        a.wait_vm(("A", i)); a.wait_lg(("W", i))
        a(f"v_mfma_f32_32x32x16_bf16 {vr(aK,16)}, {vr(buf,4)}, {vr(af,4)}, {'0' if i == 0 else vr(aK,16)}")
        nn = i + D
        if stage_bars and nn < nsteps and nn % 4 == 0: a.bar(f"{ph}_B{nn//4}")
        if midbar is not None and i == midbar: a.bar(f"{ph}_b")
        if nn < nsteps: issue_w(nn)
        a(f"v_mfma_f32_32x32x16_bf16 {vr(aS,16)}, {vr(buf+4,4)}, {vr(af,4)}, {'0' if i == 0 else vr(aS,16)}")
        if i + window < nsteps: issue_a(i + window)

def red_epilogue(a, ph, rb, add_b2, final, pre_bar):
    aK, aS = vACC
    rv = E
    ad = 96
    if pre_bar: a.bar(f"{ph}_red1")
    a(f"s_lshl_b32 s{sT1}, s{sW}, 12"); a(f"s_add_u32 s{sT1}, s{sT1}, {rb}")
    a(f"v_add_u32 v{ad}, s{sT1}, v{vL16}")
    a(f"s_xor_b32 s{sT2}, s{sW}, 1"); a(f"s_lshl_b32 s{sT2}, s{sT2}, 12"); a(f"s_add_u32 s{sT2}, s{sT2}, {rb}")
    a(f"v_add_u32 v{ad+1}, s{sT2}, v{vL16}")
    if add_b2:
        a(f"v_add_u32 v{ad+2}, {MISC}, v{vCSA}")
        for g in range(4): a.ds(f"ds_read_b128 {vr(100+4*g,4)}, v{ad+2} offset:{B2F - MISC + g*32}", "b2")
    a.nop(8)
    for q in range(4): a.ds(f"ds_write_b128 v{ad}, {vr(aS+4*q,4)} offset:{q*1024}", "rw")
    a.wait_lg0()
    a.bar(f"{ph}_red2")
    for q in range(4): a.ds(f"ds_read_b128 {vr(rv+4*q,4)}, v{ad+1} offset:{q*1024}", "rr")
    for p in range(8): a(f"v_pk_add_f32 {vr(vXR+2*p,2)}, {vr(vXR+2*p,2)}, {vr(aK+2*p,2)}")
    if add_b2:
        for p in range(8): a(f"v_pk_add_f32 {vr(vXR+2*p,2)}, {vr(vXR+2*p,2)}, {vr(100+2*p,2)}")
    a.wait_lg0()
    for p in range(8): a(f"v_pk_add_f32 {vr(vXR+2*p,2)}, {vr(vXR+2*p,2)}, {vr(rv+2*p,2)}")
    pk = 116
    for p in range(8): a(f"v_cvt_pk_bf16_f32 v{pk+p}, v{vXR+2*p}, v{vXR+2*p+1}")
    if final:
        a.nop(2)
        for q in (0, 4):
            a(f"v_permlane32_swap_b32 v{pk+q}, v{pk+q+2}")
            a(f"v_permlane32_swap_b32 v{pk+q+1}, v{pk+q+3}")
        a(f"v_and_b32 v{ad}, 31, v{vLANE}"); a(f"v_lshlrev_b32 v{ad}, 10, v{ad}")
        a(f"v_lshrrev_b32 v{ad+1}, 5, v{vLANE}"); a(f"v_lshl_add_u32 v{ad}, v{ad+1}, 4, v{ad}")
        a.vm(f"buffer_store_dwordx4 {vr(pk,4)}, v{ad}, s[{SRD_OUT}:{SRD_OUT+3}], s{sOUTb} offen nt", "out")
        a.vm(f"buffer_store_dwordx4 {vr(pk+4,4)}, v{ad}, s[{SRD_OUT}:{SRD_OUT+3}], s{sOUTb} offen offset:32 nt", "out")
        return
    dual_store(a, "buffer_store_dwordx4", vr(pk, 4), vL16, SRD_WS, f"s{sXA}")
    dual_store(a, "buffer_store_dwordx4", vr(pk+4, 4), vL16, SRD_WS, f"s{sXA}", "offset:1024")
    s0, q0 = 100, 102
    a(f"v_pk_add_f32 {vr(s0,2)}, {vr(vXR,2)}, {vr(vXR+2,2)}")
    a(f"v_pk_mul_f32 {vr(q0,2)}, {vr(vXR,2)}, {vr(vXR,2)}")
    for p in range(1, 8):
        if p >= 2: a(f"v_pk_add_f32 {vr(s0,2)}, {vr(s0,2)}, {vr(vXR+2*p,2)}")
        a(f"v_pk_fma_f32 {vr(q0,2)}, {vr(vXR+2*p,2)}, {vr(vXR+2*p,2)}, {vr(q0,2)}")
    a(f"v_add_f32 v{s0}, v{s0}, v{s0+1}"); a(f"v_add_f32 v{q0}, v{q0}, v{q0+1}")
    a(f"s_lshl_b32 s{sT1}, s{sJ}, 1"); a(f"s_add_u32 s{sT1}, s{sT1}, s{sCP}")
    a(f"s_lshr_b32 s{sT2}, s{sT1}, 2"); a(f"s_lshl_b32 s{sT2}, s{sT2}, 10"); a(f"s_and_b32 s{sT1}, s{sT1}, 3"); a(f"s_lshl_b32 s{sT1}, s{sT1}, 2")
    a(f"s_add_u32 s{sT1}, s{sT1}, s{sT2}"); a(f"s_lshl_b32 s{sT2}, s{sTT}, 12"); a(f"s_add_u32 s{sT1}, s{sT1}, s{sT2}"); a(f"s_add_u32 s{sT1}, s{sT1}, s{sSTATS}")
    a(f"v_permlane32_swap_b32 v{s0}, v{q0}")
    a(f"v_add_f32 v{s0}, v{s0}, v{q0}")
    a.nop(1)
    dual_store(a, "buffer_store_dword", f"v{s0}", vL16, SRD_WS, f"s{sT1}")

def p3_compute(a):
    a(f"s_lshl_b32 s{sT2}, s{sTT}, 15"); a(f"s_add_u32 s{sT2}, s{sT2}, s{sHO}"); a(f"s_lshl_b32 s{sT3}, s{sCP}, 10"); a(f"s_add_u32 s{sT2}, s{sT2}, s{sT3}")
    gemm64(a, "p3", 16, lambda m: WOB + 4 * K * m, sT2, 16, False, midbar=OPT.get("p3mid", 10))
    ts(a, 9)
    red_epilogue(a, "p3", RB_P3, False, False, True)
    a.wait_all0()
    a.bar("p3_pub")
    publish_local(a, "x1", 2)
    a.bar("p3_go")

def p5_compute_main(a):
    a(f"s_mul_i32 s{sT2}, s{sTT}, {H_TT}"); a(f"s_add_u32 s{sT2}, s{sT2}, s{sHO}"); a(f"s_lshl_b32 s{sT3}, s{sCP}, 10"); a(f"s_add_u32 s{sT2}, s{sT2}, s{sT3}")
    gemm64(a, "p5", 43, slot_p5, sT2, OPT.get("p5w", 12), True)

aQ, aKa, aKb = 32, 36, 40
aS = (48, 64)
aO, aP = 80, 96
aV = (104, 112)
aM, aT, aT2 = 120, 121, 122
aB8, aB0, aCm, aC8, aC0 = 128, 144, 160, 176, 192
aKA, aVA, aQA, aOA = 208, 209, 210, 211

def attention_setup(a):
    a(f"s_and_b32 s{sT1}, s{sW}, 3"); a(f"s_lshr_b32 s{sT2}, s{sW}, 2")
    a(f"s_lshl_b32 s{sT3}, s{sT1}, 10"); a(f"s_lshl_b32 s{sT0}, s{sT2}, 12"); a(f"s_add_u32 s{sT3}, s{sT3}, s{sT0}")
    a(f"v_add_u32 v{aKA}, s{sT3}, v{vL16}")
    a(f"v_lshrrev_b32 v{aT}, 5, v{vLANE}"); a(f"v_lshlrev_b32 v{aT}, 8, v{aT}")
    a(f"v_and_b32 v{aT2}, 15, v{vLANE}"); a(f"v_lshl_add_u32 v{aT}, v{aT2}, 4, v{aT}")
    a(f"s_add_u32 s{sT3}, s{sT3}, {VB}"); a(f"v_add_u32 v{aVA}, s{sT3}, v{aT}")
    a(f"s_lshl_b32 s{sT3}, s{sT1}, 11"); a(f"s_lshl_b32 s{sT0}, s{sT2}, 10"); a(f"s_add_u32 s{sT3}, s{sT3}, s{sT0}"); a(f"s_add_u32 s{sT3}, s{sT3}, {QB}")
    a(f"v_add_u32 v{aQA}, s{sT3}, v{vL16}")
    a(f"s_lshl_b32 s{sT3}, s{sG}, 1"); a(f"s_add_u32 s{sT3}, s{sT3}, s{sT2}")
    a(f"s_sub_i32 s{sTMIN}, 8, s{sT3}"); a(f"s_max_i32 s{sTMIN}, s{sTMIN}, 0")
    a(f"s_mul_i32 s{sO}, s{sG}, {HO_STRIDE}"); a(f"s_add_u32 s{sO}, s{sO}, {WS_HO}")
    a(f"s_lshl_b32 s{sT3}, s{sT2}, 15"); a(f"s_add_u32 s{sO}, s{sO}, s{sT3}")
    a(f"s_lshl_b32 s{sT3}, s{sJ}, 2"); a(f"s_add_u32 s{sT3}, s{sT3}, s{sT1}"); a(f"s_lshl_b32 s{sT3}, s{sT3}, 10"); a(f"s_add_u32 s{sO}, s{sO}, s{sT3}")
    a(f"v_and_b32 v{aT}, 31, v{vLANE}"); a(f"v_lshrrev_b32 v{aT2}, 5, v{vLANE}"); a(f"v_lshlrev_b32 v{aT2}, 2, v{aT2}")
    a(f"v_sub_u32 v{aT}, v{aT}, v{aT2}")
    a(f"v_mov_b32 v{aM}, {NEGBIG}"); a(f"v_mov_b32 v{aT2}, 0")
    for r in range(16):
        m0 = (r & 3) + 8 * (r >> 2)
        pair = 88 + 2 * (r % 2)
        a(f"v_cmp_le_i32 s[{pair}:{pair+1}], {m0}, v{aT}")
        if r >= 1:
            pp = 88 + 2 * ((r - 1) % 2)
            a(f"v_cndmask_b32 v{aB8+r-1}, v{aM}, v{aT2}, s[{pp}:{pp+1}]") if False else None
        a.nop(2)
        a(f"v_cndmask_b32 v{aB8+r}, v{aM}, v{aT2}, s[{pair}:{pair+1}]")
        a(f"v_cndmask_b32 v{aB0+r}, v{aT2}, v{aM}, s[{pair}:{pair+1}]")
    for q in range(16): a(f"v_mov_b32 v{aV[0]+q}, 0x3f803f80")

def warm_exchange(a):
    a(f"s_cmp_eq_u32 s{sI}, 3"); a("s_cbranch_scc1 L_we_x")
    a(f"s_mul_i32 s{sT1}, s{sG}, {HO_STRIDE}"); a(f"s_mul_i32 s{sT2}, s{sJ}, 22528"); a(f"s_add_u32 s{sT1}, s{sT1}, s{sT2}")
    a(f"s_lshl_b32 s{sT2}, s{sI}, 13"); a(f"s_add_u32 s{sT1}, s{sT1}, s{sT2}")
    touch(a, SRD_WS, 10, sT1, WS_HO)
    a("s_branch L_we_e")
    a.label("L_we_x")
    a(f"s_lshl_b32 s{sT2}, s{sG}, 16"); a(f"s_lshl_b32 s{sT0}, s{sJ}, 13"); a(f"s_add_u32 s{sT2}, s{sT2}, s{sT0}")
    touch(a, SRD_WS, 10, sT2, WS_XA)
    touch(a, SRD_WS, 10, sSTATS, 0)
    a.label("L_we_e")
def warm_w1(a):
    a(f"s_cmp_eq_u32 s{sI}, 3"); a("s_cbranch_scc1 L_ww_e")
    a(f"s_mul_i32 s{sT1}, s{sJ}, {J_WQ}"); a(f"s_and_b32 s{sT2}, s{sG}, 3"); a(f"s_mul_i32 s{sT2}, s{sT2}, 22528"); a(f"s_add_u32 s{sT1}, s{sT1}, s{sT2}")
    a(f"s_lshl_b32 s{sT2}, s{sI}, 13"); a(f"s_add_u32 s{sT1}, s{sT1}, s{sT2}")
    touch(a, SRD_WS, 10, sT1, WS_W1P)
    a.label("L_ww_e")

def _p2c2(a):
    a(f"s_cmp_lt_u32 s{sW}, 4"); a("s_cbranch_scc1 L_p2c2_skip")
    a(f"s_cmp_lg_u32 s{sPAIR}, 0"); a("s_cbranch_scc1 L_p2c2_skip")
    prep2_check_addr(a, 230)
    a(f"buffer_load_dwordx3 v[232:234], v230, s[{SRD_WS}:{SRD_WS+3}], 0 offen sc1")
    a.label("L_p2c2_skip")

def attention(a):
    S3 = (aS[0], aS[1], aO)
    def rdK(t):
        buf = aKa if t % 2 == 0 else aKb
        a.ds(f"ds_read_b128 {vr(buf,4)}, v{aKA} offset:{KB + t*4096}", ("K", t))
    def Kf(t): return vr(aKa if t % 2 == 0 else aKb, 4)
    def s1(t):
        a.wait_lg(("K", t))
        c = vr(aB8, 16) if t == 8 else (vr(aB0, 16) if t == 0 else "0")
        a(f"v_mfma_f32_32x32x16_bf16 {vr(S3[t % 3],16)}, {Kf(t)}, {vr(aQ,4)}, {c}")
        if t >= 2: rdK(t - 2)
    a.ds(f"ds_read_b128 {vr(aQ,4)}, v{aQA}", "Q")
    rdK(8); rdK(7)
    a.wait_lg("Q")
    s1(8); s1(7)
    a.nop(6)
    for t in range(8, -1, -1):
        if t >= 2: s1(t - 2)
        elif t == 1: a.nop(2)
        else: a.nop(3)
        s = S3[t % 3]
        if t == 8:
            a.nop(2)
            a(f"v_max3_f32 v{aM}, v{s}, v{s+1}, v{s+2}")
            a(f"v_max_f32 v{aM}, v{aM}, v{s+3}")
            for p in range(2, 8): a(f"v_max3_f32 v{aM}, v{aM}, v{s+2*p}, v{s+2*p+1}")
        else:
            for p in range(8): a(f"v_max3_f32 v{aM}, v{aM}, v{s+2*p}, v{s+2*p+1}")
        if t >= 1:
            a(f"s_cmp_eq_u32 s{sTMIN}, {t}")
            a("s_cbranch_scc1 L_at_p1done")
    a.label("L_at_p1done")
    a.wait_lg0()
    if OPT.get("tsa"): ts(a, 26)
    a(f"s_cmp_lt_u32 s{sW}, 4"); a("s_cbranch_scc1 L_at_vw0")
    nb = 11 if OPT.get("w2reg", 0) else 0
    if OPT.get("ww1", 1): a(f"s_waitcnt vmcnt({2 + nb})")
    else:
        a(f"s_cmp_eq_u32 s{sW}, 7"); a("s_cbranch_scc1 L_at_vw5")
        a(f"s_waitcnt vmcnt({1 + nb})"); a("s_branch L_at_vw1")
        a.label("L_at_vw5")
        a(f"s_waitcnt vmcnt({2 + nb})")
    a("s_branch L_at_vw1")
    a.label("L_at_vw0")
    a("s_waitcnt vmcnt(0)")
    a.label("L_at_vw1")
    a("s_barrier")
    if OPT.get("tsa"): ts(a, 27)
    a(f"v_mov_b32 v{aT}, v{aM}")
    rdK(8); rdK(7)
    a(f"v_permlane32_swap_b32 v{aM}, v{aT}")
    a(f"v_max_f32 v{aM}, v{aM}, v{aT}")
    a(f"v_sub_f32 v{aM}, 0, v{aM}")
    a.nop(8)
    for p in range(8): a(f"v_pk_add_f32 {vr(aC8+2*p,2)}, {vr(aB8+2*p,2)}, {vr(aM,2)} op_sel_hi:[1,0]")
    a(f"v_mov_b32 v{aT}, v{aM}")
    for p in range(8): a(f"v_pk_add_f32 {vr(aC0+2*p,2)}, {vr(aB0+2*p,2)}, {vr(aM,2)} op_sel_hi:[1,0]")
    for r in range(0, 16, 2): a(f"v_pk_mul_f32 {vr(aCm+r,2)}, {vr(aM,2)}, 1.0 op_sel_hi:[1,0]")
    def S(t): return aS[t % 2]
    def rdV(t):
        vb = aV[t % 2]
        a(f"s_mov_b64 exec, s[{sVMASK}:{sVMASK+1}]")
        a.ds(f"ds_read_b128 {vr(vb,4)}, v{aVA} offset:{t*4096}", ("V", t))
        a.ds(f"ds_read_b128 {vr(vb+4,4)}, v{aVA} offset:{t*4096 + 512}", ("V", t))
        a("s_mov_b64 exec, -1")
    def s2(t):
        a.wait_lg(("K", t))
        c = vr(aC8, 16) if t == 8 else (vr(aC0, 16) if t == 0 else vr(aCm, 16))
        a(f"v_mfma_f32_32x32x16_bf16 {vr(S(t),16)}, {Kf(t)}, {vr(aQ,4)}, {c}")
    if OPT.get("tsa"): ts(a, 28)
    rdV(8)
    s2(8)
    rdK(6)
    a.nop(11)
    for t in range(8, -1, -1):
        s = S(t); vb = aV[t % 2]
        for r in range(0, 4): a(f"v_exp_f32 v{s+r}, v{s+r}")
        if t >= 1:
            s2(t - 1)
            if t >= 3: rdK(t - 3)
        for r in range(4, 8): a(f"v_exp_f32 v{s+r}, v{s+r}")
        for p in range(4): a(f"v_cvt_pk_bf16_f32 v{aP+p}, v{s+2*p}, v{s+2*p+1}")
        a.wait_lg(("V", t))
        a(f"v_exp_f32 v{s+8}, v{s+8}")
        a(f"v_mfma_f32_32x32x16_bf16 {vr(aO,16)}, {vr(vb,4)}, {vr(aP,4)}, {'0' if t == 8 else vr(aO,16)}")
        for r in range(9, 16): a(f"v_exp_f32 v{s+r}, v{s+r}")
        if t >= 1: rdV(t - 1)
        for p in range(4, 8): a(f"v_cvt_pk_bf16_f32 v{aP+p}, v{s+2*p}, v{s+2*p+1}")
        if t >= 1: a(f"s_cmp_eq_u32 s{sTMIN}, {t}")
        a.nop(1 if t >= 1 else 2)
        a(f"v_mfma_f32_32x32x16_bf16 {vr(aO,16)}, {vr(vb+4,4)}, {vr(aP+4,4)}, {vr(aO,16)}")
        if t >= 1: a("s_cbranch_scc1 L_at_p2done")
    a.label("L_at_p2done")
    if OPT.get("tsa"): ts(a, 7)
    a.wait_lg0()
    a.nop(12)
    a(f"v_rcp_f32 v{aT}, v{aO+8}")
    a.nop(1)
    for r in range(8): a(f"v_mul_f32 v{aO+r}, v{aO+r}, v{aT}")
    for p in range(4): a(f"v_cvt_pk_bf16_f32 v{aP+p}, v{aO+2*p}, v{aO+2*p+1}")
    a.nop(1)
    dual_store(a, "buffer_store_dwordx4", vr(aP, 4), vL16, SRD_WS, f"s{sO}")
    a.wait_all0()

def src_patterns(a, regs, t0, t1, t2):
    a(f"v_lshrrev_b32 v{t0}, 3, v{vLANE}")
    a(f"v_bfe_u32 v{t1}, v{vLANE}, 4, 2")
    a(f"v_and_b32 v{t2}, 1, v{t1}"); a(f"v_lshlrev_b32 v{t2}, 1, v{t2}"); a(f"v_lshrrev_b32 v{t1}, 1, v{t1}"); a(f"v_or_b32 v{t1}, v{t1}, v{t2}")
    a(f"v_bfe_u32 v{t2}, v{vLANE}, 1, 2"); a(f"v_xor_b32 v{t1}, v{t1}, v{t2}"); a(f"v_lshlrev_b32 v{t1}, 5, v{t1}")
    a(f"v_and_b32 v{t2}, 1, v{vLANE}"); a(f"v_lshl_add_u32 v{t1}, v{t2}, 4, v{t1}")
    for reg, stride in regs:
        a(f"s_mov_b32 s{sT0}, {stride}"); a(f"v_mul_lo_u32 v{t2}, v{t0}, s{sT0}"); a(f"v_add_u32 v{reg}, v{t2}, v{t1}")

pT0, pT1 = 40, 41
pF = 44
def prep_setup(a):
    a(f"s_mov_b32 s{sT2}, 0"); tr_addr(a, pT0, sT2, tmp=(60, 61, 62, 63))
    a(f"s_mov_b32 s{sT2}, 1"); tr_addr(a, pT1, sT2, tmp=(60, 61, 62, 63))
    a(f"s_lshl_b32 s{sT2}, s{sW}, 12"); a(f"s_add_u32 s{sT2}, s{sT2}, {PREP}")
    a(f"v_add_u32 v{pT0}, s{sT2}, v{pT0}"); a(f"v_add_u32 v{pT1}, s{sT2}, v{pT1}")
def prep_fetch(a, srdn, vpat, stride, ssrc, slot, tag):
    for o in range(2):
        a(f"s_lshl_b32 s{sT3}, s{sW}, 12"); a(f"s_add_u32 m0, s{sT3}, {PREP + slot*2048 + o*1024}")
        a(f"s_add_u32 s{sT0}, s{ssrc}, {o*8*stride}")
        a.vm(f"buffer_load_dwordx4 v{vpat}, s[{srdn}:{srdn+3}], s{sT0} offen lds", tag)
def prep_read(a, f, slot, tag):
    a.wait_vm(tag)
    for ct, ad in ((0, pT0), (1, pT1)):
        for h in range(2):
            a.ds(f"ds_read_b64_tr_b16 {vr(f+4*ct+2*h,2)}, v{ad} offset:{slot*2048 + h*1024}", "pf")
    a.wait_lg0()
def prep_store(a, f, sdst):
    for ct in range(2):
        a.vm(f"buffer_store_dwordx4 {vr(f+4*ct,4)}, v{vL16}, s[{SRD_WS}:{SRD_WS+3}], s{sdst} offen offset:{ct*1024} sc1", "pst")
def prep_emit(a, sdst, slot, tag):
    f = pF + 8 * slot
    prep_read(a, f, slot, tag)
    prep_store(a, f, sdst)
def w2_item(a, ssrc, sdst, ks_sgpr):
    a(f"s_lshl_b32 s{ssrc}, s{ks_sgpr}, 14"); a(f"s_lshl_b32 s{sT0}, s{sJ}, 7"); a(f"s_add_u32 s{ssrc}, s{ssrc}, s{sT0}")
    a(f"s_lshl_b32 s{sdst}, s{ks_sgpr}, 11"); a(f"s_mul_i32 s{sT0}, s{sJ}, {J_W2}"); a(f"s_add_u32 s{sdst}, s{sdst}, s{sT0}"); a(f"s_add_u32 s{sdst}, s{sdst}, {WS_W2P}")

def loader_prep(a):
    pA, pB = 88, 89
    a(f"s_cmp_eq_u32 s{sW}, 7"); a("s_cbranch_scc1 L_prep7")
    src_patterns(a, ((vPQ, 3072),), 16, 17, 18)
    a(f"s_sub_u32 s{sT1}, s{sW}, 4")
    a(f"s_add_u32 s{sT2}, s{sT1}, 1"); a(f"s_cmp_eq_u32 s{sT1}, 2"); a(f"s_cselect_b32 s{sT2}, 0, s{sT2}")
    a(f"s_mul_i32 s{pA}, s{sG}, {16*3072}"); a(f"s_lshl_b32 s{sT2}, s{sT2}, 10"); a(f"s_add_u32 s{pA}, s{pA}, s{sT2}")
    a(f"s_lshl_b32 s{sT2}, s{sJ}, 7"); a(f"s_add_u32 s{pA}, s{pA}, s{sT2}")
    prep_fetch(a, SRD_WQ, vPQ, 3072, pA, 0, "p0")
    a(f"s_mul_i32 s{pB}, s{sJ}, {J_WQ}"); a(f"s_lshl_b32 s{sT2}, s{sG}, 11"); a(f"s_add_u32 s{pB}, s{pB}, s{sT2}")
    a(f"s_lshl_b32 s{sT2}, s{sT1}, 16"); a(f"s_add_u32 s{pB}, s{pB}, s{sT2}"); a(f"s_add_u32 s{pB}, s{pB}, {WS_WQP}")
    a("s_branch L_prep_go")
    a.label("L_prep7")
    a.vmq = []
    src_patterns(a, ((vPO, 1024),), 16, 17, 18)
    a(f"s_lshl_b32 s{pA}, s{sG}, 14"); a(f"s_lshl_b32 s{sT2}, s{sJ}, 7"); a(f"s_add_u32 s{pA}, s{pA}, s{sT2}")
    prep_fetch(a, SRD_WO, vPO, 1024, pA, 0, "p0")
    a(f"s_lshl_b32 s{pB}, s{sG}, 11"); a(f"s_lshl_b32 s{sT2}, s{sJ}, 16"); a(f"s_add_u32 s{pB}, s{pB}, s{sT2}"); a(f"s_add_u32 s{pB}, s{pB}, {WS_WOP}")
    a.label("L_prep_go")
    prep_setup(a)
    if OPT["ts"]:
        a.wait_vm("p0"); ts(a, 1)
    prep_emit(a, pB, 0, "p0")
    ts(a, 2)
    a.vmq = []

qF = 212
sQ1, sQ2 = 92, 93
def prep2_fetch(a):
    pA, pC = 88, 89
    a(f"s_cmp_eq_u32 s{sW}, 4"); a("s_cbranch_scc1 L_p2f_skip")
    src_patterns(a, ((vP1, 2752), (vPO, 1024)), 16, 17, 18)
    a(f"s_sub_u32 s{sT1}, s{sW}, 5")
    a(f"s_mul_i32 s{pA}, s{sG}, {16*2752}"); a(f"s_lshl_b32 s{sT2}, s98, 5"); a(f"s_add_u32 s{pA}, s{pA}, s{sT2}")
    a(f"s_lshl_b32 s{sT2}, s{sT1}, 7"); a(f"s_add_u32 s{pA}, s{pA}, s{sT2}")
    a(f"s_mul_i32 s{sQ1}, s{sJ}, {J_WQ}"); a(f"s_lshl_b32 s{sT2}, s{sG}, 11"); a(f"s_add_u32 s{sQ1}, s{sQ1}, s{sT2}")
    a(f"s_lshl_b32 s{sT2}, s{sT1}, 16"); a(f"s_add_u32 s{sQ1}, s{sQ1}, s{sT2}"); a(f"s_add_u32 s{sQ1}, s{sQ1}, {WS_W1P}")
    prep_fetch(a, SRD_W1, vP1, 2752, pA, 0, "q0")
    a(f"s_lshl_b32 s{sT1}, s{sT1}, 5"); a(f"s_add_u32 s{sT1}, s{sT1}, s{sG}")
    w2_item(a, pC, sQ2, sT1)
    a(f"s_cmp_lt_u32 s{sT1}, 86"); a(f"s_cselect_b32 s{sQ2}, s{sQ2}, 0x7ffff000")
    prep_fetch(a, SRD_W2, vPO, 1024, pC, 1, "q1")
    a.label("L_p2f_skip")
    a.vmq = []
def prep2_emit(a):
    a(f"s_cmp_eq_u32 s{sW}, 4"); a("s_cbranch_scc1 L_p2r_skip")
    a("s_waitcnt vmcnt(0)")
    for slot in range(2):
        for ct, ad in ((0, pT0), (1, pT1)):
            for h in range(2):
                a(f"ds_read_b64_tr_b16 {vr(qF+8*slot+4*ct+2*h,2)}, v{ad} offset:{slot*2048 + h*1024}")
    a("s_waitcnt lgkmcnt(0)")
    for q, sd in ((0, sQ1), (1, sQ2)):
        for ct in range(2):
            a(f"buffer_store_dwordx4 {vr(qF+8*q+4*ct,4)}, v{vL16}, s[{SRD_WS}:{SRD_WS+3}], s{sd} offen offset:{ct*1024} sc1")
    a.label("L_p2r_skip")

def loader_prologue(a):
    t0, t1, t2 = 16, 17, 18
    a(f"s_mul_i32 s{sT0}, s{sJ}, {J_WQ}"); a(f"s_add_u32 s{sT0}, s{sT0}, s{sI1K}")
    a(f"s_add_u32 s{sWQb}, s{sT0}, {WS_WQP}"); a(f"s_add_u32 s{sW1b}, s{sT0}, {WS_W1P}")
    a(f"s_lshl_b32 s{sWOb}, s{sJ}, 16"); a(f"s_add_u32 s{sWOb}, s{sWOb}, s{sI1K}"); a(f"s_add_u32 s{sWOb}, s{sWOb}, {WS_WOP}")
    a(f"s_mul_i32 s{sW2b}, s{sJ}, {J_W2}"); a(f"s_add_u32 s{sW2b}, s{sW2b}, s{sI1K}"); a(f"s_add_u32 s{sW2b}, s{sW2b}, {WS_W2P}")
    a(f"v_add_u32 v{vLI[0]}, s{sI1K}, v{vL16}"); three_bases(a, vLI)
    a(f"s_and_b32 s{sT0}, s{sI}, 1"); a(f"s_lshr_b32 s{sT1}, s{sI}, 1")
    a(f"s_lshl_b32 s{sXA}, s{sG}, 16"); a(f"s_lshl_b32 s{sT2}, s{sT0}, 15"); a(f"s_add_u32 s{sXA}, s{sXA}, s{sT2}")
    a(f"s_lshl_b32 s{sT2}, s{sT1}, 10"); a(f"s_add_u32 s{sXA}, s{sXA}, s{sT2}"); a(f"s_add_u32 s{sXA}, s{sXA}, {WS_XA}")
    a(f"s_mov_b32 s{sTT}, s{sT0}")
    a(f"s_sub_i32 s{sKVr}, s{sG}, 4"); a(f"s_lshl_b32 s{sKVr}, s{sKVr}, 3"); a(f"s_add_i32 s{sKVr}, s{sKVr}, s{sJ}"); a(f"s_lshl_b32 s{sKVr}, s{sKVr}, 14")
    a(f"s_add_i32 s{sKVr}, s{sKVr}, s{sI1K}"); a(f"s_add_i32 s{sKVr}, s{sKVr}, {WS_KV}")
    a(f"s_lshl_b32 s{sT0}, s{sG}, 7")
    a(f"v_and_b32 v{t0}, 7, v{vLANE}"); a(f"v_lshlrev_b32 v{t0}, 2, v{t0}"); a(f"v_add_u32 v{vPOLL}, s{sT0}, v{t0}")
    a(f"s_lshl_b32 s{sT1}, s{sJ}, 2"); a(f"s_add_u32 s{sT0}, s{sT0}, s{sT1}"); a(f"v_mov_b32 v{vFLAG}, s{sT0}")
    a(f"v_lshlrev_b32 v{vSTA}, 6, v{vLANE}")
    a(f"v_and_b32 v{t0}, 31, v{vLANE}"); a(f"v_lshlrev_b32 v{t0}, 2, v{t0}"); a(f"v_lshrrev_b32 v{t1}, 5, v{vLANE}"); a(f"v_lshl_add_u32 v{t0}, v{t1}, 8, v{t0}")
    a(f"s_lshl_b32 s{sT0}, s{sTT}, 7"); a(f"s_add_u32 s{sT0}, s{sT0}, {ST_MEAN}"); a(f"v_add_u32 v{vSTW}, s{sT0}, v{t0}")
    a(f"s_mov_b32 s{sC1}, {f2u(1.0/512.0)}"); a(f"s_mov_b32 s{sC2}, {f2u(EPS)}")

def wq_unit(a, u): dma(a, SRD_WS, vL16, sWQb, u * 4096, slot_p1(u), ("W", u), "sc1")
def w1_unit(a, u): dma(a, SRD_WS, vL16, sW1b, u * 4096, slot_p4(u), ("W", u), "sc1")
def wo_unit(a, m): dma(a, SRD_WS, vL16, sWOb, m * 4096, WOB + 4 * K * m, ("WO", m), "sc1")
def w2_unit(a, m): dma(a, SRD_WS, vL16, sW2b, m * 4096, slot_p5(m), ("W2", m), "sc1")
def w2_from_regs(a, m):
    li = LdsBase(vLI)
    r, off = li.at(slot_p5(m))
    a.ds(f"ds_write_b128 v{r}, {vr(212 + 4*(m - 32), 4)} offset:{off}", ("w2r", m))
def a_pair(a, m, abase):
    dma(a, SRD_WS, vL16, sXA, m * 2048, abase + m * 4096, ("A", m), "sc1")

PV = (80, 81, 82, 83, 84, 85)
def poll_loop(a, name, vaddr, vdat):
    lab = f"L_{name}"
    a(f"s_mov_b32 s{sSPIN}, {OPT['spin']}")
    a.label(lab)
    a(f"buffer_load_dword v{vdat}, v{vaddr}, s[{SRD_WS}:{SRD_WS+3}], 0 offen sc1")
    a("s_waitcnt vmcnt(0)")
    a(f"v_subrev_u32 v{vdat}, s{sVAL}, v{vdat}")
    a(f"v_cmp_le_u32 vcc, 8, v{vdat}")
    a(f"s_sub_u32 s{sSPIN}, s{sSPIN}, 1")
    a(f"s_cbranch_scc1 {lab}_x")
    a(f"s_cbranch_vccnz {lab}")
    a.label(f"{lab}_x")
def poll(a, name, vaddr): poll_loop(a, name, vaddr, PV[0])

def publish_local(a, name, ev):
    vf, vp, vv = PV[1], PV[2], PV[3]
    a(f"s_cmp_lg_u32 s{sW}, 0")
    a(f"s_cbranch_scc1 L_{name}_skip")
    a(f"s_lshl_b32 s{sT1}, s{sG}, 7"); a(f"s_lshl_b32 s{sT2}, s{sJ}, 2"); a(f"s_add_u32 s{sT2}, s{sT2}, s{sT1}")
    a(f"s_lshl_b32 s{sVAL}, s{sPAIR}, 2"); a(f"s_add_u32 s{sVAL}, s{sVAL}, {ev}"); a(f"s_add_u32 s{sVAL}, s{sVAL}, s{sEP}")
    a(f"v_mov_b32 v{vf}, s{sT2}"); a(f"v_mov_b32 v{vv}, s{sVAL}")
    a(f"s_mov_b64 s[{sEXEC}:{sEXEC+1}], exec"); a("s_mov_b64 exec, 1")
    a(f"s_cmp_eq_u32 s{sFAST}, 0")
    a(f"s_cbranch_scc1 L_{name}_sl")
    a(f"buffer_store_dword v{vv}, v{vf}, s[{SRD_WS}:{SRD_WS+3}], 0 offen")
    a(f"s_branch L_{name}_st")
    a.label(f"L_{name}_sl")
    a(f"buffer_store_dword v{vv}, v{vf}, s[{SRD_WS}:{SRD_WS+3}], 0 offen sc1")
    a.label(f"L_{name}_st")
    a(f"s_mov_b64 exec, s[{sEXEC}:{sEXEC+1}]")
    a(f"v_and_b32 v{vp}, 7, v{vLANE}"); a(f"v_lshlrev_b32 v{vp}, 2, v{vp}"); a(f"v_add_u32 v{vp}, s{sT1}, v{vp}")
    poll(a, name + "_p", vp)
    a.label(f"L_{name}_skip")

KVP = (20, 21, 22, 23, 24)
def kv_flag_store(a, wave, which, regs, name):
    v1_, v2_ = regs
    a(f"s_cmp_lg_u32 s{sW}, {wave}")
    a(f"s_cbranch_scc1 L_{name}_skip")
    a(f"s_lshl_b32 s{sT1}, s{sG}, 3"); a(f"s_add_u32 s{sT1}, s{sT1}, s{sJ}"); a(f"s_lshl_b32 s{sT1}, s{sT1}, 7"); a(f"s_add_u32 s{sT1}, s{sT1}, {WS_FLAGR + 4*which}")
    a(f"s_add_u32 s{sVAL}, s{sPAIRN}, 1"); a(f"s_add_u32 s{sVAL}, s{sVAL}, s{sEP}")
    a(f"v_mov_b32 v{v1_}, s{sVAL}"); a(f"v_mov_b32 v{v2_}, s{sT1}")
    a(f"s_mov_b64 s[{sEXEC}:{sEXEC+1}], exec"); a("s_mov_b64 exec, 1")
    a(f"buffer_store_dword v{v1_}, v{v2_}, s[{SRD_WS}:{SRD_WS+3}], 0 offen sc1")
    a(f"s_mov_b64 exec, s[{sEXEC}:{sEXEC+1}]")
    a.label(f"L_{name}_skip")

def kv_pred_addr(a, v2_, v3_, which):
    a(f"v_and_b32 v{v2_}, 3, v{vLANE}"); a(f"v_add_u32 v{v2_}, 1, v{v2_}"); a(f"v_sub_u32 v{v2_}, s{sG}, v{v2_}")
    a(f"v_cmp_gt_i32 vcc, 0, v{v2_}"); a(f"v_mov_b32 v{v3_}, s{sG}"); a("s_nop 1"); a(f"v_cndmask_b32 v{v2_}, v{v2_}, v{v3_}, vcc")
    a(f"v_lshlrev_b32 v{v2_}, 3, v{v2_}"); a(f"v_add_u32 v{v2_}, s{sJ}, v{v2_}"); a(f"v_lshlrev_b32 v{v2_}, 7, v{v2_}"); a(f"v_add_u32 v{v2_}, {WS_FLAGR + 4*which}, v{v2_}")

def poll_r(a, name, vaddr, vdat): poll_loop(a, name, vaddr, vdat)

def die_check_issue(a):
    a(f"v_and_b32 v24, 7, v{vLANE}"); a(f"v_lshlrev_b32 v24, 5, v24"); a(f"v_add_u32 v24, s{sG}, v24")
    a(f"v_lshlrev_b32 v24, 7, v24"); a(f"v_add_u32 v24, {WS_PREPF}, v24")
    a.vm(f"buffer_load_dwordx2 v[28:29], v24, s[{SRD_WS}:{SRD_WS+3}], 0 offen sc1", "die")
def die_check(a):
    a.wait_vm("die")
    a(f"s_cmp_lg_u32 s{sW}, 4"); a("s_cbranch_scc1 L_die_skip")
    a(f"s_add_u32 s{sVAL}, s{sEP}, 1")
    a(f"s_mov_b32 s{sSPIN}, {OPT['spin']}")
    a.label("L_die_loop")
    a(f"v_subrev_u32 v28, s{sVAL}, v28")
    a(f"v_cmp_le_u32 vcc, 8, v28")
    a(f"s_sub_u32 s{sSPIN}, s{sSPIN}, 1")
    a("s_cbranch_scc1 L_die_x")
    a("s_cbranch_vccz L_die_x")
    a(f"buffer_load_dwordx2 v[28:29], v24, s[{SRD_WS}:{SRD_WS+3}], 0 offen sc1")
    a("s_waitcnt vmcnt(0)")
    a("s_branch L_die_loop")
    a.label("L_die_x")
    a(f"s_getreg_b32 s{sT2}, hwreg(HW_REG_XCC_ID, 0, 3)")
    a(f"v_cmp_ne_u32 vcc, s{sT2}, v29")
    a("s_nop 4")
    a(f"s_cmp_eq_u64 vcc, 0")
    a(f"s_cselect_b32 s{sT1}, 1, 0")
    if OPT.get("slow"): a(f"s_mov_b32 s{sT1}, 0")
    a(f"v_mov_b32 v28, s{sT1}"); a(f"v_mov_b32 v29, {MODEW}")
    a(f"ds_write_b32 v29, v28")
    a("s_waitcnt lgkmcnt(0)")
    a.label("L_die_skip")

def kv_wait_k(a, ph):
    v0_, v1_, v2_, v3_, v4_ = KVP
    a(f"s_cmp_lg_u32 s{sW}, 4")
    a(f"s_cbranch_scc1 L_{ph}_kw_skip")
    kv_pred_addr(a, v2_, v3_, 0)
    a(f"s_add_u32 s{sVAL}, s{sPAIRN}, 1"); a(f"s_add_u32 s{sVAL}, s{sVAL}, s{sEP}")
    poll_r(a, f"{ph}_kp", v2_, v0_)
    a.label(f"L_{ph}_kw_skip")

def kv_wait_v(a):
    v0_, v1_, v2_, v3_, v4_ = KVP
    a(f"s_cmp_lg_u32 s{sW}, 4")
    a(f"s_cbranch_scc1 L_vw_skip")
    kv_pred_addr(a, v2_, v3_, 1)
    a(f"s_add_u32 s{sVAL}, s{sPAIR}, 1"); a(f"s_add_u32 s{sVAL}, s{sVAL}, s{sEP}")
    poll_r(a, "vp", v2_, v0_)
    a.label(f"L_vw_skip")

def kv_dma(a, part):
    a(f"s_lshl_b32 s{sT2}, s{sPAIR}, 22"); a(f"s_add_i32 s{sT2}, s{sT2}, s{sKVr}")
    for b in range(3, -1, -1):
        lab = f"L_kv{part}{b}"
        a(f"s_cmp_lt_u32 s{sG}, {4-b}")
        a(f"s_cbranch_scc1 {lab}")
        for h in range(2):
            dma(a, SRD_WS, vL16, sT2, b * 8 * 16384 + part * 8192 + h * 4096, (KB if part == 0 else VB) + b * 8192 + h * 4096, "KV", "nt sc1" if OPT.get("nt", 0) & 4 else "sc1")
        a.label(lab)

def xcd_touch_ws(a, base, share, npieces, vpat):
    a(f"s_lshr_b32 s{sT1}, s2, 3"); a(f"s_and_b32 s{sT1}, s{sT1}, 31"); a(f"s_mul_i32 s{sT1}, s{sT1}, {share}")
    a(f"s_lshl_b32 s{sT2}, s{sI}, 13"); a(f"s_add_u32 s{sT1}, s{sT1}, s{sT2}")
    touch(a, SRD_WS, vpat, sT1, base)
    a(f"s_cmp_ge_u32 s{sI}, 2"); a("s_cbranch_scc1 L_xt_skip")
    touch(a, SRD_WS, vpat, sT1, base + 4 * 8192)
    a.label("L_xt_skip")

def xcd_touch(a, srdn, share, npieces, vpat, dst):
    a(f"s_lshr_b32 s{sT1}, s2, 3"); a(f"s_and_b32 s{sT1}, s{sT1}, 31"); a(f"s_mul_i32 s{sT1}, s{sT1}, {share}")
    a(f"s_lshl_b32 s{sT2}, s{sI}, 13"); a(f"s_add_u32 s{sT1}, s{sT1}, s{sT2}")
    for p in range(0, npieces, 4): touch(a, srdn, vpat, sT1, p * 8192, dst)

def loader_stats_issue(a):
    a(f"s_lshl_b32 s{sT1}, s{sTT}, 12"); a(f"s_add_u32 s{sT1}, s{sT1}, s{sSTATS}")
    for q in range(4):
        a.vm(f"buffer_load_dwordx4 {vr(32+4*q,4)}, v{vL16}, s[{SRD_WS}:{SRD_WS+3}], s{sT1} offen offset:{1024*q} sc1", "ST")
def loader_stats_items(a, double_ln):
    I = lambda txt: (lambda: a(txt))
    s1 = [lambda: a.wait_vm("ST")] + [I(f"v_add_f32 v{32+e}, v{32+e}, v{40+e}") for e in range(8)]
    s2 = [I(f"v_add_f32 v{32+e}, v{32+e}, v{36+e}") for e in range(4)] + [I("v_add_f32 v32, v32, v34"), I("v_add_f32 v33, v33, v35"), I("v_add_f32 v32, v32, v33")]
    t0, t1, t2, t3, v = 48, 49, 50, 51, 32
    def f1():
        a(f"v_mov_b32 v{t0}, v{v}")
        a(f"v_cmp_gt_u32 s[{sEXEC}:{sEXEC+1}], 32, v{vLANE}")
        a.nop(1)
        a(f"v_permlane32_swap_b32 v{v}, v{t0}")
        a(f"v_mul_f32 v{v}, s{sC1}, v{v}"); a(f"v_mul_f32 v{t0}, s{sC1}, v{t0}")
        a(f"v_fma_f32 v{t0}, -v{v}, v{v}, v{t0}"); a(f"v_max_f32 v{t0}, 0, v{t0}"); a(f"v_add_f32 v{t1}, s{sC2}, v{t0}")
        a(f"v_rsq_f32 v{t1}, v{t1}")
        a.nop(1)
    def f2():
        if double_ln:
            a(f"v_mul_f32 v{t2}, v{t1}, v{t1}"); a(f"v_mul_f32 v{t2}, v{t2}, v{t0}"); a(f"v_add_f32 v{t2}, s{sC2}, v{t2}")
            a(f"v_rsq_f32 v{t2}, v{t2}")
            a.nop(1)
            a(f"v_mul_f32 v{t1}, v{t1}, v{t2}")
        a(f"v_cndmask_b32 v{t3}, v{t1}, v{v}, s[{sEXEC}:{sEXEC+1}]")
        a.ds(f"ds_write_b32 v{vSTW}, v{t3}", "stw")
    return {6: s1 + s2, 7: [f1, f2]}

def prep_signal(a):
    v0_, v1_, v2_ = 20, 21, 22
    a(f"s_cmp_lg_u32 s{sW}, 4"); a("s_cbranch_scc1 L_sig_skip0")
    a(f"s_getreg_b32 s{sT1}, hwreg(HW_REG_XCC_ID, 0, 3)")
    a(f"s_add_u32 s{sVAL}, s{sEP}, 1")
    a(f"s_lshl_b32 s{sT2}, s{sJ}, 5"); a(f"s_add_u32 s{sT2}, s{sT2}, s{sG}"); a(f"s_lshl_b32 s{sT2}, s{sT2}, 7"); a(f"s_add_u32 s{sT2}, s{sT2}, {WS_PREPF}")
    a(f"v_mov_b32 v{v0_}, s{sVAL}"); a(f"v_mov_b32 v{v0_+1}, s{sT1}"); a(f"v_mov_b32 v{v2_}, s{sT2}")
    a(f"s_mov_b64 s[{sEXEC}:{sEXEC+1}], exec"); a("s_mov_b64 exec, 1")
    a(f"buffer_store_dwordx2 v[{v0_}:{v0_+1}], v{v2_}, s[{SRD_WS}:{SRD_WS+3}], 0 offen sc1")
    a(f"s_mov_b64 exec, s[{sEXEC}:{sEXEC+1}]")
    a.label("L_sig_skip0")
def prep_wait(a):
    v2_ = 22
    a(f"s_cmp_lg_u32 s{sW}, 4"); a("s_cbranch_scc1 L_sig_skip")
    a(f"s_add_u32 s{sVAL}, s{sEP}, 1")
    a(f"v_and_b32 v{v2_}, 31, v{vLANE}"); a(f"s_lshl_b32 s{sT2}, s{sJ}, 5"); a(f"v_add_u32 v{v2_}, s{sT2}, v{v2_}")
    a(f"v_lshlrev_b32 v{v2_}, 7, v{v2_}"); a(f"v_add_u32 v{v2_}, {WS_PREPF}, v{v2_}")
    a(f"s_mov_b32 exec_hi, 0")
    poll_loop(a, "sig", v2_, 23)
    a("s_mov_b64 exec, -1")
    a.label("L_sig_skip")
    ts(a, 19)
    a.bar("prepgo")

def prep_signal2(a):
    a(f"s_cmp_lg_u32 s{sW}, 4"); a("s_cbranch_scc1 L_sig2_skip")
    a(f"s_add_u32 s{sVAL}, s{sEP}, 2")
    a(f"s_lshl_b32 s{sT2}, s{sJ}, 5"); a(f"s_add_u32 s{sT2}, s{sT2}, s{sG}"); a(f"s_lshl_b32 s{sT2}, s{sT2}, 7"); a(f"s_add_u32 s{sT2}, s{sT2}, {WS_PREPF}")
    a(f"v_mov_b32 v20, s{sVAL}"); a(f"v_mov_b32 v22, s{sT2}")
    a(f"s_mov_b64 s[{sEXEC}:{sEXEC+1}], exec"); a("s_mov_b64 exec, 1")
    a(f"buffer_store_dword v20, v22, s[{SRD_WS}:{SRD_WS+3}], 0 offen sc1")
    a(f"s_mov_b64 exec, s[{sEXEC}:{sEXEC+1}]")
    a.label("L_sig2_skip")
def _prep2_addr(a):
    a(f"v_and_b32 v26, 31, v{vLANE}"); a(f"s_lshl_b32 s{sT2}, s{sJ}, 5"); a(f"v_add_u32 v26, s{sT2}, v26")
    a(f"v_lshlrev_b32 v26, 7, v26"); a(f"v_add_u32 v26, {WS_PREPF}, v26")
def prep_check2_issue(a):
    _prep2_addr(a)
    a(f"s_mov_b32 exec_hi, 0")
    a.vm(f"buffer_load_dword v27, v26, s[{SRD_WS}:{SRD_WS+3}], 0 offen sc1", "s2")
    a("s_mov_b64 exec, -1")
def prep_check2(a):
    a.wait_vm("s2")
    a(f"s_add_u32 s{sVAL}, s{sEP}, 2")
    a(f"s_mov_b32 exec_hi, 0")
    a(f"v_subrev_u32 v27, s{sVAL}, v27")
    a(f"v_cmp_le_u32 vcc, 8, v27")
    a("s_cbranch_vccz L_s2_ok")
    poll_loop(a, "s2p", 26, 27)
    a.label("L_s2_ok")
    a("s_mov_b64 exec, -1")

cFB, cACC, cSEL, cAD = (64, 68, 72, 76), 80, 84, 88
def colsum_setup(a, csf):
    a(f"v_bfe_u32 v89, v{vLANE}, 4, 1"); a(f"v_and_b32 v90, 15, v{vLANE}")
    a(f"v_cmp_eq_u32 s[{sEXEC}:{sEXEC+1}], v89, v90")
    a(f"v_mov_b32 v91, 0x3f803f80"); a(f"v_mov_b32 v92, 0")
    a.nop(1)
    for q in range(4): a(f"v_cndmask_b32 v{cSEL+q}, v92, v91, s[{sEXEC}:{sEXEC+1}]")
    a(f"s_lshl_b32 s{sT1}, s{sI}, 7"); a(f"s_add_u32 s{sT1}, s{sT1}, {csf}")
    a(f"v_lshlrev_b32 v{cAD}, 2, v{vLANE}"); a(f"v_add_u32 v{cAD}, s{sT1}, v{cAD}")
def colsum_read(a, slot, st):
    li = LdsBase(vLI)
    for q in range(4):
        r, off = li.at(slot(2*st + (q >> 1)) + (q & 1) * 2048)
        a(f"ds_read_b128 {vr(cFB[q],4)}, v{r} offset:{off}")
def colsum_acc(a, st):
    a("s_waitcnt lgkmcnt(0)")
    first = st % 8 == 0
    for q in range(4):
        a(f"v_mfma_f32_16x16x32_bf16 {vr(cACC,4)}, {vr(cSEL,4)}, {vr(cFB[q],4)}, {'0' if (first and q == 0) else vr(cACC,4)}")
def colsum_flush(a, T):
    a.nop(8)
    a(f"s_mov_b64 exec, s[{sM16}:{sM16+1}]")
    a(f"ds_write_b32 v{cAD}, v{cACC} offset:{T*256}"); a(f"ds_write_b32 v{cAD}, v{cACC+1} offset:{T*256 + 64}")
    a("s_mov_b64 exec, -1")
def colsum_hooks(a, slot, st, ph):
    lab = f"L_{ph}_cs{st}_{len(a.L)}"
    a(f"s_cmp_ge_u32 s{sI}, 2"); a(f"s_cbranch_scc1 {lab}")
    if st >= 1:
        colsum_acc(a, st - 1)
        if (st - 1) % 8 == 7: colsum_flush(a, (st - 1) // 8)
    colsum_read(a, slot, st)
    if st == 23:
        colsum_acc(a, 23); colsum_flush(a, 2); a("s_waitcnt lgkmcnt(0)")
    a.label(lab)

LA = OPT.get('la', 6)
def gemm192_loader(a, ph, unit, slot, abase, double_ln, extra, colsum=None):
    if colsum is not None: colsum_setup(a, colsum)
    for m in range(2 * LA): a_pair(a, m, abase)
    nxt = 22
    extra = list(extra)
    items = loader_stats_items(a, double_ln)
    for st in range(24):
        need = []
        if st < 8: need += [("A", 2*st), ("A", 2*st + 1)]
        need += [("W", 2*st), ("W", 2*st + 1)]
        a.wait_vm(need)
        if st == 9 or (colsum is not None and st == 17): a.wait_lg0()
        a.bar(f"{ph}_B{st}")
        if st == 22 and ph.startswith("p1"): kv_flag_store(a, 4, 0, (KVP[1], KVP[2]), ph + "_kf")
        if OPT.get("ts3") == ph: ts(a, 36 + st)
        elif st in (0, 4, 8, 16) and not OPT.get("ts3"): ts(a, (20 if ph.startswith("p1") else 30) + {0: 0, 4: 5, 8: 1, 16: 2}[st])
        if colsum is not None: colsum_hooks(a, slot, st, ph)
        if st + LA < 8:
            a_pair(a, 2*(st + LA), abase); a_pair(a, 2*(st + LA) + 1, abase)
        elif st == 8 - LA:
            loader_stats_issue(a)
        elif nxt < 48:
            unit(a, nxt); unit(a, nxt + 1); nxt += 2
        else:
            for _ in range(2):
                if extra: extra.pop(0)()
        for f in items.get(st, []): f()
    a.bar(f"{ph}_end")
    while extra: extra.pop(0)()

def p1_loader(a, v1):
    ph = "p1a" if v1 else "p1b"
    wo = [(lambda m=m: wo_unit(a, m)) for m in range(16)]
    if v1:
        colsum_setup(a, CSF_Q)
        pre = OPT.get("p1pre", 12)
        for u in range(pre): wq_unit(a, u)
        nxt = pre
        for st in range(24):
            a.wait_vm([("W", 2*st), ("W", 2*st + 1)])
            if st in (9, 17): a.wait_lg0()
            a.bar(f"{ph}_B{st}")
            if st == 22: kv_flag_store(a, 4, 0, (KVP[1], KVP[2]), ph + "_kf")
            if st == 1: prep_signal2(a)
            if st == 8: die_check_issue(a)
            if st == 12: prep_check2_issue(a)
            if st == 13: die_check(a)
            if st == 17: prep_check2(a)
            if OPT.get("ts3") == ph: ts(a, 36 + st)
            colsum_hooks(a, slot_p1, st, ph)
            if nxt < 48 and (nxt < 22 or st >= (nxt + 1 - 22) // 2 + 2):
                wq_unit(a, nxt); wq_unit(a, nxt + 1); nxt += 2
            elif st >= 18:
                for _ in range(3):
                    if wo: wo.pop(0)()
        a.bar(f"{ph}_end")
        while wo: wo.pop(0)()
    else:
        gemm192_loader(a, ph, wq_unit, slot_p1, A_P1, False, wo)
    kv_wait_k(a, ph)
    a.bar(f"{ph}_pubkv")

def _vf(a):
    kv_flag_store(a, 0, 1, (PV[1], PV[2]), "vf")

def read_mode(a):
    lab = a.name + "_mode"
    a(f"s_cmp_lg_u32 s{sPAIR}, 0")
    a(f"s_cbranch_scc1 {lab}")
    a(f"v_mov_b32 v{aT}, {MODEW}")
    a(f"ds_read_b32 v{aT}, v{aT}")
    a("s_waitcnt lgkmcnt(0)")
    a(f"v_readfirstlane_b32 s{sFAST}, v{aT}")
    a.label(lab)

def ts_real(a, idx):
    if not OPT["ts"]: return
    a.wait_lg0()
    a(f"s_memrealtime s[{sTS}:{sTS+1}]")
    a("s_waitcnt lgkmcnt(0)")
    a(f"v_writelane_b32 v{vTS}, s{sTS}, {idx}")

def span_stamp(a, which):
    if not OPT.get("span"): return
    a(f"s_memrealtime s[{sTS}:{sTS+1}]")
    a("s_waitcnt lgkmcnt(0)")
    a(f"s_cmp_lg_u32 s{sW}, 0"); a(f"s_cbranch_scc1 L_span{which}")
    a(f"s_lshl_b32 s{sT1}, s2, 3"); a(f"s_add_u32 s{sT1}, s{sT1}, {WS_TS + 4*which}")
    a(f"v_mov_b32 v80, s{sTS}"); a(f"v_mov_b32 v81, s{sT1}")
    a("s_mov_b64 exec, 1")
    a(f"buffer_store_dword v80, v81, s[{SRD_WS}:{SRD_WS+3}], 0 offen")
    a("s_mov_b64 exec, -1")
    a.label(f"L_span{which}")

def dump_ts(a):
    if not OPT["ts"]: return
    a(f"s_lshl_b32 s{sT1}, s2, 3"); a(f"s_add_u32 s{sT1}, s{sT1}, s{sW}"); a(f"s_lshl_b32 s{sT1}, s{sT1}, 8"); a(f"s_add_u32 s{sT1}, s{sT1}, {WS_TS}")
    a(f"v_lshlrev_b32 v{aT}, 2, v{vLANE}")
    a(f"buffer_store_dword v{vTS}, v{aT}, s[{SRD_WS}:{SRD_WS+3}], s{sT1} offen")

def stop_here(a, name):
    if OPT["stop"] == name:
        dump_ts(a)
        a("s_waitcnt vmcnt(0) lgkmcnt(0)")
        a("s_endpgm")

def build():
    top = Stream("t")
    common_init(top)
    c = Stream("c")
    span_stamp(c, 0)
    if OPT.get("exit0"):
        span_stamp(c, 1) if False else None
        c("s_waitcnt vmcnt(0)"); c("s_endpgm")
    ts(c, 0)
    ts_real(c, 62)
    compute_prologue(c)
    p1_compute(c, True)
    c.label("L_c_loop")
    ts(c, 3)
    if not OPT.get("vearly", 1): _vf(c)
    read_mode(c)
    attention_setup(c)
    c.bar("kready")
    ts(c, 4)
    c("s_branch L_attn")
    c.label("L_c_postattn")
    ts(c, 5)
    c.bar("pubo")
    publish_local(c, "o", 1)
    c.bar("goo")
    stop_here(c, "p2")
    ts(c, 6)
    p3_compute(c)
    stop_here(c, "p3")
    ts(c, 10)
    p4_compute(c)
    stop_here(c, "p4")
    ts(c, 12)
    p5_compute_main(c)
    ts(c, 14)
    c(f"s_cmp_lg_u32 s{sPAIR}, 0")
    c("s_cbranch_scc1 L_c_final")
    st = c.state()
    red_epilogue(c, "p5a", RB_P5, True, False, False)
    c.wait_all0()
    c.bar("p5a_pub")
    publish_local(c, "x2", 4)
    c.bar("p5a_go")
    stop_here(c, "p5")
    ts(c, 16)
    c(f"s_add_u32 s{sKVw}, s{sKVw}, {1 << 22}")
    c(f"s_mov_b32 s{sPAIRN}, 1")
    p1_compute(c, False)
    c(f"s_mov_b32 s{sPAIR}, 1")
    if OPT["ts"]:
        dump_ts(c); c("s_waitcnt vmcnt(0)"); c(f"v_mov_b32 v{vTS}, 0"); c(f"s_add_u32 s2, s2, 256")
    c("s_branch L_c_loop")
    c.label("L_c_final")
    c.set_state(st)
    red_epilogue(c, "p5b", RB_P5, True, True, False)
    c(f"s_or_b32 s{sT1}, s{sG}, s{sJ}"); c(f"s_or_b32 s{sT1}, s{sT1}, s{sW}")
    c(f"s_cmp_lg_u32 s{sT1}, 0"); c("s_cbranch_scc1 L_c_noep")
    c(f"v_mov_b32 v80, s{sEP}"); c(f"v_mov_b32 v81, {WS_EPOCH}")
    c(f"s_mov_b64 s[{sEXEC}:{sEXEC+1}], exec"); c("s_mov_b64 exec, 1")
    c(f"buffer_store_dword v80, v81, s[{SRD_WS}:{SRD_WS+3}], 0 offen sc1")
    c(f"s_mov_b64 exec, s[{sEXEC}:{sEXEC+1}]")
    c.label("L_c_noep")
    ts(c, 17)
    ts_real(c, 63)
    dump_ts(c)
    if OPT.get("span"): c("s_waitcnt vmcnt(0)")
    span_stamp(c, 1)
    c("s_waitcnt vmcnt(0)")
    c("s_endpgm")
    l = Stream("l")
    vT128 = 10
    l.label("L_loader")
    if OPT.get("exit0"): l("s_endpgm")
    ts(l, 0)
    if OPT.get("lprio", 1): l(f"s_setprio {OPT.get('lprio', 1)}")
    loader_prep(l)
    if OPT.get("early2", 1): prep2_fetch(l)
    loader_prologue(l)
    l(f"v_lshlrev_b32 v{vT128}, 7, v{vLANE}")
    if OPT.get("touch", 1) and OPT.get("cpf", 3) < 2:
        l(f"s_cmp_lg_u32 s{sW}, 7"); l("s_cbranch_scc1 L_l_t3")
        l("s_getpc_b64 s[94:95]")
        l.label("L_l_pc")
        l(f"s_sub_u32 s94, s94, L_l_pc-{NAME}_kernel"); l("s_subb_u32 s95, s95, 0")
        l(f"s_lshr_b32 s{sT1}, s2, 3"); l(f"s_lshl_b32 s{sT2}, s{sT1}, 11"); l(f"v_add_u32 v25, s{sT2}, v{vT128}")
        l(f"s_mov_b32 s{sT2}, L_exit-{NAME}_kernel"); l(f"v_min_u32 v25, s{sT2}, v25")
        l(f"s_mov_b64 exec, s[{sM16}:{sM16+1}]")
        l(f"s_mov_b32 m0, {DUMMY}"); l("s_nop 0")
        l(f"global_load_lds_dword v25, s[94:95]")
        l("s_mov_b64 exec, -1")
        l.label("L_l_t3")
    l(f"v_mov_b32 v20, {CNTW}"); l("v_mov_b32 v21, 0")
    l("ds_write_b32 v20, v21")
    if OPT.get("early2", 1):
        l(f"s_cmp_eq_u32 s{sW}, 4"); l("s_cbranch_scc1 L_l_w40")
        l("s_waitcnt vmcnt(4) lgkmcnt(0)"); l("s_branch L_l_w41")
        l.label("L_l_w40")
        l("s_waitcnt vmcnt(0) lgkmcnt(0)")
        l.label("L_l_w41")
        l.vmq = []; l.lg = []
    else: l.wait_all0()
    l(f"s_add_u32 s{sEP}, s{sEP}, 16")
    ts(l, 13)
    l.bar("prep")
    ts(l, 15)
    prep_signal(l)
    if not OPT.get("early2", 1): prep2_fetch(l)
    prep2_emit(l)
    prep_wait(l)
    ts(l, 18)
    p1_loader(l, True)
    l.label("L_l_loop")
    ts(l, 3)
    kv_dma(l, 0)
    read_mode(l)
    attention_setup(l)
    kv_wait_v(l)
    l.wait_vm0()
    l.bar("kready")
    kv_dma(l, 1)
    if OPT.get("ww1", 1): warm_w1(l)
    warm_exchange(l)
    if OPT.get("w2reg", 0):
        for q in range(11):
            l(f"s_add_u32 s{sT0}, s{sW2b}, {(32 + q) * 4096}")
            l(f"buffer_load_dwordx4 {vr(212 + 4*q, 4)}, v{vL16}, s[{SRD_WS}:{SRD_WS+3}], s{sT0} offen sc1")
    l.vmq = []
    ts(l, 4)
    TOUCH = OPT.get("touch", 1)
    if OPT.get("lprio", 1) and not OPT.get("aprio", 0): l("s_setprio 0")
    l("s_branch L_attn")
    l.label("L_l_postattn")
    l.vmq = []; l.lg = []
    if OPT.get("lprio", 1): l(f"s_setprio {OPT.get('lprio', 1)}")
    ts(l, 5)
    l.bar("pubo")
    o1 = OPT.get("o1", 10); o2 = o1 + OPT.get("o2", 6); o3 = o2 + OPT.get("o3", 0)
    for u in range(o1): w1_unit(l, u)
    l.bar("goo")
    stop_here(l, "p2")
    ts(l, 6)
    l.bar("p3_a")
    l.bar("p3_b")
    for u in range(o1, o2): w1_unit(l, u)
    l.bar("p3_red1"); l.bar("p3_red2")
    for u in range(o2, o3): w1_unit(l, u)
    l.bar("p3_pub")
    for u in range(o3, 22): w1_unit(l, u)
    l.bar("p3_go")
    stop_here(l, "p3")
    ts(l, 10)
    l(f"s_cmp_lg_u32 s{sPAIR}, 0")
    l("s_cbranch_scc1 L_l_p4b")
    st = l.state()
    ends = []
    nb0 = len(l.bars)
    for v1 in (True, False):
        if not v1:
            l.label("L_l_p4b"); l.set_state(st)
            logged = l.bars[nb0:]; l.bars = l.bars[:nb0]
        gemm192_loader(l, "p4", w1_unit, slot_p4, A_P4, True, [(lambda m=m: w2_unit(l, m)) for m in range(16)], colsum=CSF_1 if v1 else None)
        h1 = 16 + OPT.get("h1", 8); h2 = h1 + OPT.get("h2", 8)
        for m in range(16, h1): w2_unit(l, m)
        if OPT.get("w2reg", 0):
            for m in range(32, 38): w2_from_regs(l, m)
        l.bar("p4_pubh")
        for m in range(h1, h2): w2_unit(l, m)
        l.bar("p4_goh")
        ends.append(l.state())
        if v1: l("s_branch L_l_p5")
    assert ends[0] == ends[1] and l.bars[nb0:] == logged
    l.label("L_l_p5")
    stop_here(l, "p4")
    ts(l, 12)
    l.wait_vm([("W2", m) for m in range(4)])
    l.bar("p5_a")
    w2n = 16 + OPT.get("h1", 8) + OPT.get("h2", 8)
    cond = []
    late5 = list(range(38, 43))
    early = OPT.get("wqe", 0)
    for st5 in range(1, 11):
        need = [("W2", m) for m in range(4*st5, min(4*st5 + 4, 43))]
        l.wait_vm(need)
        if OPT.get("w2reg", 0) and st5 in (8, 9): l.wait_lg0()
        l.bar(f"p5_B{st5}")
        if OPT.get("w2reg", 0):
            if st5 == 4:
                for m in range(38, 43): w2_from_regs(l, m)
        else:
            k_ = 0
            while w2n < 38 and k_ < 3:
                w2_unit(l, w2n); w2n += 1; k_ += 1
            if w2n >= 38 and st5 >= 4 and late5:
                for _ in range(min(3 - k_, len(late5))): w2_unit(l, late5.pop(0))
        if st5 >= 9 - early // 2 and st5 <= 8 and len(cond) < early:
            stt = l.state()
            l(f"s_cmp_lg_u32 s{sPAIR}, 0"); l(f"s_cbranch_scc1 L_l_wqe{st5}")
            for _ in range(2):
                wq_unit(l, len(cond)); cond.append(len(cond))
            l.label(f"L_l_wqe{st5}")
            l.set_state(stt)
    ts(l, 14)
    l(f"s_cmp_lg_u32 s{sPAIR}, 0")
    l("s_cbranch_scc1 L_l_final")
    l.vmq = l.vmq + [("W", u) for u in cond]
    n0 = len(cond); n1 = n0 + OPT.get("wq1", 6); n2 = n1 + OPT.get("wq2", 6)
    for u in range(n0, n1): wq_unit(l, u)
    l.bar("p5a_red2")
    for u in range(n1, n2): wq_unit(l, u)
    l.bar("p5a_pub")
    for u in range(n2, 22): wq_unit(l, u)
    l.bar("p5a_go")
    stop_here(l, "p5")
    ts(l, 16)
    l(f"s_mov_b32 s{sPAIRN}, 1")
    p1_loader(l, False)
    l(f"s_mov_b32 s{sPAIR}, 1")
    if OPT["ts"]:
        dump_ts(l); l("s_waitcnt vmcnt(0)"); l(f"v_mov_b32 v{vTS}, 0"); l(f"s_add_u32 s2, s2, 256")
    l("s_branch L_l_loop")
    l.label("L_l_final")
    l.bar("p5b_red2")
    dump_ts(l)
    l("s_waitcnt vmcnt(0)")
    l("s_endpgm")
    at = Stream("a")
    at.label("L_attn")
    attention(at)
    at(f"s_cmp_ge_u32 s{sW}, 4")
    at("s_cbranch_scc1 L_l_postattn")
    at("s_branch L_c_postattn")
    assert c.bars == l.bars, "\n".join(f"{x} | {y}" for x, y in zip(c.bars, l.bars)) + f"\n{len(c.bars)} {len(l.bars)}"
    al = lambda k: [f".p2align {OPT[k]}"] if OPT.get(k) else []
    sh = lambda k: ["s_nop 0"] * OPT.get(k, 0)
    lines = top.L + sh("shc") + c.L + al("all") + sh("shl0") + l.L + al("ala") + sh("sha") + at.L + ["L_exit:", "s_endpgm"]
    return lines

HEAD = f"""; Fused two-pair transformer block (sliding-window attention + GELU MLP), one persistent launch.
; @launch grid=(256,1,1) block=(512,1,1) lds={LDS_TOTAL}
.amdgcn_target "amdgcn-amd-amdhsa--gfx950"
.text
.globl {NAME}_kernel
.p2align 8
.type {NAME}_kernel,@function
{NAME}_kernel:
"""
TAIL = f"""
.section .rodata,"a"
.p2align 6
.amdhsa_kernel {NAME}_kernel
  .amdhsa_next_free_vgpr 256
  .amdhsa_next_free_sgpr 102
  .amdhsa_accum_offset 256
  .amdhsa_group_segment_fixed_size 0
  .amdhsa_kernarg_size 88
  .amdhsa_user_sgpr_count 2
  .amdhsa_user_sgpr_kernarg_segment_ptr 1
  .amdhsa_system_sgpr_workgroup_id_x 1
.end_amdhsa_kernel
"""
if __name__ == "__main__":
    lines = build()
    errs = lint(lines)
    for e in errs[:40]: print("LINT", e, file=sys.stderr)
    out = OPT.get("out", f"cdna_kernels/{NAME}.s")
    open(out, "w").write(HEAD + "\n".join("    " + x if not x.endswith(":") else x for x in lines) + TAIL)
    print(f"wrote {out}: {len(lines)} lines, {len(errs)} lint findings", file=sys.stderr)
```

```python
import sys, copy
from asmlib import Stream, lint

NAME = "interleave_layers__sliding_block__mixer_channel_mlp__prompt"
OPT = dict(ts=False, stop=None, spin=400000)
for a in sys.argv[1:]:
    if a.startswith("--"):
        k, _, v = a[2:].partition("=")
        OPT[k] = (int(v) if v.lstrip("-").isdigit() else v) if v else True

K = 1024
LDS_TOTAL = 160 * K
MISC = 152 * K
ST_MEAN = MISC
ST_RSTD = MISC + 256
CS_Q = MISC + 512
CS_1 = MISC + 2048
B1F = MISC + 3584
B2F = MISC + 4352
STP = MISC + 4608
CSF_Q = MISC + 5632
CSF_1 = MISC + 6400
MODEW = MISC + 7168
CNTW = MISC + 7172
DUMMY = MISC + 7424
KB, VB, QB, WOB = 0, 40 * K, 80 * K, 88 * K
def slot_p1(u):
    if u < 22: return 64 * K + 4 * K * u
    if u < 32: return 64 * K + 4 * K * (u - 22)
    if u < 40: return 4 * K * (u - 32)
    if u < 46: return 40 * K + 4 * K * (u - 40)
    return 64 * K + 4 * K * (u - 46)
A_P1 = 0
def slot_p4(u):
    if u < 22: return 4 * K * u
    if u < 32: return 4 * K * (u - 22)
    return 88 * K + 4 * K * (u - 32)
A_P4 = 88 * K
def slot_p5(m):
    if m < 12: return 40 * K + 4 * K * m
    if m < 22: return 4 * K * (m - 12)
    if m < 38: return 88 * K + 4 * K * (m - 22)
    return 40 * K + 4 * K * (m - 38)
RB_P3 = 72 * K
RB_P5 = 0
WS_FLAGL = 0x0
WS_FLAGR = 0x2000
WS_STATS = 0x10000
WS_XA = 0x100000
WS_HO = 0x300000
HO_STRIDE = 0x2C000
H_TT = 86 * 1024
WS_KV = 0x900000
WS_TS = 0x1200000
WS_WQP = 0x1400000
WS_W1P = 0x1600000
WS_WOP = 0x1800000
WS_W2P = 0x1900000
J_WQ, J_WO, J_W2 = 0x30000, 0x10000, 0x2C000
PREP = 120 * K
WS_PREPF = 0x1C00000
WS_EPOCH = 0x1F00000
WS_SIZE = 0x2000000
SRD_X, SRD_WQ, SRD_WO, SRD_W1, SRD_W2, SRD_WS, SRD_OUT, SRD_DBG = 4, 8, 12, 16, 20, 24, 28, 32
sG, sJ, sW, sI, sPAIR, sFAST, sTT, sCP = 36, 37, 38, 39, 40, 41, 42, 43
SRD_TMP = 44
sI1K = 48
sT0, sT1, sT2, sT3 = 49, 50, 51, 52
sXA = 53
sHO = 54
sWQb, sW1b, sWOb = 55, 56, 57
sW2b = 100
sKVw = 58
sSTATS = 59
sSPIN = 60
sHST = (61, 62, 63, 64, 65, 66)
sX0 = 63
sKVr = 62
sVMASK = 68
sEXEC = 70
sTMIN = 72
sO = 73
sVAL = 74
sOUTb = 75
sPAIRN = 85
sEP = 87
sTS = 76
sM16 = 78
sM0_32 = 80
sC1, sC2, sC3 = 82, 83, 84
sKPTR = 86
vLANE, vL16 = 0, 1
vTRA = (2, 3, 4)
vTRK = (5, 6, 7)
vTRS = (8, 9, 10)
vAR = 11
vCSA = 12
vTOK = 13
vSTB = 14
vTS = 15
vXR = 16
vACC = (32, 48)
vWF = 64
vE = 88
vA = 128
vPQ, vP1, vPO, vX0, vPOLL, vFLAG, vSTA, vSTW = 2, 3, 4, 5, 6, 7, 8, 9
vLI = (11, 12, 13)

EPS = 1e-5
import struct, math
def f2u(x): return struct.unpack("<I", struct.pack("<f", x))[0]
QSCALE = math.log2(math.e) / 4.0
GC0 = -2.0 * math.sqrt(2.0 / math.pi) * math.log2(math.e)
GC1 = GC0 * 0.044715
NEGBIG = f2u(-1.0e30)

def ts(a, idx):
    if not OPT["ts"]: return
    a.wait_lg0()
    a(f"{'s_memrealtime' if OPT.get('rt') else 's_memtime'} s[{sTS}:{sTS+1}]")
    a("s_waitcnt lgkmcnt(0)")
    a(f"v_writelane_b32 v{vTS}, s{sTS}, {idx}")

def srd(a, d, ptr, size):
    a(f"s_mov_b32 s{d}, s{ptr}")
    a(f"s_and_b32 s{d+1}, s{ptr+1}, 0xffff")
    a(f"s_mov_b32 s{d+2}, {size}")
    a(f"s_mov_b32 s{d+3}, 0x20000")

def vr(b, n): return f"v[{b}:{b+n-1}]"

class LdsBase:
    def __init__(self, regs): self.regs = regs
    def at(self, addr):
        return self.regs[addr >> 16], addr & 0xffff

def dma(a, srdn, vpat, sbase, soff, lds, tag, flags=""):
    a(f"s_add_u32 m0, s{sI1K}, {lds}")
    a(f"s_add_u32 s{sT0}, s{sbase}, {soff}")
    a.vm(f"buffer_load_dwordx4 v{vpat}, s[{srdn}:{srdn+3}], s{sT0} offen {flags} lds".replace("  ", " "), tag)

def dual_store(a, kind, data, vaddr, srdn, soff, extra=""):
    lab = a.name + f"_ds{len(a.L)}"
    a(f"s_cmp_eq_u32 s{sFAST}, 0")
    a(f"s_cbranch_scc1 {lab}_s")
    a(f"{kind} {data}, v{vaddr}, s[{srdn}:{srdn+3}], {soff} offen {extra} nt".replace("  ", " ").rstrip())
    a(f"s_branch {lab}_e")
    a.label(f"{lab}_s")
    a.vm(f"{kind} {data}, v{vaddr}, s[{srdn}:{srdn+3}], {soff} offen {extra} sc1".replace("  ", " "), "st")
    a.label(f"{lab}_e")

def common_init(a):
    if OPT.get("exit1") == 1: a("s_endpgm")
    a("s_cmp_ge_u32 s2, 256")
    a("s_cbranch_scc1 L_exit")
    if OPT.get("perm"):
        a("s_and_b32 s3, s2, 7"); a("s_lshl_b32 s3, s3, 3"); a("s_lshr_b32 s4, s2, 3"); a("s_and_b32 s4, s4, 7"); a("s_or_b32 s3, s3, s4")
        if OPT["perm"] == 2: a("s_xor_b32 s3, s3, 5")
        a("s_and_b32 s2, s2, 0xc0"); a("s_or_b32 s2, s2, s3")
    a(f"s_load_dwordx16 s[{64}:{79}], s[0:1], 0")
    if OPT.get("cpf", 3) == 3:
        a(f"s_getpc_b64 s[94:95]")
        a.label("L_pf_pc3")
        a(f"s_mov_b32 m0, {DUMMY}")
        a(f"v_lshlrev_b32 v2, 7, v0")
        a(f"v_min_u32 v2, L_exit-L_pf_pc3, v2")
        a(f"global_load_lds_dword v2, s[94:95]")
    a(f"s_load_dwordx4 s[{88}:{91}], s[0:1], 64")
    a(f"s_load_dwordx2 s[{92}:{93}], s[0:1], 80")
    a(f"v_lshrrev_b32 v1, 6, v0")
    a(f"v_and_b32 v{vLANE}, 63, v0")
    a(f"s_and_b32 s{sT0}, s2, 7")
    a(f"v_readfirstlane_b32 s{sW}, v1")
    if OPT.get("cpf", 3) in (1, 2):
        a(f"s_getpc_b64 s[94:95]")
        a.label("L_pf_pc")
        a(f"v_lshlrev_b32 v2, 7, v{vLANE}")
        a(f"s_cmp_lt_u32 s{sW}, 6"); a("s_cbranch_scc1 L_pf_no")
        a(f"s_cmp_eq_u32 s{sW}, 6"); a(f"s_cselect_b32 s{sT1}, 0, L_loader-L_pf_pc")
        a(f"s_add_u32 s94, s94, s{sT1}"); a("s_addc_u32 s95, s95, 0")
        a("global_load_dword v255, v2, s[94:95]")
        a.label("L_pf_no")
        if OPT.get("cpf", 3) == 2:
            a(f"s_cmp_lg_u32 s{sW}, 5"); a("s_cbranch_scc1 L_pf_no2")
            a(f"s_lshr_b32 s{sT1}, s2, 3"); a(f"s_lshl_b32 s{sT1}, s{sT1}, 11"); a(f"v_add_u32 v2, s{sT1}, v2")
            a(f"s_mov_b32 s{sT1}, L_exit-L_pf_pc"); a(f"v_min_u32 v2, s{sT1}, v2")
            a("s_mov_b64 exec, 0xffff")
            a("global_load_dword v255, v2, s[94:95]")
            a("s_mov_b64 exec, -1")
            a.label("L_pf_no2")
    a(f"s_lshr_b32 s{sT1}, s2, 3")
    a(f"s_lshr_b32 s{sT2}, s{sT1}, 3")
    a(f"s_lshl_b32 s{sT0}, s{sT0}, 2")
    a(f"s_add_u32 s{sG}, s{sT0}, s{sT2}")
    a(f"s_and_b32 s{sJ}, s{sT1}, 7")
    a(f"s_and_b32 s{sI}, s{sW}, 3")
    a(f"s_lshl_b32 s{sI1K}, s{sI}, 10")
    a(f"s_mov_b32 s{sPAIR}, 0"); a(f"s_mov_b32 s{sPAIRN}, 0")
    a(f"s_mov_b32 s{sFAST}, 0")
    a(f"v_lshlrev_b32 v{vL16}, 4, v{vLANE}")
    a(f"v_mov_b32 v{vTS}, 0")
    a("s_waitcnt lgkmcnt(0)")
    if OPT.get("exit1") == 2: a("s_endpgm")
    srd(a, SRD_X, 64, 2048 * 1024)
    srd(a, SRD_WQ, 66, 512 * 3072)
    srd(a, SRD_WO, 68, 512 * 1024)
    srd(a, SRD_W1, 72, 512 * 2752)
    srd(a, SRD_W2, 76, 1376 * 1024)
    if OPT.get("wsoff", 0):
        a(f"s_add_u32 s92, s92, {OPT['wsoff'] << 20}"); a("s_addc_u32 s93, s93, 0")
    srd(a, SRD_WS, 92, WS_SIZE)
    srd(a, SRD_OUT, 88, 2048 * 1024)
    srd(a, SRD_DBG, 90, 256)
    a(f"s_mov_b32 s{sT3}, {WS_EPOCH}")
    a(f"s_buffer_load_dword s{sEP}, s[{SRD_WS}:{SRD_WS+3}], s{sT3}")
    if OPT.get("tlb", 0):
        a(f"s_cmp_lg_u32 s{sW}, {OPT.get('tlbw', 3)}"); a("s_cbranch_scc1 L_tlb_no")
        for k in range(15):
            a(f"s_mov_b32 s{sT3}, {k << 21}")
            a(f"s_buffer_load_dword s{86}, s[{SRD_WS}:{SRD_WS+3}], s{sT3}")
        a(f"s_buffer_load_dword s86, s[{SRD_OUT}:{SRD_OUT+3}], 0")
        a(f"s_buffer_load_dword s86, s[{SRD_W1}:{SRD_W1+3}], 0")
        a(f"s_buffer_load_dword s86, s[{SRD_W2}:{SRD_W2+3}], 0")
        a.label("L_tlb_no")
    a("s_mov_b32 s94, s74"); a("s_mov_b32 s95, s75"); a("s_mov_b32 s96, s78"); a("s_mov_b32 s97, s79")
    a(f"s_mul_i32 s98, s{sJ}, 10"); a(f"s_add_u32 s98, s98, 6"); a(f"s_mul_i32 s99, s{sJ}, 12")
    a(f"s_cmp_lt_u32 s{sJ}, 3")
    a(f"s_cselect_b32 s98, s99, s98")
    a(f"s_cselect_b32 s99, 12, 10")
    a(f"s_mov_b32 s{sVMASK}, 0x0000ffff"); a(f"s_mov_b32 s{sVMASK+1}, 0x0000ffff")
    a(f"s_mov_b64 s[{sM16}:{sM16+1}], 0xffff")
    a(f"s_mov_b32 s{sM0_32}, 1"); a(f"s_mov_b32 s{sM0_32+1}, 1")
    a(f"s_lshl_b32 s{sSTATS}, s{sG}, 13"); a(f"s_add_u32 s{sSTATS}, s{sSTATS}, {WS_STATS}")
    if OPT.get("exit1") == 3:
        a("s_waitcnt lgkmcnt(0)"); a("s_endpgm")
    a(f"s_cmp_ge_u32 s{sW}, 4")
    a("s_cbranch_scc1 L_loader")

def tr_addr(a, dst, ct_expr_sgpr, natural_second=None, tmp=(vE, vE+1, vE+2, vE+3)):
    t0, t1, t2, t3 = tmp
    def one(d, kexpr):
        kexpr(t0)
        a(f"v_lshrrev_b32 v{t1}, 1, v{t0}"); a(f"v_and_b32 v{t1}, 3, v{t1}")
        a(f"v_and_b32 v{t2}, 1, v{t1}"); a(f"v_lshlrev_b32 v{t2}, 1, v{t2}"); a(f"v_lshrrev_b32 v{t1}, 1, v{t1}")
        a(f"v_or_b32 v{t1}, v{t1}, v{t2}")
        a(f"v_lshrrev_b32 v{t2}, 4, v{vLANE}"); a(f"v_and_b32 v{t2}, 1, v{t2}")
        a(f"s_lshl_b32 s{sT3}, s{ct_expr_sgpr}, 1")
        a(f"v_add_u32 v{t2}, s{sT3}, v{t2}")
        a(f"v_xor_b32 v{t1}, v{t1}, v{t2}"); a(f"v_lshlrev_b32 v{t1}, 5, v{t1}")
        a(f"v_lshlrev_b32 v{t0}, 7, v{t0}")
        a(f"v_and_b32 v{t2}, 3, v{vLANE}"); a(f"v_lshlrev_b32 v{t2}, 3, v{t2}")
        a(f"v_add3_u32 v{d}, v{t0}, v{t1}, v{t2}")
    def kperm(t):
        a(f"v_lshrrev_b32 v{t}, 5, v{vLANE}"); a(f"v_lshlrev_b32 v{t}, 2, v{t}")
        a(f"v_bfe_u32 v{t3}, v{vLANE}, 2, 2"); a(f"v_add_u32 v{t}, v{t}, v{t3}")
    def knat(off):
        def f(t):
            a(f"v_lshrrev_b32 v{t}, 5, v{vLANE}"); a(f"v_lshlrev_b32 v{t}, 3, v{t}")
            a(f"v_bfe_u32 v{t3}, v{vLANE}, 2, 2"); a(f"v_add_u32 v{t}, v{t}, v{t3}")
            if off: a(f"v_add_u32 v{t}, {off}, v{t}")
        return f
    if natural_second is None: one(dst, kperm)
    else:
        one(dst, knat(0)); one(natural_second, knat(4))

def three_bases(a, regs):
    a(f"v_add_u32 v{regs[1]}, 0x10000, v{regs[0]}")
    a(f"v_add_u32 v{regs[2]}, 0x20000, v{regs[0]}")

vNA = vTRA
vNB = (112, 113, 115)
vSEL = vE + 28
vCSACC = vE + 32

def compute_prologue(a):
    a(f"s_lshr_b32 s{sTT}, s{sW}, 1")
    a(f"s_and_b32 s{sCP}, s{sW}, 1")
    if OPT.get("xtouch", 1):
        a(f"s_cmp_lg_u32 s{sW}, 0"); a("s_cbranch_scc1 L_c_xt")
        a(f"v_lshlrev_b32 v{vE}, 7, v{vLANE}"); a(f"s_lshl_b32 s{sT1}, s{sG}, 16"); a(f"s_lshl_b32 s{sT2}, s{sJ}, 13"); a(f"s_add_u32 s{sT1}, s{sT1}, s{sT2}")
        touch(a, SRD_X, vE, sT1, 0)
        a.label("L_c_xt")
        a.vmq = []
    t = vE
    a(f"s_lshl_b32 s{sT0}, s{sG}, 16"); a(f"s_lshl_b32 s{sT1}, s{sTT}, 15"); a(f"s_add_u32 s{sT0}, s{sT0}, s{sT1}")
    a(f"s_lshl_b32 s{sT1}, s{sJ}, 7"); a(f"s_add_u32 s{sT0}, s{sT0}, s{sT1}"); a(f"s_lshl_b32 s{sT1}, s{sCP}, 6"); a(f"s_add_u32 s{sOUTb}, s{sT0}, s{sT1}")
    a(f"s_cmp_lt_u32 s{sW}, 2")
    a("s_cbranch_scc1 L_c_nob")
    a(f"s_cmp_eq_u32 s{sW}, 2")
    a(f"s_cselect_b32 s{sT0}, s94, s96"); a(f"s_cselect_b32 s{sT1}, s95, s97")
    a(f"s_mov_b32 s{SRD_TMP}, s{sT0}"); a(f"s_and_b32 s{SRD_TMP+1}, s{sT1}, 0xffff")
    a(f"s_movk_i32 s{sT2}, 1024"); a(f"s_cmp_eq_u32 s{sW}, 2"); a(f"s_cselect_b32 s{SRD_TMP+2}, 2752, s{sT2}"); a(f"s_mov_b32 s{SRD_TMP+3}, 0x20000")
    a(f"s_cmp_eq_u32 s{sW}, 2")
    a(f"s_lshl_b32 s{sT0}, s98, 5"); a(f"s_lshl_b32 s{sT1}, s{sJ}, 7")
    a(f"s_cmp_eq_u32 s{sW}, 2")
    a(f"s_cselect_b32 s{sT0}, s{sT0}, s{sT1}")
    a(f"s_mov_b32 s{sT1}, {B2F}"); a(f"s_cselect_b32 s{sT1}, {B1F}, s{sT1}")
    a(f"s_cselect_b32 s{sT2}, 48, 16")
    a(f"v_lshlrev_b32 v{t+2}, 3, v{vLANE}")
    a(f"buffer_load_dwordx2 {vr(vBR,2)}, v{t+2}, s[{SRD_TMP}:{SRD_TMP+3}], s{sT0} offen")
    a(f"v_add_u32 v{vBR+2}, s{sT1}, v{vL16}")
    a(f"s_mov_b32 s{sBL}, s{sT2}")
    a.label("L_c_nob")
    a(f"s_lshl_b32 s{sT0}, s{sCP}, 10"); a(f"v_add_u32 v{vTRA[0]}, s{sT0}, v{vL16}"); three_bases(a, vTRA)
    a(f"s_mul_i32 s{sT0}, s{sCP}, 3072"); a(f"v_add_u32 v{vTRK[0]}, s{sT0}, v{vL16}")
    a(f"s_lshl_b32 s{sT0}, s{sCP}, 10"); a(f"s_add_u32 s{sT0}, s{sT0}, 1024"); a(f"v_add_u32 v{vTRS[0]}, s{sT0}, v{vL16}")
    three_bases(a, vTRK); three_bases(a, vTRS)
    a(f"s_lshl_b32 s{sT0}, s{sTT}, 10"); a(f"v_add_u32 v{vAR}, s{sT0}, v{vL16}")
    a(f"v_lshrrev_b32 v{t}, 5, v{vLANE}"); a(f"v_lshlrev_b32 v{t}, 4, v{t}")
    a(f"s_lshl_b32 s{sT0}, s{sCP}, 7"); a(f"v_add_u32 v{vCSA}, s{sT0}, v{t}")
    a(f"s_lshl_b32 s{sT0}, s{sTT}, 7"); a(f"v_add_u32 v{vSTB}, s{sT0}, v{t}")
    a(f"v_and_b32 v{t}, 31, v{vLANE}"); a(f"v_lshlrev_b32 v{t}, 2, v{t}"); a(f"v_add_u32 v{vTOK}, s{sT0}, v{t}")
    a(f"s_lshl_b32 s{sXA}, s{sG}, 16"); a(f"s_lshl_b32 s{sT0}, s{sTT}, 15"); a(f"s_add_u32 s{sXA}, s{sXA}, s{sT0}")
    a(f"s_lshl_b32 s{sT0}, s{sJ}, 12"); a(f"s_add_u32 s{sXA}, s{sXA}, s{sT0}"); a(f"s_lshl_b32 s{sT0}, s{sCP}, 11"); a(f"s_add_u32 s{sXA}, s{sXA}, s{sT0}")
    a(f"s_add_u32 s{sXA}, s{sXA}, {WS_XA}")
    a(f"s_mul_i32 s{sHO}, s{sG}, {HO_STRIDE}"); a(f"s_add_u32 s{sHO}, s{sHO}, {WS_HO}")
    a(f"s_lshl_b32 s{sKVw}, s{sG}, 3"); a(f"s_add_u32 s{sKVw}, s{sKVw}, s{sJ}"); a(f"s_lshl_b32 s{sKVw}, s{sKVw}, 14")
    a(f"s_lshl_b32 s{sT0}, s{sTT}, 12"); a(f"s_add_u32 s{sKVw}, s{sKVw}, s{sT0}"); a(f"s_lshl_b32 s{sT0}, s{sCP}, 11"); a(f"s_add_u32 s{sKVw}, s{sKVw}, s{sT0}")
    a(f"s_add_u32 s{sKVw}, s{sKVw}, {WS_KV}")
    for s in range(3):
        for sub in range(2):
            d = sHST[2*s+sub]
            a(f"s_lshl_b32 s{sT0}, s{sCP}, 1"); a(f"s_add_u32 s{sT0}, s{sT0}, {4*s+sub}")
            a(f"s_add_u32 s{sT1}, s{sT0}, s98"); a(f"s_lshl_b32 s{sT1}, s{sT1}, 10")
            a(f"s_mul_i32 s{sT2}, s{sTT}, {H_TT}"); a(f"s_add_u32 s{sT1}, s{sT1}, s{sT2}"); a(f"s_add_u32 s{sT1}, s{sT1}, s{sHO}")
            a(f"s_cmp_lt_u32 s{sT0}, s99")
            a(f"s_cselect_b32 s{d}, s{sT1}, 0x7ffff000")
    a(f"s_mov_b32 s{sC1}, {f2u(1.0/512.0)}"); a(f"s_mov_b32 s{sC2}, {f2u(EPS)}"); a(f"s_mov_b32 s{sC3}, {f2u(QSCALE)}")
    a(f"s_lshl_b32 s{sT1}, s{sW}, 14"); a(f"s_lshl_b32 s{sT2}, s{sG}, 16"); a(f"s_add_u32 s{sT2}, s{sT2}, s{sT1}")
    for r in range(16):
        a(f"v_xor_b32 v{vE}, {r << 4}, v{vL16}")
        a(f"s_add_u32 m0, s{sT1}, {A_P1 + r*1024}")
        a(f"s_add_u32 s{sT0}, s{sT2}, {r*1024}")
        a(f"buffer_load_dwordx4 v{vE}, s[{SRD_X}:{SRD_X+3}], s{sT0} offen lds")

vBR, sBL = 240, 101
def after_meet(a):
    a(f"s_cmp_lt_u32 s{sW}, 2")
    a("s_cbranch_scc1 L_c_nob2")
    a(f"v_cmp_gt_u32 vcc, s{sBL}, v{vLANE}")
    a(f"v_lshlrev_b32 v{vBR+4}, 16, v{vBR}"); a(f"v_and_b32 v{vBR+5}, 0xffff0000, v{vBR}")
    a(f"v_lshlrev_b32 v{vBR+6}, 16, v{vBR+1}"); a(f"v_and_b32 v{vBR+7}, 0xffff0000, v{vBR+1}")
    a(f"s_and_saveexec_b64 s[{sEXEC}:{sEXEC+1}], vcc")
    a(f"ds_write_b128 v{vBR+2}, {vr(vBR+4,4)}")
    a(f"s_mov_b64 exec, s[{sEXEC}:{sEXEC+1}]")
    a.label("L_c_nob2")

def touch(a, srdn, vpat, sbase, imm, dst=None):
    a(f"s_mov_b32 m0, {DUMMY}")
    a(f"s_add_u32 s{sT3}, s{sbase}, {imm}")
    a.vm(f"buffer_load_dword v{vpat}, s[{srdn}:{srdn+3}], s{sT3} offen lds", "touch")

def stats_finalize(a, v, tmp, vaddr, double_ln):
    t0, t1, t2, t3 = tmp
    a(f"v_mov_b32 v{t0}, v{v}")
    a.nop(2)
    a(f"v_permlane32_swap_b32 v{v}, v{t0}")
    a(f"v_mul_f32 v{v}, s{sC1}, v{v}")
    a(f"v_mul_f32 v{t0}, s{sC1}, v{t0}")
    a(f"v_fma_f32 v{t0}, -v{v}, v{v}, v{t0}")
    a(f"v_max_f32 v{t0}, 0, v{t0}")
    a(f"v_add_f32 v{t1}, s{sC2}, v{t0}")
    a(f"v_rsq_f32 v{t1}, v{t1}")
    a.nop(1)
    if double_ln:
        a(f"v_mul_f32 v{t2}, v{t1}, v{t1}")
        a(f"v_mul_f32 v{t2}, v{t2}, v{t0}")
        a(f"v_add_f32 v{t2}, s{sC2}, v{t2}")
        a(f"v_rsq_f32 v{t2}, v{t2}")
        a.nop(1)
        a(f"v_mul_f32 v{t1}, v{t1}, v{t2}")
    a(f"v_cmp_gt_u32 s[{sEXEC}:{sEXEC+1}], 32, v{vLANE}")
    a.nop(2)
    a(f"v_cndmask_b32 v{t3}, v{t1}, v{v}, s[{sEXEC}:{sEXEC+1}]")
    a.ds(f"ds_write_b32 v{vaddr}, v{t3}", "stw")

E = 80
ePK = 84
D_AHEAD = 4

class VM:
    def __init__(self, f): self.f = f
    def __call__(self): self.f()

def items_kq(a, ac, T, v1, is_q):
    mean, rs, ad, adc = E, E + 1, E + 2, E + 3
    w = 92
    cs = [96, 100, 104, 108]
    it = []
    it.append(lambda: a(f"v_add_u32 v{ad}, {ST_MEAN}, v{vTOK}"))
    it.append(lambda: a(f"v_add_u32 v{adc}, {MISC}, v{vCSA}"))
    it.append(lambda: a.ds(f"ds_read_b32 v{mean}, v{ad} offset:0", "em"))
    it.append(lambda: a.ds(f"ds_read_b32 v{rs}, v{ad} offset:256", "er"))
    if not v1:
        for g in range(4):
            it.append(lambda g=g: a.ds(f"ds_read_b128 {vr(cs[g],4)}, v{adc} offset:{CSF_Q - MISC + T*256 + g*32}", f"ca{g}"))
        for _ in range(6): it.append(lambda: None)
    if is_q:
        def fq():
            a.wait_lg("er"); a(f"v_mul_f32 v{rs}, s{sC3}, v{rs}")
        it.append(fq)
    for g in range(4):
        c = cs[0] if v1 else cs[g]
        if v1:
            it.append(lambda g=g: a.ds(f"ds_read_b128 {vr(cs[0],4)}, v{adc} offset:{CS_Q - MISC + T*256 + g*32}", f"ca{g}"))
            it.append(lambda g=g: a.ds(f"ds_read_b128 {vr(cs[1],4)}, v{adc} offset:{CS_Q - MISC + 768 + T*256 + g*32}", f"cb{g}"))
            for e in range(4):
                def f(e=e, g=g):
                    a.wait_lg([f"ca{g}", f"cb{g}"]); a(f"v_add_f32 v{cs[0]+e}, v{cs[0]+e}, v{cs[1]+e}")
                it.append(f)
            def fw(g=g):
                a(f"s_mov_b64 exec, s[{sM0_32}:{sM0_32+1}]")
                a.ds(f"ds_write_b128 v{adc}, {vr(cs[0],4)} offset:{CSF_Q - MISC + T*256 + g*32}", "cw")
                a("s_mov_b64 exec, -1")
            it.append(fw)
        for e in range(4):
            def f(e=e, g=g, c=c):
                a.wait_lg(["em", "er", f"ca{g}", f"cb{g}"])
                a(f"v_fma_f32 v{w+e}, -v{mean}, v{c+e}, v{ac+4*g+e}")
            it.append(f)
        for e in range(4):
            it.append(lambda e=e: a(f"v_mul_f32 v{w+e}, v{w+e}, v{rs}"))
        it.append(lambda g=g: a(f"v_cvt_pk_bf16_f32 v{ePK+2*g}, v{w}, v{w+1}"))
        it.append(lambda g=g: a(f"v_cvt_pk_bf16_f32 v{ePK+2*g+1}, v{w+2}, v{w+3}"))
    if not is_q:
        it.append(lambda: a(f"s_lshl_b32 s{sT1}, s{sTT}, 12"))
        it.append(lambda: a(f"s_lshl_b32 s{sT2}, s{sCP}, 11"))
        it.append(lambda: a(f"s_add_u32 s{sT1}, s{sT1}, s{sT2}"))
        it.append(lambda: a(f"v_add_u32 v{ad}, s{sT1}, v{vL16}"))
        for hh in range(2):
            it.append(VM(lambda hh=hh: a.vm(f"buffer_store_dwordx4 {vr(ePK+4*hh,4)}, v{vL16}, s[{SRD_WS}:{SRD_WS+3}], s{sKVw} offen offset:{hh*1024} sc1", "kvK")))
            it.append(lambda hh=hh: a.ds(f"ds_write_b128 v{ad}, {vr(ePK+4*hh,4)} offset:{KB + 32*K + hh*1024}", "kw"))
    else:
        it.append(lambda: a(f"s_lshl_b32 s{sT1}, s{sTT}, 10"))
        it.append(lambda: a(f"s_lshl_b32 s{sT2}, s{sCP}, 12"))
        it.append(lambda: a(f"s_add_u32 s{sT1}, s{sT1}, s{sT2}"))
        it.append(lambda: a(f"s_add_u32 s{sT1}, s{sT1}, {QB}"))
        it.append(lambda: a(f"v_add_u32 v{ad}, s{sT1}, v{vL16}"))
        for hh in range(2):
            it.append(lambda hh=hh: a.ds(f"ds_write_b128 v{ad}, {vr(ePK+4*hh,4)} offset:{hh*2048}", "qw"))
    return it

def items_v(a, ac, T, v1):
    cs, cs2, ad, ads = E, E + 1, E + 2, E + 3
    w = 92
    mb, rb = ((96, 96), (100, 100)) if v1 else ((96, 104), (100, 108))
    it = []
    it.append(lambda: a(f"v_and_b32 v{ad}, 31, v{vLANE}"))
    it.append(lambda: a(f"v_lshlrev_b32 v{ad}, 2, v{ad}"))
    it.append(lambda: a(f"s_lshl_b32 s{sT1}, s{sCP}, 7"))
    it.append(lambda: a(f"s_add_u32 s{sT1}, s{sT1}, {MISC}"))
    it.append(lambda: a(f"v_add_u32 v{ad}, s{sT1}, v{ad}"))
    it.append(lambda: a(f"v_add_u32 v{ads}, {MISC}, v{vSTB}"))
    def rd(g):
        it.append(lambda g=g: a.ds(f"ds_read_b128 {vr(mb[g%2],4)}, v{ads} offset:{ST_MEAN - MISC + g*32}", f"m{g}"))
        it.append(lambda g=g: a.ds(f"ds_read_b128 {vr(rb[g%2],4)}, v{ads} offset:{ST_RSTD - MISC + g*32}", f"r{g}"))
    if v1:
        it.append(lambda: a.ds(f"ds_read_b32 v{cs}, v{ad} offset:{CS_Q - MISC + T*256}", "ca"))
        it.append(lambda: a.ds(f"ds_read_b32 v{cs2}, v{ad} offset:{CS_Q - MISC + 768 + T*256}", "cb"))
        def f():
            a.wait_lg(["ca", "cb"]); a(f"v_add_f32 v{cs}, v{cs}, v{cs2}")
        it.append(f)
        it.append(lambda: a.ds(f"ds_write_b32 v{ad}, v{cs} offset:{CSF_Q - MISC + T*256}", "cw"))
    else:
        it.append(lambda: a.ds(f"ds_read_b32 v{cs}, v{ad} offset:{CSF_Q - MISC + T*256}", "ca"))
        rd(0)
        for _ in range(6): it.append(lambda: None)
    for g in range(4):
        if v1: rd(g)
        elif g < 3: rd(g + 1)
        for e in range(4):
            def f(e=e, g=g):
                a.wait_lg(["ca", f"m{g}"])
                a(f"v_fma_f32 v{w+e}, -v{mb[g%2]+e}, v{cs}, v{ac+4*g+e}")
            it.append(f)
        for e in range(4):
            def f(e=e, g=g):
                a.wait_lg(f"r{g}"); a(f"v_mul_f32 v{w+e}, v{w+e}, v{rb[g%2]+e}")
            it.append(f)
        it.append(lambda g=g: a(f"v_cvt_pk_bf16_f32 v{ePK+2*g}, v{w}, v{w+1}"))
        it.append(lambda g=g: a(f"v_cvt_pk_bf16_f32 v{ePK+2*g+1}, v{w+2}, v{w+3}"))
    it.append(lambda: a(f"v_bfe_u32 v{ad}, v{vLANE}, 4, 1"))
    it.append(lambda: a(f"v_lshlrev_b32 v{ad}, 10, v{ad}"))
    it.append(lambda: a(f"v_lshrrev_b32 v{cs2}, 5, v{vLANE}"))
    it.append(lambda: a(f"v_lshl_add_u32 v{ad}, v{cs2}, 8, v{ad}"))
    it.append(lambda: a(f"v_and_b32 v{cs2}, 15, v{vLANE}"))
    it.append(lambda: a(f"v_lshl_add_u32 v{ad}, v{cs2}, 4, v{ad}"))
    it.append(lambda: a(f"s_lshl_b32 s{sT1}, s{sTT}, 12"))
    it.append(lambda: a(f"s_lshl_b32 s{sT2}, s{sCP}, 11"))
    it.append(lambda: a(f"s_add_u32 s{sT1}, s{sT1}, s{sT2}"))
    it.append(lambda: a(f"s_add_u32 s{sT1}, s{sT1}, {VB + 32*K}"))
    it.append(lambda: a(f"v_add_u32 v{ads}, s{sT1}, v{ad}"))
    it.append(lambda: a(f"s_add_u32 s{sT2}, s{sKVw}, 8192"))
    for s in range(2):
        it.append(VM(lambda s=s: a.vm(f"buffer_store_dwordx4 {vr(ePK+4*s,4)}, v{ad}, s[{SRD_WS}:{SRD_WS+3}], s{sT2} offen offset:{s*512} sc1", "kvV")))
        it.append(lambda s=s: a.ds(f"ds_write_b128 v{ads}, {vr(ePK+4*s,4)} offset:{s*512}", "vw"))
    return it

def items_h(a, ac, T, v1):
    mr, rs, gc, ad2 = E, E + 1, E + 2, E + 3
    u, t = 92, 96
    if v1: csA, bbs, csB = (100, 100), (104, 104), 108
    else:  csA, bbs, csB = (100, 108), (104, 112), None
    CSR = CS_1 if v1 else CSF_1
    it = []
    it.append(lambda: a(f"v_add_u32 v{ad2}, {ST_MEAN}, v{vTOK}"))
    it.append(lambda: a.ds(f"ds_read_b32 v{mr}, v{ad2} offset:0", "em"))
    it.append(lambda: a.ds(f"ds_read_b32 v{rs}, v{ad2} offset:256", "er"))
    it.append(lambda: a(f"v_add_u32 v{ad2}, {MISC}, v{vCSA}"))
    it.append(lambda: a(f"v_mov_b32 v{gc}, {f2u(GC1)}"))
    def rd(g):
        it.append(lambda g=g: a.ds(f"ds_read_b128 {vr(csA[g%2],4)}, v{ad2} offset:{CSR - MISC + T*256 + g*32}", f"ca{g}"))
        if v1: it.append(lambda g=g: a.ds(f"ds_read_b128 {vr(csB,4)}, v{ad2} offset:{CS_1 - MISC + 768 + T*256 + g*32}", f"cb{g}"))
        it.append(lambda g=g: a.ds(f"ds_read_b128 {vr(bbs[g%2],4)}, v{ad2} offset:{B1F - MISC + T*256 + g*32}", f"b{g}"))
    if not v1:
        rd(0)
        for _ in range(5): it.append(lambda: None)
    def fm():
        a.wait_lg(["em", "er"]); a(f"v_mul_f32 v{mr}, v{mr}, v{rs}")
    it.append(fm)
    for g in range(4):
        cA, bb = csA[g % 2], bbs[g % 2]
        if v1:
            rd(g)
            for e in range(4):
                def f(e=e, g=g, cA=cA):
                    a.wait_lg([f"ca{g}", f"cb{g}"]); a(f"v_add_f32 v{cA+e}, v{cA+e}, v{csB+e}")
                it.append(f)
            def fw(g=g, cA=cA):
                a(f"s_mov_b64 exec, s[{sM0_32}:{sM0_32+1}]")
                a.ds(f"ds_write_b128 v{ad2}, {vr(cA,4)} offset:{CSF_1 - MISC + T*256 + g*32}", "cw")
                a("s_mov_b64 exec, -1")
            it.append(fw)
        for e in range(4):
            def f(e=e, g=g, cA=cA, bb=bb):
                a.wait_lg([f"ca{g}", f"b{g}"]); a(f"v_fma_f32 v{bb+e}, -v{mr}, v{cA+e}, v{bb+e}")
            it.append(f)
        for e in range(4): it.append(lambda e=e, g=g, bb=bb: a(f"v_fma_f32 v{u+e}, v{ac+4*g+e}, v{rs}, v{bb+e}"))
        if not v1 and g < 3: rd(g + 1)
        for e in range(4): it.append(lambda e=e: a(f"v_mul_f32 v{t+e}, v{u+e}, v{u+e}"))
        for e in range(4): it.append(lambda e=e: a(f"v_fmaak_f32 v{t+e}, v{t+e}, v{gc}, {f2u(GC0)}"))
        for e in range(4): it.append(lambda e=e: a(f"v_mul_f32 v{t+e}, v{t+e}, v{u+e}"))
        for e in range(4): it.append(lambda e=e: a(f"v_exp_f32 v{t+e}, v{t+e}"))
        for e in range(4): it.append(lambda e=e: a(f"v_add_f32 v{t+e}, 1.0, v{t+e}"))
        for e in range(4): it.append(lambda e=e: a(f"v_rcp_f32 v{t+e}, v{t+e}"))
        for e in range(4): it.append(lambda e=e: a(f"v_mul_f32 v{u+e}, v{u+e}, v{t+e}"))
        it.append(lambda g=g: a(f"v_cvt_pk_bf16_f32 v{ePK+2*g}, v{u}, v{u+1}"))
        it.append(lambda g=g: a(f"v_cvt_pk_bf16_f32 v{ePK+2*g+1}, v{u+2}, v{u+3}"))
        if g % 2 == 1:
            sub = g // 2
            it.append(lambda: a("s_nop 0"))
            it.append(VM(lambda sub=sub: dual_store(a, "buffer_store_dwordx4", vr(ePK + 4*sub, 4), vL16, SRD_WS, f"s{sHST[2*T+sub]}")))
    return it

def tail_h(a, ac, T):
    nmr, rs, gc1, gc0, ad = 80, 82, 120, 122, 124
    cs, b1, u, t = 48, 96, 112, 116
    a(f"v_add_u32 v{ad}, {ST_MEAN}, v{vTOK}"); a(f"v_add_u32 v{ad+1}, {MISC}, v{vCSA}")
    a.ds(f"ds_read_b32 v{nmr}, v{ad} offset:0", "em"); a.ds(f"ds_read_b32 v{rs}, v{ad} offset:256", "er")
    for g in range(4):
        a.ds(f"ds_read_b128 {vr(cs+4*g,4)}, v{ad+1} offset:{CSF_1 - MISC + T*256 + g*32}", f"ca{g}")
        a.ds(f"ds_read_b128 {vr(b1+4*g,4)}, v{ad+1} offset:{B1F - MISC + T*256 + g*32}", f"b{g}")
    a(f"v_mov_b32 v{gc1}, {f2u(GC1)}"); a(f"v_mov_b32 v{gc0}, {f2u(GC0)}")
    a.wait_lg(["em", "er"])
    a(f"v_mul_f32 v{nmr}, v{nmr}, v{rs}"); a(f"v_sub_f32 v{nmr}, 0, v{nmr}")
    P = lambda r: vr(r, 2)
    for g in range(4):
        a.wait_lg([f"ca{g}", f"b{g}"])
        for p in range(2): a(f"v_pk_fma_f32 {P(b1+4*g+2*p)}, {P(cs+4*g+2*p)}, {P(nmr)}, {P(b1+4*g+2*p)} op_sel_hi:[1,0,1]")
        for p in range(2): a(f"v_pk_fma_f32 {P(u+2*p)}, {P(ac+4*g+2*p)}, {P(rs)}, {P(b1+4*g+2*p)} op_sel_hi:[1,0,1]")
        for p in range(2): a(f"v_pk_mul_f32 {P(t+2*p)}, {P(u+2*p)}, {P(u+2*p)}")
        for p in range(2): a(f"v_pk_fma_f32 {P(t+2*p)}, {P(t+2*p)}, {P(gc1)}, {P(gc0)} op_sel_hi:[1,0,0]")
        for p in range(2): a(f"v_pk_mul_f32 {P(t+2*p)}, {P(t+2*p)}, {P(u+2*p)}")
        for e in range(4): a(f"v_exp_f32 v{t+e}, v{t+e}")
        for p in range(2): a(f"v_pk_add_f32 {P(t+2*p)}, {P(t+2*p)}, 1.0 op_sel_hi:[1,0]")
        for e in range(4): a(f"v_rcp_f32 v{t+e}, v{t+e}")
        for p in range(2): a(f"v_pk_mul_f32 {P(u+2*p)}, {P(u+2*p)}, {P(t+2*p)}")
        a(f"v_cvt_pk_bf16_f32 v{ePK+2*g}, v{u}, v{u+1}"); a(f"v_cvt_pk_bf16_f32 v{ePK+2*g+1}, v{u+2}, v{u+3}")
        if g % 2 == 1:
            sub = g // 2
            a.nop(1)
            dual_store(a, "buffer_store_dwordx4", vr(ePK + 4*sub, 4), vL16, SRD_WS, f"s{sHST[2*T+sub]}")

def gemm192(a, ph, slot, abase, tiles, a_interleave, after_b0=None):
    pre = f"{ph}"
    trA = LdsBase(vTRA)
    vAb = 115
    if a_interleave and abase:
        a(f"v_add_u32 v{vAb}, {abase}, v{vAR}")
    areg = vAb if (a_interleave and abase) else vAR
    def issue_reads(n):
        T, ks = divmod(n, 32)
        u = 16 * T + (ks >> 1)
        r, off = trA.at(slot(u) + (ks & 1) * 2048)
        a.ds(f"ds_read_b128 {vr(vWF + 4 * (n % 4),4)}, v{r} offset:{off}", ("W", n))
        if a_interleave and T == 0:
            a.ds(f"ds_read_b128 {vr(vA+4*ks,4)}, v{areg} offset:{ks*2048}", ("W", n))
    a.bar(f"{pre}_B0")
    if after_b0:
        after_b0()
    tsb = 20 if ph.startswith("p1") else 30
    ts(a, tsb)
    for n in range(D_AHEAD): issue_reads(n)
    pending = []; deferred = []
    for n in range(96):
        T, ks = divmod(n, 32)
        form = tiles[T][0]
        ac = vACC[T % 2]
        buf = vWF + 4 * (n % 4)
        a.wait_lg(("W", n))
        c = "0" if ks == 0 else vr(ac, 16)
        if form == "T": a(f"v_mfma_f32_32x32x16_bf16 {vr(ac,16)}, {vr(buf,4)}, {vr(vA+4*ks,4)}, {c}")
        else:           a(f"v_mfma_f32_32x32x16_bf16 {vr(ac,16)}, {vr(vA+4*ks,4)}, {vr(buf,4)}, {c}")
        nn = n + D_AHEAD
        if nn < 96 and nn % 4 == 0:
            if nn == 88: a.wait_vm("kvK")
            a.bar(f"{pre}_B{nn//4}")
        if nn < 96: issue_reads(nn)
        if T >= 1:
            start = 3
            if ks == start:
                pending = tiles[T-1][1](a, vACC[(T - 1) % 2], T - 1, False)
                if OPT.get("noepi") and ph == "p4": pending = []
                if OPT.get("noepi") == 2 and ph == "p4":
                    pending = [(lambda: a("v_add_f32 v100, v101, v102"))] * 136
            if ks >= start:
                left = 31 - ks + 1
                k = max(4, -(-len(pending) // max(left - 1, 1)))
                for _ in range(min(k, len(pending))):
                    if isinstance(pending[0], VM) and OPT.get("defer", 1):
                        deferred.append(pending.pop(0))
                    else: pending.pop(0)()
                if deferred and (n % 4 == 3):
                    while deferred: deferred.pop(0)()
            if ks == 31:
                while pending: pending.pop(0)()
                while deferred: deferred.pop(0)()
    ts(a, tsb + 3)
    a.nop(12)
    if ph == "p1a" and OPT.get("cs4", 0): a.bar("p1a_cs")
    a.bar(f"{pre}_end")
    if ph == "p4" and OPT.get("pktail", 1): tail_h(a, vACC[0], 2)
    else:
        for f in tiles[2][1](a, vACC[0], 2, False): f()
    ts(a, tsb + 4)

def p1_compute(a, v1):
    ph = "p1a" if v1 else "p1b"
    tiles = [("T", lambda a_, ac, T, v: items_kq(a_, ac, T, v, False)),
             ("N", lambda a_, ac, T, v: items_v(a_, ac, T, v)),
             ("T", lambda a_, ac, T, v: items_kq(a_, ac, T, v, True))]
    if v1:
        a(f"v_and_b32 v{E+4}, 31, v{vLANE}"); a(f"s_lshl_b32 s{sT1}, s{sTT}, 5"); a(f"v_add_u32 v{E+5}, s{sT1}, v{E+4}")
        a(f"v_lshlrev_b32 v{E+5}, 10, v{E+5}")
        a(f"v_lshrrev_b32 v{E+6}, 5, v{vLANE}"); a(f"v_lshl_add_u32 v{E+5}, v{E+6}, 3, v{E+5}")
        a(f"v_and_b32 v{E+4}, 15, v{vLANE}"); a(f"v_lshl_add_u32 v{E+5}, v{E+4}, 4, v{E+5}")
        a(f"v_and_b32 v{E+16}, 15, v{vLANE}"); a(f"s_lshl_b32 s{sT1}, s{sJ}, 3"); a(f"s_lshl_b32 s{sT2}, s{sCP}, 2"); a(f"s_add_u32 s{sT1}, s{sT1}, s{sT2}")
        a(f"v_and_b32 v{E+17}, 31, v{vLANE}"); a(f"s_lshl_b32 s{sT2}, s{sTT}, 5"); a(f"v_add_u32 v{E+17}, s{sT2}, v{E+17}"); a(f"v_lshlrev_b32 v{E+17}, 10, v{E+17}")
        a(f"v_lshrrev_b32 v{E+18}, 5, v{vLANE}"); a(f"v_lshl_add_u32 v{E+17}, v{E+18}, 3, v{E+17}")
        for q in range(4):
            a(f"s_add_u32 s{sT2}, s{sT1}, {q}"); a(f"v_xor_b32 v{E+18}, s{sT2}, v{E+16}"); a(f"v_lshl_add_u32 v{E+20+q}, v{E+18}, 4, v{E+17}")
        ts(a, 29)
        a("s_waitcnt lgkmcnt(0)")
        a(f"s_add_u32 s{sEP}, s{sEP}, 16")
        a.bar("prep")
        a("s_waitcnt vmcnt(0)")
        a(f"v_mov_b32 v{E+24}, {CNTW}"); a(f"v_mov_b32 v{E+25}, 1")
        a(f"s_mov_b64 exec, 1")
        a(f"ds_add_u32 v{E+24}, v{E+25}")
        a("s_mov_b64 exec, -1")
        a(f"s_mov_b32 s{sSPIN}, {OPT['spin']}")
        a.label("L_p1a_meet")
        a(f"ds_read_b32 v{E+25}, v{E+24}")
        a("s_waitcnt lgkmcnt(0)")
        a(f"v_cmp_gt_u32 vcc, 4, v{E+25}")
        a(f"s_sub_u32 s{sSPIN}, s{sSPIN}, 1")
        a("s_cbranch_scc1 L_p1a_met")
        a("s_cbranch_vccnz L_p1a_meet")
        a.label("L_p1a_met")
        ts(a, 1)
        after_meet(a)
        for q in range(4): a.ds(f"ds_read_b64 {vr(vACC[0]+2*q,2)}, v{E+20+q}", "xr")
        a.wait_lg0()
        for q in range(4):
            for h in range(2):
                a(f"v_lshlrev_b32 v{vXR+4*q+2*h}, 16, v{vACC[0]+2*q+h}")
                a(f"v_and_b32 v{vXR+4*q+2*h+1}, 0xffff0000, v{vACC[0]+2*q+h}")
        for cc in range(16): a(f"v_xor_b32 v{vACC[1]+cc}, {cc << 4}, v{E+5}")
        sm, sq, one = E, E + 1, E + 2
        a(f"v_mov_b32 v{sm}, 0"); a(f"v_mov_b32 v{sq}, 0"); a(f"v_mov_b32 v{one}, 0x3f803f80")
        for ks in range(32):
            for hh in range(2):
                cch = 2 * ks + hh
                a.ds(f"ds_read_b64 {vr(vA+4*ks+2*hh,2)}, v{vACC[1]+(cch & 15)} offset:{(cch >> 4) << 8}", ("A", cch))
                if cch >= 12: a.wait_lg(("A", cch - 12))
        a.wait_lg0()
        a(f"s_cmp_eq_u32 s{sCP}, 0")
        a("s_cbranch_scc0 L_p1a_odd")
        for par in range(2):
            if par == 1: a.label("L_p1a_odd")
            for ks in range(par, 32, 2):
                for q in range(4):
                    a(f"v_dot2c_f32_bf16 v{sm}, v{vA+4*ks+q}, v{one}")
                    a(f"v_dot2c_f32_bf16 v{sq}, v{vA+4*ks+q}, v{vA+4*ks+q}")
            if par == 0: a("s_branch L_p1a_sdone")
        a.label("L_p1a_sdone")
        a.nop(5)
        a(f"v_permlane32_swap_b32 v{sm}, v{sq}")
        a(f"v_add_f32 v{sm}, v{sm}, v{sq}")
        a(f"v_lshrrev_b32 v{E+3}, 5, v{vLANE}"); a(f"v_lshlrev_b32 v{E+3}, 8, v{E+3}"); a(f"v_add_u32 v{E+3}, v{E+3}, v{vTOK}")
        a(f"v_add_u32 v{E+4}, {STP}, v{E+3}")
        a(f"s_lshl_b32 s{sT1}, s{sCP}, 9"); a(f"v_add_u32 v{E+5}, s{sT1}, v{E+4}")
        a.ds(f"ds_write_b32 v{E+5}, v{sm}", "stp")
        a.wait_lg0()
        def fin():
            a.ds(f"ds_read_b32 v{E+6}, v{E+4} offset:0", "x"); a.ds(f"ds_read_b32 v{E+7}, v{E+4} offset:512", "x")
            a(f"v_subrev_u32 v{E+3}, {STP - ST_MEAN}, v{E+4}")
            a.wait_lg0()
            a(f"v_add_f32 v{E+6}, v{E+6}, v{E+7}")
            stats_finalize(a, E + 6, (E + 8, E + 9, E + 10, E + 11), E + 3, False)
            a.wait_lg0()
            ts(a, 2)
        after_b0 = fin
    if v1: a.bar("prepgo")
    gemm192(a, ph, slot_p1, A_P1, tiles, a_interleave=not v1, after_b0=after_b0 if v1 else None)
    a.wait_all0()
    if OPT.get("vearly", 1):
        target = 8 if v1 else 12
        a(f"v_mov_b32 v{E}, {CNTW}"); a(f"v_mov_b32 v{E+1}, 1")
        a("s_mov_b64 exec, 1")
        a(f"ds_add_u32 v{E}, v{E+1}")
        a("s_mov_b64 exec, -1")
        a(f"s_cmp_lg_u32 s{sW}, 0"); a(f"s_cbranch_scc1 L_{ph}_vm_x")
        a(f"s_mov_b32 s{sSPIN}, {OPT['spin']}")
        a.label(f"L_{ph}_vm")
        a(f"ds_read_b32 v{E+1}, v{E}")
        a("s_waitcnt lgkmcnt(0)")
        a(f"v_cmp_gt_u32 vcc, {target}, v{E+1}")
        a(f"s_sub_u32 s{sSPIN}, s{sSPIN}, 1")
        a(f"s_cbranch_scc1 L_{ph}_vm_y")
        a(f"s_cbranch_vccnz L_{ph}_vm")
        a.label(f"L_{ph}_vm_y")
        kv_flag_store(a, 0, 1, (PV[1], PV[2]), ph + "_vf")
        a.label(f"L_{ph}_vm_x")
        a("s_waitcnt lgkmcnt(0)")
    a.bar(f"{ph}_pubkv")

def p4_compute(a):
    tiles = [("T", lambda a_, ac, T, v: items_h(a_, ac, T, v))] * 3
    gemm192(a, "p4", slot_p4, A_P4, tiles, a_interleave=True)
    publish_pre(a, 3)
    a.wait_all0()
    a.bar("p4_pubh")
    publish_local(a, "p4h", 3, True)
    a.bar("p4_goh")

def gemm64(a, ph, nsteps, slot, abase_sgpr, window, stage_bars, midbar=None):
    trK, trS = LdsBase(vTRK), LdsBase(vTRS)
    aK, aS = vACC
    D = 2
    def issue_w(i):
        base = slot(i)
        buf = vWF + 8 * (i % 3)
        for tr, o in ((trK, 0), (trS, 4)):
            r, off = tr.at(base)
            a.ds(f"ds_read_b128 {vr(buf+o,4)}, v{r} offset:{off}", ("W", i))
    def issue_a(i):
        a(f"s_add_u32 s{sT1}, s{abase_sgpr}, {i*2048}")
        a.vm(f"buffer_load_dwordx4 {vr(vA+4*(i % window),4)}, v{vL16}, s[{SRD_WS}:{SRD_WS+3}], s{sT1} offen sc1", ("A", i))
    for i in range(min(window, nsteps)): issue_a(i)
    if stage_bars: a.bar(f"{ph}_a")
    for i in range(D): issue_w(i)
    for i in range(nsteps):
        buf = vWF + 8 * (i % 3)
        af = vA + 4 * (i % window)
        a.wait_vm(("A", i)); a.wait_lg(("W", i))
        a(f"v_mfma_f32_32x32x16_bf16 {vr(aK,16)}, {vr(buf,4)}, {vr(af,4)}, {'0' if i == 0 else vr(aK,16)}")
        nn = i + D
        if stage_bars and nn < nsteps and nn % 4 == 0: a.bar(f"{ph}_B{nn//4}")
        if midbar is not None and i == midbar: a.bar(f"{ph}_b")
        if nn < nsteps: issue_w(nn)
        a(f"v_mfma_f32_32x32x16_bf16 {vr(aS,16)}, {vr(buf+4,4)}, {vr(af,4)}, {'0' if i == 0 else vr(aS,16)}")
        if i + window < nsteps: issue_a(i + window)

def red_epilogue(a, ph, rb, add_b2, final, pre_bar):
    aK, aS = vACC
    rv = E
    ad = 96
    if pre_bar: a.bar(f"{ph}_red1")
    a(f"s_lshl_b32 s{sT1}, s{sW}, 12"); a(f"s_add_u32 s{sT1}, s{sT1}, {rb}")
    a(f"v_add_u32 v{ad}, s{sT1}, v{vL16}")
    a(f"s_xor_b32 s{sT2}, s{sW}, 1"); a(f"s_lshl_b32 s{sT2}, s{sT2}, 12"); a(f"s_add_u32 s{sT2}, s{sT2}, {rb}")
    a(f"v_add_u32 v{ad+1}, s{sT2}, v{vL16}")
    if add_b2:
        a(f"v_add_u32 v{ad+2}, {MISC}, v{vCSA}")
        for g in range(4): a.ds(f"ds_read_b128 {vr(100+4*g,4)}, v{ad+2} offset:{B2F - MISC + g*32}", "b2")
    a.nop(8)
    for q in range(4): a.ds(f"ds_write_b128 v{ad}, {vr(aS+4*q,4)} offset:{q*1024}", "rw")
    a.wait_lg0()
    a.bar(f"{ph}_red2")
    for q in range(4): a.ds(f"ds_read_b128 {vr(rv+4*q,4)}, v{ad+1} offset:{q*1024}", "rr")
    for p in range(8): a(f"v_pk_add_f32 {vr(vXR+2*p,2)}, {vr(vXR+2*p,2)}, {vr(aK+2*p,2)}")
    if add_b2:
        for p in range(8): a(f"v_pk_add_f32 {vr(vXR+2*p,2)}, {vr(vXR+2*p,2)}, {vr(100+2*p,2)}")
    a.wait_lg0()
    for p in range(8): a(f"v_pk_add_f32 {vr(vXR+2*p,2)}, {vr(vXR+2*p,2)}, {vr(rv+2*p,2)}")
    pk = 116
    for p in range(8): a(f"v_cvt_pk_bf16_f32 v{pk+p}, v{vXR+2*p}, v{vXR+2*p+1}")
    if final:
        a.nop(2)
        for q in (0, 4):
            a(f"v_permlane32_swap_b32 v{pk+q}, v{pk+q+2}")
            a(f"v_permlane32_swap_b32 v{pk+q+1}, v{pk+q+3}")
        a(f"v_and_b32 v{ad}, 15, v{vLANE}"); a(f"v_lshlrev_b32 v{ad}, 10, v{ad}")
        a(f"v_bfe_u32 v{ad+1}, v{vLANE}, 4, 1"); a(f"v_lshl_add_u32 v{ad}, v{ad+1}, 5, v{ad}")
        a(f"v_lshrrev_b32 v{ad+1}, 5, v{vLANE}"); a(f"v_lshl_add_u32 v{ad}, v{ad+1}, 4, v{ad}")
        for q in range(4): a(f"v_permlane16_swap_b32 v{pk+q}, v{pk+4+q}")
        a(f"s_add_u32 s{sT1}, s{sOUTb}, 16384")
        a.vm(f"buffer_store_dwordx4 {vr(pk,4)}, v{ad}, s[{SRD_OUT}:{SRD_OUT+3}], s{sOUTb} offen nt", "out")
        a.vm(f"buffer_store_dwordx4 {vr(pk+4,4)}, v{ad}, s[{SRD_OUT}:{SRD_OUT+3}], s{sT1} offen nt", "out")
        return
    dual_store(a, "buffer_store_dwordx4", vr(pk, 4), vL16, SRD_WS, f"s{sXA}")
    dual_store(a, "buffer_store_dwordx4", vr(pk+4, 4), vL16, SRD_WS, f"s{sXA}", "offset:1024")
    s0, q0 = 100, 102
    a(f"v_pk_add_f32 {vr(s0,2)}, {vr(vXR,2)}, {vr(vXR+2,2)}")
    a(f"v_pk_mul_f32 {vr(q0,2)}, {vr(vXR,2)}, {vr(vXR,2)}")
    for p in range(1, 8):
        if p >= 2: a(f"v_pk_add_f32 {vr(s0,2)}, {vr(s0,2)}, {vr(vXR+2*p,2)}")
        a(f"v_pk_fma_f32 {vr(q0,2)}, {vr(vXR+2*p,2)}, {vr(vXR+2*p,2)}, {vr(q0,2)}")
    a(f"v_add_f32 v{s0}, v{s0}, v{s0+1}"); a(f"v_add_f32 v{q0}, v{q0}, v{q0+1}")
    a(f"s_lshl_b32 s{sT1}, s{sJ}, 1"); a(f"s_add_u32 s{sT1}, s{sT1}, s{sCP}")
    a(f"s_lshr_b32 s{sT2}, s{sT1}, 2"); a(f"s_lshl_b32 s{sT2}, s{sT2}, 10"); a(f"s_and_b32 s{sT1}, s{sT1}, 3"); a(f"s_lshl_b32 s{sT1}, s{sT1}, 2")
    a(f"s_add_u32 s{sT1}, s{sT1}, s{sT2}"); a(f"s_lshl_b32 s{sT2}, s{sTT}, 12"); a(f"s_add_u32 s{sT1}, s{sT1}, s{sT2}"); a(f"s_add_u32 s{sT1}, s{sT1}, s{sSTATS}")
    a(f"v_permlane32_swap_b32 v{s0}, v{q0}")
    a(f"v_add_f32 v{s0}, v{s0}, v{q0}")
    a.nop(1)
    dual_store(a, "buffer_store_dword", f"v{s0}", vL16, SRD_WS, f"s{sT1}")

def p3_compute(a):
    a(f"s_lshl_b32 s{sT2}, s{sTT}, 15"); a(f"s_add_u32 s{sT2}, s{sT2}, s{sHO}"); a(f"s_lshl_b32 s{sT3}, s{sCP}, 10"); a(f"s_add_u32 s{sT2}, s{sT2}, s{sT3}")
    gemm64(a, "p3", 16, lambda m: WOB + 4 * K * m, sT2, 16, False, midbar=OPT.get("p3mid", 10))
    ts(a, 9)
    red_epilogue(a, "p3", RB_P3, False, False, False)
    publish_pre(a, 2)
    a.wait_all0()
    a.bar("p3_pub")
    publish_local(a, "x1", 2, True)
    a.bar("p3_go")

def p5_compute_main(a):
    a(f"s_mul_i32 s{sT2}, s{sTT}, {H_TT}"); a(f"s_add_u32 s{sT2}, s{sT2}, s{sHO}"); a(f"s_lshl_b32 s{sT3}, s{sCP}, 10"); a(f"s_add_u32 s{sT2}, s{sT2}, s{sT3}")
    gemm64(a, "p5", 43, slot_p5, sT2, OPT.get("p5w", 12), True)

aQ, aKa, aKb = 32, 36, 40
aS = (48, 64)
aO, aP = 80, 96
aV = (104, 112)
aM, aT, aT2 = 120, 121, 122
aB8, aB0, aCm, aC8, aC0 = 128, 144, 160, 176, 192
aKA, aVA, aQA, aOA = 208, 209, 210, 211

def attention_setup(a):
    a(f"s_and_b32 s{sT1}, s{sW}, 3"); a(f"s_lshr_b32 s{sT2}, s{sW}, 2")
    a(f"s_lshl_b32 s{sT3}, s{sT1}, 10"); a(f"s_lshl_b32 s{sT0}, s{sT2}, 12"); a(f"s_add_u32 s{sT3}, s{sT3}, s{sT0}")
    a(f"v_add_u32 v{aKA}, s{sT3}, v{vL16}")
    a(f"v_lshrrev_b32 v{aT}, 5, v{vLANE}"); a(f"v_lshlrev_b32 v{aT}, 8, v{aT}")
    a(f"v_and_b32 v{aT2}, 15, v{vLANE}"); a(f"v_lshl_add_u32 v{aT}, v{aT2}, 4, v{aT}")
    a(f"s_add_u32 s{sT3}, s{sT3}, {VB}"); a(f"v_add_u32 v{aVA}, s{sT3}, v{aT}")
    a(f"s_lshl_b32 s{sT3}, s{sT1}, 11"); a(f"s_lshl_b32 s{sT0}, s{sT2}, 10"); a(f"s_add_u32 s{sT3}, s{sT3}, s{sT0}"); a(f"s_add_u32 s{sT3}, s{sT3}, {QB}")
    a(f"v_add_u32 v{aQA}, s{sT3}, v{vL16}")
    a(f"s_lshl_b32 s{sT3}, s{sG}, 1"); a(f"s_add_u32 s{sT3}, s{sT3}, s{sT2}")
    a(f"s_sub_i32 s{sTMIN}, 8, s{sT3}"); a(f"s_max_i32 s{sTMIN}, s{sTMIN}, 0")
    a(f"s_mul_i32 s{sO}, s{sG}, {HO_STRIDE}"); a(f"s_add_u32 s{sO}, s{sO}, {WS_HO}")
    a(f"s_lshl_b32 s{sT3}, s{sT2}, 15"); a(f"s_add_u32 s{sO}, s{sO}, s{sT3}")
    a(f"s_lshl_b32 s{sT3}, s{sJ}, 2"); a(f"s_add_u32 s{sT3}, s{sT3}, s{sT1}"); a(f"s_lshl_b32 s{sT3}, s{sT3}, 10"); a(f"s_add_u32 s{sO}, s{sO}, s{sT3}")
    a(f"v_and_b32 v{aT}, 31, v{vLANE}"); a(f"v_lshrrev_b32 v{aT2}, 5, v{vLANE}"); a(f"v_lshlrev_b32 v{aT2}, 2, v{aT2}")
    a(f"v_sub_u32 v{aT}, v{aT}, v{aT2}")
    a(f"v_mov_b32 v{aM}, {NEGBIG}"); a(f"v_mov_b32 v{aT2}, 0")
    for r in range(16):
        m0 = (r & 3) + 8 * (r >> 2)
        pair = 88 + 2 * (r % 2)
        a(f"v_cmp_le_i32 s[{pair}:{pair+1}], {m0}, v{aT}")
        if r >= 1:
            pp = 88 + 2 * ((r - 1) % 2)
            a(f"v_cndmask_b32 v{aB8+r-1}, v{aM}, v{aT2}, s[{pp}:{pp+1}]") if False else None
        a.nop(2)
        a(f"v_cndmask_b32 v{aB8+r}, v{aM}, v{aT2}, s[{pair}:{pair+1}]")
        a(f"v_cndmask_b32 v{aB0+r}, v{aT2}, v{aM}, s[{pair}:{pair+1}]")
    for q in range(16): a(f"v_mov_b32 v{aV[0]+q}, 0x3f803f80")

def warm_exchange(a):
    a(f"s_cmp_eq_u32 s{sI}, 3"); a("s_cbranch_scc1 L_we_x")
    a(f"s_mul_i32 s{sT1}, s{sG}, {HO_STRIDE}"); a(f"s_mul_i32 s{sT2}, s{sJ}, 22528"); a(f"s_add_u32 s{sT1}, s{sT1}, s{sT2}")
    a(f"s_lshl_b32 s{sT2}, s{sI}, 13"); a(f"s_add_u32 s{sT1}, s{sT1}, s{sT2}")
    touch(a, SRD_WS, 10, sT1, WS_HO)
    a("s_branch L_we_e")
    a.label("L_we_x")
    a(f"s_lshl_b32 s{sT2}, s{sG}, 16"); a(f"s_lshl_b32 s{sT0}, s{sJ}, 13"); a(f"s_add_u32 s{sT2}, s{sT2}, s{sT0}")
    touch(a, SRD_WS, 10, sT2, WS_XA)
    touch(a, SRD_WS, 10, sSTATS, 0)
    a.label("L_we_e")
def warm_w1(a):
    a(f"s_cmp_eq_u32 s{sI}, 3"); a("s_cbranch_scc1 L_ww_e")
    a(f"s_mul_i32 s{sT1}, s{sJ}, {J_WQ}"); a(f"s_and_b32 s{sT2}, s{sG}, 3"); a(f"s_mul_i32 s{sT2}, s{sT2}, 22528"); a(f"s_add_u32 s{sT1}, s{sT1}, s{sT2}")
    a(f"s_lshl_b32 s{sT2}, s{sI}, 13"); a(f"s_add_u32 s{sT1}, s{sT1}, s{sT2}")
    touch(a, SRD_WS, 10, sT1, WS_W1P)
    a.label("L_ww_e")

def _p2c2(a):
    a(f"s_cmp_lt_u32 s{sW}, 4"); a("s_cbranch_scc1 L_p2c2_skip")
    a(f"s_cmp_lg_u32 s{sPAIR}, 0"); a("s_cbranch_scc1 L_p2c2_skip")
    prep2_check_addr(a, 230)
    a(f"buffer_load_dwordx3 v[232:234], v230, s[{SRD_WS}:{SRD_WS+3}], 0 offen sc1")
    a.label("L_p2c2_skip")

def attention(a):
    S3 = (aS[0], aS[1], aO)
    def rdK(t):
        buf = aKa if t % 2 == 0 else aKb
        a.ds(f"ds_read_b128 {vr(buf,4)}, v{aKA} offset:{KB + t*4096}", ("K", t))
    def Kf(t): return vr(aKa if t % 2 == 0 else aKb, 4)
    def s1(t):
        a.wait_lg(("K", t))
        c = vr(aB8, 16) if t == 8 else (vr(aB0, 16) if t == 0 else "0")
        a(f"v_mfma_f32_32x32x16_bf16 {vr(S3[t % 3],16)}, {Kf(t)}, {vr(aQ,4)}, {c}")
        if t >= 2: rdK(t - 2)
    a.ds(f"ds_read_b128 {vr(aQ,4)}, v{aQA}", "Q")
    rdK(8); rdK(7)
    a.wait_lg("Q")
    s1(8); s1(7)
    a.nop(6)
    for t in range(8, -1, -1):
        if t >= 2: s1(t - 2)
        elif t == 1: a.nop(2)
        else: a.nop(3)
        s = S3[t % 3]
        if t == 8:
            a.nop(2)
            a(f"v_max3_f32 v{aM}, v{s}, v{s+1}, v{s+2}")
            a(f"v_max_f32 v{aM}, v{aM}, v{s+3}")
            for p in range(2, 8): a(f"v_max3_f32 v{aM}, v{aM}, v{s+2*p}, v{s+2*p+1}")
        else:
            for p in range(8): a(f"v_max3_f32 v{aM}, v{aM}, v{s+2*p}, v{s+2*p+1}")
        if t >= 1:
            a(f"s_cmp_eq_u32 s{sTMIN}, {t}")
            a("s_cbranch_scc1 L_at_p1done")
    a.label("L_at_p1done")
    a.wait_lg0()
    if OPT.get("tsa"): ts(a, 26)
    a(f"v_mov_b32 v{aT}, v{aM}")
    rdK(8); rdK(7)
    a(f"v_permlane32_swap_b32 v{aM}, v{aT}")
    a(f"v_max_f32 v{aM}, v{aM}, v{aT}")
    a(f"v_sub_f32 v{aM}, 0, v{aM}")
    a.nop(8)
    for p in range(8): a(f"v_pk_add_f32 {vr(aC8+2*p,2)}, {vr(aB8+2*p,2)}, {vr(aM,2)} op_sel_hi:[1,0]")
    a(f"v_mov_b32 v{aT}, v{aM}")
    for p in range(8): a(f"v_pk_add_f32 {vr(aC0+2*p,2)}, {vr(aB0+2*p,2)}, {vr(aM,2)} op_sel_hi:[1,0]")
    for r in range(0, 16, 2): a(f"v_pk_mul_f32 {vr(aCm+r,2)}, {vr(aM,2)}, 1.0 op_sel_hi:[1,0]")
    def S(t): return aS[t % 2]
    def rdV(t):
        vb = aV[t % 2]
        a(f"s_mov_b64 exec, s[{sVMASK}:{sVMASK+1}]")
        a.ds(f"ds_read_b128 {vr(vb,4)}, v{aVA} offset:{t*4096}", ("V", t))
        a.ds(f"ds_read_b128 {vr(vb+4,4)}, v{aVA} offset:{t*4096 + 512}", ("V", t))
        a("s_mov_b64 exec, -1")
    def s2(t):
        a.wait_lg(("K", t))
        c = vr(aC8, 16) if t == 8 else (vr(aC0, 16) if t == 0 else vr(aCm, 16))
        a(f"v_mfma_f32_32x32x16_bf16 {vr(S(t),16)}, {Kf(t)}, {vr(aQ,4)}, {c}")
    s2(8)
    rdK(6)
    a(f"s_cmp_lt_u32 s{sW}, 4"); a("s_cbranch_scc1 L_at_vw0")
    nb = 11 if OPT.get("w2reg", 0) else 0
    if OPT.get("ww1", 1): a(f"s_waitcnt vmcnt({2 + nb})")
    else:
        a(f"s_cmp_eq_u32 s{sW}, 7"); a("s_cbranch_scc1 L_at_vw5")
        a(f"s_waitcnt vmcnt({1 + nb})"); a("s_branch L_at_vw1")
        a.label("L_at_vw5")
        a(f"s_waitcnt vmcnt({2 + nb})")
    a("s_branch L_at_vw1")
    a.label("L_at_vw0")
    a("s_waitcnt vmcnt(0)")
    a.label("L_at_vw1")
    a("s_barrier")
    if OPT.get("tsa"): ts(a, 27)
    if OPT.get("tsa"): ts(a, 28)
    rdV(8)
    a.nop(5)
    PR = {8: 3, 5: 2, 2: 1, 0: 0} if OPT.get("bal", 2) == 1 else ({8: 3, 6: 2, 3: 1, 1: 0} if OPT.get("bal", 2) == 2 else {})
    for t in range(8, -1, -1):
        s = S(t); vb = aV[t % 2]
        if t in PR: a(f"s_setprio {PR[t]}")
        for r in range(0, 4): a(f"v_exp_f32 v{s+r}, v{s+r}")
        if t >= 1:
            s2(t - 1)
            if t >= 3: rdK(t - 3)
        for r in range(4, 8): a(f"v_exp_f32 v{s+r}, v{s+r}")
        for p in range(4): a(f"v_cvt_pk_bf16_f32 v{aP+p}, v{s+2*p}, v{s+2*p+1}")
        a.wait_lg(("V", t))
        a(f"v_exp_f32 v{s+8}, v{s+8}")
        a(f"v_mfma_f32_32x32x16_bf16 {vr(aO,16)}, {vr(vb,4)}, {vr(aP,4)}, {'0' if t == 8 else vr(aO,16)}")
        for r in range(9, 16): a(f"v_exp_f32 v{s+r}, v{s+r}")
        if t >= 1: rdV(t - 1)
        for p in range(4, 8): a(f"v_cvt_pk_bf16_f32 v{aP+p}, v{s+2*p}, v{s+2*p+1}")
        if t >= 1: a(f"s_cmp_eq_u32 s{sTMIN}, {t}")
        a.nop(1 if t >= 1 else 2)
        a(f"v_mfma_f32_32x32x16_bf16 {vr(aO,16)}, {vr(vb+4,4)}, {vr(aP+4,4)}, {vr(aO,16)}")
        if t >= 1: a("s_cbranch_scc1 L_at_p2done")
    a.label("L_at_p2done")
    if OPT.get("bal", 2): a("s_setprio 0")
    if OPT.get("tsa"): ts(a, 7)
    a.wait_lg0()
    a.nop(12)
    a(f"v_rcp_f32 v{aT}, v{aO+8}")
    a.nop(1)
    for r in range(8): a(f"v_mul_f32 v{aO+r}, v{aO+r}, v{aT}")
    for p in range(4): a(f"v_cvt_pk_bf16_f32 v{aP+p}, v{aO+2*p}, v{aO+2*p+1}")
    a.nop(1)
    dual_store(a, "buffer_store_dwordx4", vr(aP, 4), vL16, SRD_WS, f"s{sO}")
    a.wait_all0()

def src_patterns(a, regs, t0, t1, t2):
    a(f"v_lshrrev_b32 v{t0}, 3, v{vLANE}")
    a(f"v_bfe_u32 v{t1}, v{vLANE}, 4, 2")
    a(f"v_and_b32 v{t2}, 1, v{t1}"); a(f"v_lshlrev_b32 v{t2}, 1, v{t2}"); a(f"v_lshrrev_b32 v{t1}, 1, v{t1}"); a(f"v_or_b32 v{t1}, v{t1}, v{t2}")
    a(f"v_bfe_u32 v{t2}, v{vLANE}, 1, 2"); a(f"v_xor_b32 v{t1}, v{t1}, v{t2}"); a(f"v_lshlrev_b32 v{t1}, 5, v{t1}")
    a(f"v_and_b32 v{t2}, 1, v{vLANE}"); a(f"v_lshl_add_u32 v{t1}, v{t2}, 4, v{t1}")
    for reg, stride in regs:
        a(f"s_mov_b32 s{sT0}, {stride}"); a(f"v_mul_lo_u32 v{t2}, v{t0}, s{sT0}"); a(f"v_add_u32 v{reg}, v{t2}, v{t1}")

pT0, pT1 = 40, 41
pF = 44
def prep_setup(a):
    a(f"s_mov_b32 s{sT2}, 0"); tr_addr(a, pT0, sT2, tmp=(60, 61, 62, 63))
    a(f"s_mov_b32 s{sT2}, 1"); tr_addr(a, pT1, sT2, tmp=(60, 61, 62, 63))
    a(f"s_lshl_b32 s{sT2}, s{sW}, 12"); a(f"s_add_u32 s{sT2}, s{sT2}, {PREP}")
    a(f"v_add_u32 v{pT0}, s{sT2}, v{pT0}"); a(f"v_add_u32 v{pT1}, s{sT2}, v{pT1}")
def prep_fetch(a, srdn, vpat, stride, ssrc, slot, tag):
    for o in range(2):
        a(f"s_lshl_b32 s{sT3}, s{sW}, 12"); a(f"s_add_u32 m0, s{sT3}, {PREP + slot*2048 + o*1024}")
        a(f"s_add_u32 s{sT0}, s{ssrc}, {o*8*stride}")
        a.vm(f"buffer_load_dwordx4 v{vpat}, s[{srdn}:{srdn+3}], s{sT0} offen lds", tag)
def prep_read(a, f, slot, tag):
    a.wait_vm(tag)
    for ct, ad in ((0, pT0), (1, pT1)):
        for h in range(2):
            a.ds(f"ds_read_b64_tr_b16 {vr(f+4*ct+2*h,2)}, v{ad} offset:{slot*2048 + h*1024}", "pf")
    a.wait_lg0()
def prep_store(a, f, sdst):
    for ct in range(2):
        a.vm(f"buffer_store_dwordx4 {vr(f+4*ct,4)}, v{vL16}, s[{SRD_WS}:{SRD_WS+3}], s{sdst} offen offset:{ct*1024} sc1", "pst")
def prep_emit(a, sdst, slot, tag):
    f = pF + 8 * slot
    prep_read(a, f, slot, tag)
    prep_store(a, f, sdst)
def w2_item(a, ssrc, sdst, ks_sgpr):
    a(f"s_lshl_b32 s{ssrc}, s{ks_sgpr}, 14"); a(f"s_lshl_b32 s{sT0}, s{sJ}, 7"); a(f"s_add_u32 s{ssrc}, s{ssrc}, s{sT0}")
    a(f"s_lshl_b32 s{sdst}, s{ks_sgpr}, 11"); a(f"s_mul_i32 s{sT0}, s{sJ}, {J_W2}"); a(f"s_add_u32 s{sdst}, s{sdst}, s{sT0}"); a(f"s_add_u32 s{sdst}, s{sdst}, {WS_W2P}")

def loader_prep(a):
    pA, pB = 88, 89
    a(f"s_cmp_eq_u32 s{sW}, 7"); a("s_cbranch_scc1 L_prep7")
    src_patterns(a, ((vPQ, 3072),), 16, 17, 18)
    a(f"s_sub_u32 s{sT1}, s{sW}, 4")
    a(f"s_add_u32 s{sT2}, s{sT1}, 1"); a(f"s_cmp_eq_u32 s{sT1}, 2"); a(f"s_cselect_b32 s{sT2}, 0, s{sT2}")
    a(f"s_mul_i32 s{pA}, s{sG}, {16*3072}"); a(f"s_lshl_b32 s{sT2}, s{sT2}, 10"); a(f"s_add_u32 s{pA}, s{pA}, s{sT2}")
    a(f"s_lshl_b32 s{sT2}, s{sJ}, 7"); a(f"s_add_u32 s{pA}, s{pA}, s{sT2}")
    prep_fetch(a, SRD_WQ, vPQ, 3072, pA, 0, "p0")
    if OPT.get("vtlb"):
        a(f"s_cmp_lg_u32 s{sW}, 4"); a("s_cbranch_scc1 L_vtlb")
        a(f"v_lshlrev_b32 v19, 21, v{vLANE}"); a(f"v_add_u32 v19, 0x1ff000, v19")
        a(f"s_mov_b64 exec, s[{sM16}:{sM16+1}]")
        a(f"s_mov_b32 s{sT2}, 0")
        touch(a, SRD_WS, 19, sT2, 0)
        a("s_mov_b64 exec, -1")
        a.label("L_vtlb")
    a(f"s_mul_i32 s{pB}, s{sJ}, {J_WQ}"); a(f"s_lshl_b32 s{sT2}, s{sG}, 11"); a(f"s_add_u32 s{pB}, s{pB}, s{sT2}")
    a(f"s_lshl_b32 s{sT2}, s{sT1}, 16"); a(f"s_add_u32 s{pB}, s{pB}, s{sT2}"); a(f"s_add_u32 s{pB}, s{pB}, {WS_WQP}")
    a("s_branch L_prep_go")
    a.label("L_prep7")
    a.vmq = []
    src_patterns(a, ((vPO, 1024),), 16, 17, 18)
    a(f"s_lshl_b32 s{pA}, s{sG}, 14"); a(f"s_lshl_b32 s{sT2}, s{sJ}, 7"); a(f"s_add_u32 s{pA}, s{pA}, s{sT2}")
    prep_fetch(a, SRD_WO, vPO, 1024, pA, 0, "p0")
    a(f"s_lshl_b32 s{pB}, s{sG}, 11"); a(f"s_lshl_b32 s{sT2}, s{sJ}, 16"); a(f"s_add_u32 s{pB}, s{pB}, s{sT2}"); a(f"s_add_u32 s{pB}, s{pB}, {WS_WOP}")
    a.label("L_prep_go")
    prep_setup(a)
    if OPT["ts"]:
        a.wait_vm("p0"); ts(a, 1)
    prep_emit(a, pB, 0, "p0")
    ts(a, 2)
    a.vmq = []

qF = 212
sQ1, sQ2 = 92, 93
def prep2_fetch(a):
    pA, pC = 88, 89
    a(f"s_cmp_eq_u32 s{sW}, 4"); a("s_cbranch_scc1 L_p2f_skip")
    src_patterns(a, ((vP1, 2752), (vPO, 1024)), 16, 17, 18)
    a(f"s_sub_u32 s{sT1}, s{sW}, 5")
    a(f"s_mul_i32 s{pA}, s{sG}, {16*2752}"); a(f"s_lshl_b32 s{sT2}, s98, 5"); a(f"s_add_u32 s{pA}, s{pA}, s{sT2}")
    a(f"s_lshl_b32 s{sT2}, s{sT1}, 7"); a(f"s_add_u32 s{pA}, s{pA}, s{sT2}")
    a(f"s_mul_i32 s{sQ1}, s{sJ}, {J_WQ}"); a(f"s_lshl_b32 s{sT2}, s{sG}, 11"); a(f"s_add_u32 s{sQ1}, s{sQ1}, s{sT2}")
    a(f"s_lshl_b32 s{sT2}, s{sT1}, 16"); a(f"s_add_u32 s{sQ1}, s{sQ1}, s{sT2}"); a(f"s_add_u32 s{sQ1}, s{sQ1}, {WS_W1P}")
    prep_fetch(a, SRD_W1, vP1, 2752, pA, 0, "q0")
    a(f"s_lshl_b32 s{sT1}, s{sT1}, 5"); a(f"s_add_u32 s{sT1}, s{sT1}, s{sG}")
    w2_item(a, pC, sQ2, sT1)
    a(f"s_cmp_lt_u32 s{sT1}, 86"); a(f"s_cselect_b32 s{sQ2}, s{sQ2}, 0x7ffff000")
    prep_fetch(a, SRD_W2, vPO, 1024, pC, 1, "q1")
    a.label("L_p2f_skip")
    a.vmq = []
def prep2_emit(a):
    a(f"s_cmp_eq_u32 s{sW}, 4"); a("s_cbranch_scc1 L_p2r_skip")
    a("s_waitcnt vmcnt(0)")
    for slot in range(2):
        for ct, ad in ((0, pT0), (1, pT1)):
            for h in range(2):
                a(f"ds_read_b64_tr_b16 {vr(qF+8*slot+4*ct+2*h,2)}, v{ad} offset:{slot*2048 + h*1024}")
    a("s_waitcnt lgkmcnt(0)")
    for q, sd in ((0, sQ1), (1, sQ2)):
        for ct in range(2):
            a(f"buffer_store_dwordx4 {vr(qF+8*q+4*ct,4)}, v{vL16}, s[{SRD_WS}:{SRD_WS+3}], s{sd} offen offset:{ct*1024} sc1")
    a.label("L_p2r_skip")

def loader_prologue(a):
    t0, t1, t2 = 16, 17, 18
    a(f"s_mul_i32 s{sT0}, s{sJ}, {J_WQ}"); a(f"s_add_u32 s{sT0}, s{sT0}, s{sI1K}")
    a(f"s_add_u32 s{sWQb}, s{sT0}, {WS_WQP}"); a(f"s_add_u32 s{sW1b}, s{sT0}, {WS_W1P}")
    a(f"s_lshl_b32 s{sWOb}, s{sJ}, 16"); a(f"s_add_u32 s{sWOb}, s{sWOb}, s{sI1K}"); a(f"s_add_u32 s{sWOb}, s{sWOb}, {WS_WOP}")
    a(f"s_mul_i32 s{sW2b}, s{sJ}, {J_W2}"); a(f"s_add_u32 s{sW2b}, s{sW2b}, s{sI1K}"); a(f"s_add_u32 s{sW2b}, s{sW2b}, {WS_W2P}")
    a(f"v_add_u32 v{vLI[0]}, s{sI1K}, v{vL16}"); three_bases(a, vLI)
    a(f"s_and_b32 s{sT0}, s{sI}, 1"); a(f"s_lshr_b32 s{sT1}, s{sI}, 1")
    a(f"s_lshl_b32 s{sXA}, s{sG}, 16"); a(f"s_lshl_b32 s{sT2}, s{sT0}, 15"); a(f"s_add_u32 s{sXA}, s{sXA}, s{sT2}")
    a(f"s_lshl_b32 s{sT2}, s{sT1}, 10"); a(f"s_add_u32 s{sXA}, s{sXA}, s{sT2}"); a(f"s_add_u32 s{sXA}, s{sXA}, {WS_XA}")
    a(f"s_mov_b32 s{sTT}, s{sT0}")
    a(f"s_sub_i32 s{sKVr}, s{sG}, 4"); a(f"s_lshl_b32 s{sKVr}, s{sKVr}, 3"); a(f"s_add_i32 s{sKVr}, s{sKVr}, s{sJ}"); a(f"s_lshl_b32 s{sKVr}, s{sKVr}, 14")
    a(f"s_add_i32 s{sKVr}, s{sKVr}, s{sI1K}"); a(f"s_add_i32 s{sKVr}, s{sKVr}, {WS_KV}")
    a(f"s_lshl_b32 s{sT0}, s{sG}, 7")
    a(f"v_and_b32 v{t0}, 7, v{vLANE}"); a(f"v_lshlrev_b32 v{t0}, 2, v{t0}"); a(f"v_add_u32 v{vPOLL}, s{sT0}, v{t0}")
    a(f"s_lshl_b32 s{sT1}, s{sJ}, 2"); a(f"s_add_u32 s{sT0}, s{sT0}, s{sT1}"); a(f"v_mov_b32 v{vFLAG}, s{sT0}")
    a(f"v_lshlrev_b32 v{vSTA}, 6, v{vLANE}")
    a(f"v_and_b32 v{t0}, 31, v{vLANE}"); a(f"v_lshlrev_b32 v{t0}, 2, v{t0}"); a(f"v_lshrrev_b32 v{t1}, 5, v{vLANE}"); a(f"v_lshl_add_u32 v{t0}, v{t1}, 8, v{t0}")
    a(f"s_lshl_b32 s{sT0}, s{sTT}, 7"); a(f"s_add_u32 s{sT0}, s{sT0}, {ST_MEAN}"); a(f"v_add_u32 v{vSTW}, s{sT0}, v{t0}")
    a(f"s_mov_b32 s{sC1}, {f2u(1.0/512.0)}"); a(f"s_mov_b32 s{sC2}, {f2u(EPS)}")

def wq_unit(a, u): dma(a, SRD_WS, vL16, sWQb, u * 4096, slot_p1(u), ("W", u), "sc1")
def w1_unit(a, u): dma(a, SRD_WS, vL16, sW1b, u * 4096, slot_p4(u), ("W", u), "sc1")
def wo_unit(a, m): dma(a, SRD_WS, vL16, sWOb, m * 4096, WOB + 4 * K * m, ("WO", m), "sc1")
def w2_unit(a, m): dma(a, SRD_WS, vL16, sW2b, m * 4096, slot_p5(m), ("W2", m), "sc1")
def w2_from_regs(a, m):
    li = LdsBase(vLI)
    r, off = li.at(slot_p5(m))
    a.ds(f"ds_write_b128 v{r}, {vr(212 + 4*(m - 32), 4)} offset:{off}", ("w2r", m))
def a_pair(a, m, abase):
    dma(a, SRD_WS, vL16, sXA, m * 2048, abase + m * 4096, ("A", m), "sc1")

PV = (80, 81, 82, 83, 84, 85)
def poll_loop(a, name, vaddr, vdat):
    lab = f"L_{name}"
    a(f"s_mov_b32 s{sSPIN}, {OPT['spin']}")
    a.label(lab)
    a(f"buffer_load_dword v{vdat}, v{vaddr}, s[{SRD_WS}:{SRD_WS+3}], 0 offen sc1")
    a("s_waitcnt vmcnt(0)")
    a(f"v_subrev_u32 v{vdat}, s{sVAL}, v{vdat}")
    a(f"v_cmp_le_u32 vcc, 8, v{vdat}")
    a(f"s_sub_u32 s{sSPIN}, s{sSPIN}, 1")
    a(f"s_cbranch_scc1 {lab}_x")
    a(f"s_cbranch_vccnz {lab}")
    a.label(f"{lab}_x")
def poll(a, name, vaddr): poll_loop(a, name, vaddr, PV[0])

def publish_pre(a, ev):
    vf, vp, vv = PV[1], PV[2], PV[3]
    a(f"s_lshl_b32 s{sT1}, s{sG}, 7"); a(f"s_lshl_b32 s{sT2}, s{sJ}, 2"); a(f"s_add_u32 s{sT2}, s{sT2}, s{sT1}")
    a(f"s_lshl_b32 s{sVAL}, s{sPAIR}, 2"); a(f"s_add_u32 s{sVAL}, s{sVAL}, {ev}"); a(f"s_add_u32 s{sVAL}, s{sVAL}, s{sEP}")
    a(f"v_mov_b32 v{vf}, s{sT2}"); a(f"v_mov_b32 v{vv}, s{sVAL}")
    a(f"v_and_b32 v{vp}, 7, v{vLANE}"); a(f"v_lshlrev_b32 v{vp}, 2, v{vp}"); a(f"v_add_u32 v{vp}, s{sT1}, v{vp}")
    a(f"s_mov_b32 s{sSPIN}, {OPT['spin']}")
def publish_local(a, name, ev, pre_done=False):
    vf, vp, vv = PV[1], PV[2], PV[3]
    if not pre_done: publish_pre(a, ev)
    a(f"s_cmp_lg_u32 s{sW}, 0")
    a(f"s_cbranch_scc1 L_{name}_skip")
    a("s_mov_b64 exec, 1")
    a(f"s_cmp_eq_u32 s{sFAST}, 0")
    a(f"s_cbranch_scc1 L_{name}_sl")
    a(f"buffer_store_dword v{vv}, v{vf}, s[{SRD_WS}:{SRD_WS+3}], 0 offen")
    a(f"s_branch L_{name}_st")
    a.label(f"L_{name}_sl")
    a(f"buffer_store_dword v{vv}, v{vf}, s[{SRD_WS}:{SRD_WS+3}], 0 offen sc1")
    a.label(f"L_{name}_st")
    a("s_mov_b64 exec, -1")
    lab = f"L_{name}_p"
    a.label(lab)
    a(f"buffer_load_dword v{PV[0]}, v{vp}, s[{SRD_WS}:{SRD_WS+3}], 0 offen sc1")
    a("s_waitcnt vmcnt(0)")
    a(f"v_subrev_u32 v{PV[0]}, s{sVAL}, v{PV[0]}")
    a(f"v_cmp_le_u32 vcc, 8, v{PV[0]}")
    a(f"s_sub_u32 s{sSPIN}, s{sSPIN}, 1")
    a(f"s_cbranch_scc1 {lab}_x")
    a(f"s_cbranch_vccnz {lab}")
    a.label(f"{lab}_x")
    a.label(f"L_{name}_skip")

KVP = (20, 21, 22, 23, 24)
def kv_flag_store(a, wave, which, regs, name):
    v1_, v2_ = regs
    a(f"s_cmp_lg_u32 s{sW}, {wave}")
    a(f"s_cbranch_scc1 L_{name}_skip")
    a(f"s_lshl_b32 s{sT1}, s{sG}, 3"); a(f"s_add_u32 s{sT1}, s{sT1}, s{sJ}"); a(f"s_lshl_b32 s{sT1}, s{sT1}, 7"); a(f"s_add_u32 s{sT1}, s{sT1}, {WS_FLAGR + 4*which}")
    a(f"s_add_u32 s{sVAL}, s{sPAIRN}, 1"); a(f"s_add_u32 s{sVAL}, s{sVAL}, s{sEP}")
    a(f"v_mov_b32 v{v1_}, s{sVAL}"); a(f"v_mov_b32 v{v2_}, s{sT1}")
    a(f"s_mov_b64 s[{sEXEC}:{sEXEC+1}], exec"); a("s_mov_b64 exec, 1")
    a(f"buffer_store_dword v{v1_}, v{v2_}, s[{SRD_WS}:{SRD_WS+3}], 0 offen sc1")
    a(f"s_mov_b64 exec, s[{sEXEC}:{sEXEC+1}]")
    a.label(f"L_{name}_skip")

def kv_pred_addr(a, v2_, v3_, which):
    a(f"v_and_b32 v{v2_}, 3, v{vLANE}"); a(f"v_add_u32 v{v2_}, 1, v{v2_}"); a(f"v_sub_u32 v{v2_}, s{sG}, v{v2_}")
    a(f"v_cmp_gt_i32 vcc, 0, v{v2_}"); a(f"v_mov_b32 v{v3_}, s{sG}"); a("s_nop 1"); a(f"v_cndmask_b32 v{v2_}, v{v2_}, v{v3_}, vcc")
    a(f"v_lshlrev_b32 v{v2_}, 3, v{v2_}"); a(f"v_add_u32 v{v2_}, s{sJ}, v{v2_}"); a(f"v_lshlrev_b32 v{v2_}, 7, v{v2_}"); a(f"v_add_u32 v{v2_}, {WS_FLAGR + 4*which}, v{v2_}")

def poll_r(a, name, vaddr, vdat): poll_loop(a, name, vaddr, vdat)

def die_check_issue(a):
    a(f"v_and_b32 v24, 7, v{vLANE}"); a(f"v_lshlrev_b32 v24, 5, v24"); a(f"v_add_u32 v24, s{sG}, v24")
    a(f"v_lshlrev_b32 v24, 7, v24"); a(f"v_add_u32 v24, {WS_PREPF}, v24")
    a.vm(f"buffer_load_dwordx2 v[28:29], v24, s[{SRD_WS}:{SRD_WS+3}], 0 offen sc1", "die")
def die_check(a):
    a.wait_vm("die")
    a(f"s_cmp_lg_u32 s{sW}, 4"); a("s_cbranch_scc1 L_die_skip")
    a(f"s_add_u32 s{sVAL}, s{sEP}, 1")
    a(f"s_mov_b32 s{sSPIN}, {OPT['spin']}")
    a.label("L_die_loop")
    a(f"v_subrev_u32 v28, s{sVAL}, v28")
    a(f"v_cmp_le_u32 vcc, 8, v28")
    a(f"s_sub_u32 s{sSPIN}, s{sSPIN}, 1")
    a("s_cbranch_scc1 L_die_x")
    a("s_cbranch_vccz L_die_x")
    a(f"buffer_load_dwordx2 v[28:29], v24, s[{SRD_WS}:{SRD_WS+3}], 0 offen sc1")
    a("s_waitcnt vmcnt(0)")
    a("s_branch L_die_loop")
    a.label("L_die_x")
    a(f"s_getreg_b32 s{sT2}, hwreg(HW_REG_XCC_ID, 0, 3)")
    a(f"v_cmp_ne_u32 vcc, s{sT2}, v29")
    a("s_nop 4")
    a(f"s_cmp_eq_u64 vcc, 0")
    a(f"s_cselect_b32 s{sT1}, 1, 0")
    if OPT.get("slow"): a(f"s_mov_b32 s{sT1}, 0")
    a(f"v_mov_b32 v28, s{sT1}"); a(f"v_mov_b32 v29, {MODEW}")
    a(f"ds_write_b32 v29, v28")
    a("s_waitcnt lgkmcnt(0)")
    a.label("L_die_skip")

def kv_wait_k(a, ph):
    v0_, v1_, v2_, v3_, v4_ = KVP
    a(f"s_cmp_lg_u32 s{sW}, 4")
    a(f"s_cbranch_scc1 L_{ph}_kw_skip")
    kv_pred_addr(a, v2_, v3_, 0)
    a(f"s_add_u32 s{sVAL}, s{sPAIRN}, 1"); a(f"s_add_u32 s{sVAL}, s{sVAL}, s{sEP}")
    poll_r(a, f"{ph}_kp", v2_, v0_)
    a.label(f"L_{ph}_kw_skip")

def kv_wait_v(a):
    v0_, v1_, v2_, v3_, v4_ = KVP
    a(f"s_cmp_lg_u32 s{sW}, 4")
    a(f"s_cbranch_scc1 L_vw_skip")
    kv_pred_addr(a, v2_, v3_, 1)
    a(f"s_add_u32 s{sVAL}, s{sPAIR}, 1"); a(f"s_add_u32 s{sVAL}, s{sVAL}, s{sEP}")
    poll_r(a, "vp", v2_, v0_)
    a.label(f"L_vw_skip")

def kv_dma(a, part):
    a(f"s_lshl_b32 s{sT2}, s{sPAIR}, 22"); a(f"s_add_i32 s{sT2}, s{sT2}, s{sKVr}")
    for b in range(3, -1, -1):
        lab = f"L_kv{part}{b}"
        a(f"s_cmp_lt_u32 s{sG}, {4-b}")
        a(f"s_cbranch_scc1 {lab}")
        for h in range(2):
            dma(a, SRD_WS, vL16, sT2, b * 8 * 16384 + part * 8192 + h * 4096, (KB if part == 0 else VB) + b * 8192 + h * 4096, "KV", "nt sc1" if OPT.get("nt", 0) & 4 else "sc1")
        a.label(lab)

def xcd_touch_ws(a, base, share, npieces, vpat):
    a(f"s_lshr_b32 s{sT1}, s2, 3"); a(f"s_and_b32 s{sT1}, s{sT1}, 31"); a(f"s_mul_i32 s{sT1}, s{sT1}, {share}")
    a(f"s_lshl_b32 s{sT2}, s{sI}, 13"); a(f"s_add_u32 s{sT1}, s{sT1}, s{sT2}")
    touch(a, SRD_WS, vpat, sT1, base)
    a(f"s_cmp_ge_u32 s{sI}, 2"); a("s_cbranch_scc1 L_xt_skip")
    touch(a, SRD_WS, vpat, sT1, base + 4 * 8192)
    a.label("L_xt_skip")

def xcd_touch(a, srdn, share, npieces, vpat, dst):
    a(f"s_lshr_b32 s{sT1}, s2, 3"); a(f"s_and_b32 s{sT1}, s{sT1}, 31"); a(f"s_mul_i32 s{sT1}, s{sT1}, {share}")
    a(f"s_lshl_b32 s{sT2}, s{sI}, 13"); a(f"s_add_u32 s{sT1}, s{sT1}, s{sT2}")
    for p in range(0, npieces, 4): touch(a, srdn, vpat, sT1, p * 8192, dst)

def loader_stats_issue(a):
    a(f"s_lshl_b32 s{sT1}, s{sTT}, 12"); a(f"s_add_u32 s{sT1}, s{sT1}, s{sSTATS}")
    for q in range(4):
        a.vm(f"buffer_load_dwordx4 {vr(32+4*q,4)}, v{vL16}, s[{SRD_WS}:{SRD_WS+3}], s{sT1} offen offset:{1024*q} sc1", "ST")
def loader_stats_items(a, double_ln):
    I = lambda txt: (lambda: a(txt))
    s1 = [lambda: a.wait_vm("ST")] + [I(f"v_add_f32 v{32+e}, v{32+e}, v{40+e}") for e in range(8)]
    s2 = [I(f"v_add_f32 v{32+e}, v{32+e}, v{36+e}") for e in range(4)] + [I("v_add_f32 v32, v32, v34"), I("v_add_f32 v33, v33, v35"), I("v_add_f32 v32, v32, v33")]
    t0, t1, t2, t3, v = 48, 49, 50, 51, 32
    def f1():
        a(f"v_mov_b32 v{t0}, v{v}")
        a(f"v_cmp_gt_u32 s[{sEXEC}:{sEXEC+1}], 32, v{vLANE}")
        a.nop(1)
        a(f"v_permlane32_swap_b32 v{v}, v{t0}")
        a(f"v_mul_f32 v{v}, s{sC1}, v{v}"); a(f"v_mul_f32 v{t0}, s{sC1}, v{t0}")
        a(f"v_fma_f32 v{t0}, -v{v}, v{v}, v{t0}"); a(f"v_max_f32 v{t0}, 0, v{t0}"); a(f"v_add_f32 v{t1}, s{sC2}, v{t0}")
        a(f"v_rsq_f32 v{t1}, v{t1}")
        a.nop(1)
    def f2():
        if double_ln:
            a(f"v_mul_f32 v{t2}, v{t1}, v{t1}"); a(f"v_mul_f32 v{t2}, v{t2}, v{t0}"); a(f"v_add_f32 v{t2}, s{sC2}, v{t2}")
            a(f"v_rsq_f32 v{t2}, v{t2}")
            a.nop(1)
            a(f"v_mul_f32 v{t1}, v{t1}, v{t2}")
        a(f"v_cndmask_b32 v{t3}, v{t1}, v{v}, s[{sEXEC}:{sEXEC+1}]")
        a.ds(f"ds_write_b32 v{vSTW}, v{t3}", "stw")
    return {6: s1 + s2, 7: [f1, f2]}

def prep_signal(a):
    v0_, v1_, v2_ = 20, 21, 22
    a(f"s_cmp_lg_u32 s{sW}, 4"); a("s_cbranch_scc1 L_sig_skip0")
    a(f"s_getreg_b32 s{sT1}, hwreg(HW_REG_XCC_ID, 0, 3)")
    a(f"s_add_u32 s{sVAL}, s{sEP}, 1")
    a(f"s_lshl_b32 s{sT2}, s{sJ}, 5"); a(f"s_add_u32 s{sT2}, s{sT2}, s{sG}"); a(f"s_lshl_b32 s{sT2}, s{sT2}, 7"); a(f"s_add_u32 s{sT2}, s{sT2}, {WS_PREPF}")
    a(f"v_mov_b32 v{v0_}, s{sVAL}"); a(f"v_mov_b32 v{v0_+1}, s{sT1}"); a(f"v_mov_b32 v{v2_}, s{sT2}")
    a(f"s_mov_b64 s[{sEXEC}:{sEXEC+1}], exec"); a("s_mov_b64 exec, 1")
    a(f"buffer_store_dwordx2 v[{v0_}:{v0_+1}], v{v2_}, s[{SRD_WS}:{SRD_WS+3}], 0 offen sc1")
    a(f"s_mov_b64 exec, s[{sEXEC}:{sEXEC+1}]")
    a.label("L_sig_skip0")
def prep_wait(a):
    v2_ = 22
    a(f"s_cmp_lg_u32 s{sW}, 4"); a("s_cbranch_scc1 L_sig_skip")
    a(f"s_add_u32 s{sVAL}, s{sEP}, 1")
    a(f"v_and_b32 v{v2_}, 31, v{vLANE}"); a(f"s_lshl_b32 s{sT2}, s{sJ}, 5"); a(f"v_add_u32 v{v2_}, s{sT2}, v{v2_}")
    a(f"v_lshlrev_b32 v{v2_}, 7, v{v2_}"); a(f"v_add_u32 v{v2_}, {WS_PREPF}, v{v2_}")
    a(f"s_mov_b32 exec_hi, 0")
    poll_loop(a, "sig", v2_, 23)
    a("s_mov_b64 exec, -1")
    a.label("L_sig_skip")
    ts(a, 19)
    a.bar("prepgo")

def prep_signal2(a):
    a(f"s_cmp_lg_u32 s{sW}, 4"); a("s_cbranch_scc1 L_sig2_skip")
    a(f"s_add_u32 s{sVAL}, s{sEP}, 2")
    a(f"s_lshl_b32 s{sT2}, s{sJ}, 5"); a(f"s_add_u32 s{sT2}, s{sT2}, s{sG}"); a(f"s_lshl_b32 s{sT2}, s{sT2}, 7"); a(f"s_add_u32 s{sT2}, s{sT2}, {WS_PREPF}")
    a(f"v_mov_b32 v20, s{sVAL}"); a(f"v_mov_b32 v22, s{sT2}")
    a(f"s_mov_b64 s[{sEXEC}:{sEXEC+1}], exec"); a("s_mov_b64 exec, 1")
    a(f"buffer_store_dword v20, v22, s[{SRD_WS}:{SRD_WS+3}], 0 offen sc1")
    a(f"s_mov_b64 exec, s[{sEXEC}:{sEXEC+1}]")
    a.label("L_sig2_skip")
def _prep2_addr(a):
    a(f"v_and_b32 v26, 31, v{vLANE}"); a(f"s_lshl_b32 s{sT2}, s{sJ}, 5"); a(f"v_add_u32 v26, s{sT2}, v26")
    a(f"v_lshlrev_b32 v26, 7, v26"); a(f"v_add_u32 v26, {WS_PREPF}, v26")
def prep_check2_issue(a):
    _prep2_addr(a)
    a(f"s_mov_b32 exec_hi, 0")
    a.vm(f"buffer_load_dword v27, v26, s[{SRD_WS}:{SRD_WS+3}], 0 offen sc1", "s2")
    a("s_mov_b64 exec, -1")
def prep_check2(a):
    a.wait_vm("s2")
    a(f"s_add_u32 s{sVAL}, s{sEP}, 2")
    a(f"s_mov_b32 exec_hi, 0")
    a(f"v_subrev_u32 v27, s{sVAL}, v27")
    a(f"v_cmp_le_u32 vcc, 8, v27")
    a("s_cbranch_vccz L_s2_ok")
    poll_loop(a, "s2p", 26, 27)
    a.label("L_s2_ok")
    a("s_mov_b64 exec, -1")

cFB, cACC, cSEL, cAD = (64, 68, 72, 76), 80, 84, 88
def colsum_setup(a, csf):
    a(f"v_bfe_u32 v89, v{vLANE}, 4, 1"); a(f"v_and_b32 v90, 15, v{vLANE}")
    a(f"v_cmp_eq_u32 s[{sEXEC}:{sEXEC+1}], v89, v90")
    a(f"v_mov_b32 v91, 0x3f803f80"); a(f"v_mov_b32 v92, 0")
    a.nop(1)
    for q in range(4): a(f"v_cndmask_b32 v{cSEL+q}, v92, v91, s[{sEXEC}:{sEXEC+1}]")
    a(f"s_lshl_b32 s{sT1}, s{sI}, 7"); a(f"s_add_u32 s{sT1}, s{sT1}, {csf}")
    a(f"v_lshlrev_b32 v{cAD}, 2, v{vLANE}"); a(f"v_add_u32 v{cAD}, s{sT1}, v{cAD}")
def colsum_read(a, slot, st):
    li = LdsBase(vLI)
    for q in range(4):
        r, off = li.at(slot(2*st + (q >> 1)) + (q & 1) * 2048)
        a(f"ds_read_b128 {vr(cFB[q],4)}, v{r} offset:{off}")
def colsum_acc(a, st):
    a("s_waitcnt lgkmcnt(0)")
    first = st % 8 == 0
    for q in range(4):
        a(f"v_mfma_f32_16x16x32_bf16 {vr(cACC,4)}, {vr(cSEL,4)}, {vr(cFB[q],4)}, {'0' if (first and q == 0) else vr(cACC,4)}")
def colsum_flush(a, T):
    a.nop(8)
    a(f"s_mov_b64 exec, s[{sM16}:{sM16+1}]")
    a(f"ds_write_b32 v{cAD}, v{cACC} offset:{T*256}"); a(f"ds_write_b32 v{cAD}, v{cACC+1} offset:{T*256 + 64}")
    a("s_mov_b64 exec, -1")
def colsum_hooks(a, slot, st, ph):
    lab = f"L_{ph}_cs{st}_{len(a.L)}"
    a(f"s_cmp_ge_u32 s{sI}, 2"); a(f"s_cbranch_scc1 {lab}")
    if st >= 1:
        colsum_acc(a, st - 1)
        if (st - 1) % 8 == 7: colsum_flush(a, (st - 1) // 8)
    colsum_read(a, slot, st)
    if st == 23:
        colsum_acc(a, 23); colsum_flush(a, 2); a("s_waitcnt lgkmcnt(0)")
    a.label(lab)

def colsum4_setup(a):
    colsum_setup(a, CSF_Q)
    a(f"s_and_b32 s{sT1}, s{sI}, 1"); a(f"s_lshl_b32 s{sT1}, s{sT1}, 7")
    a(f"v_lshlrev_b32 v{cAD}, 2, v{vLANE}"); a(f"v_add_u32 v{cAD}, s{sT1}, v{cAD}")
    a(f"v_add_u32 v{cAD+1}, {STP}, v{cAD}"); a(f"v_add_u32 v{cAD}, {CSF_Q}, v{cAD}")
def colsum4_hooks(a, slot, st, ph):
    li = LdsBase(vLI)
    def rd(st_):
        for q in range(2):
            r, off = li.at(slot(2*st_ + q))
            a(f"ds_read_b128 {vr(cFB[q],4)}, v{r} offset:{off}")
    def acc(st_):
        a("s_waitcnt lgkmcnt(0)")
        for q in range(2):
            a(f"v_mfma_f32_16x16x32_bf16 {vr(cACC,4)}, {vr(cSEL,4)}, {vr(cFB[q],4)}, {'0' if (st_ % 8 == 0 and q == 0) else vr(cACC,4)}")
    def put(T):
        lab = f"L_{ph}_cp{T}"
        a.nop(8)
        a(f"s_cmp_lt_u32 s{sI}, 2"); a(f"s_cbranch_scc1 {lab}")
        a(f"s_mov_b64 exec, s[{sM16}:{sM16+1}]")
        a(f"ds_write_b32 v{cAD+1}, v{cACC}"); a(f"ds_write_b32 v{cAD+1}, v{cACC+1} offset:64")
        a("s_mov_b64 exec, -1")
        a.label(lab)
        a(f"v_mov_b32 v{cAD+2}, v{cACC}"); a(f"v_mov_b32 v{cAD+3}, v{cACC+1}")
    def get(T):
        lab = f"L_{ph}_cg{T}"
        a(f"s_cmp_ge_u32 s{sI}, 2"); a(f"s_cbranch_scc1 {lab}")
        a(f"s_mov_b64 exec, s[{sM16}:{sM16+1}]")
        a(f"ds_read_b32 v{cAD+4}, v{cAD+1}"); a(f"ds_read_b32 v{cAD+5}, v{cAD+1} offset:64")
        a("s_waitcnt lgkmcnt(0)")
        a(f"v_add_f32 v{cAD+2}, v{cAD+2}, v{cAD+4}"); a(f"v_add_f32 v{cAD+3}, v{cAD+3}, v{cAD+5}")
        a(f"ds_write_b32 v{cAD}, v{cAD+2} offset:{T*256}"); a(f"ds_write_b32 v{cAD}, v{cAD+3} offset:{T*256 + 64}")
        a("s_mov_b64 exec, -1")
        a.label(lab)
    if st >= 1:
        acc(st - 1)
        if (st - 1) % 8 == 7: put((st - 1) // 8)
    if st >= 9 and (st - 1) % 8 == 0: get((st - 9) // 8)
    rd(st)
    if st == 23:
        acc(23); put(2); a("s_waitcnt lgkmcnt(0)")
        a.bar(f"{ph}_cs")
        get(2); a("s_waitcnt lgkmcnt(0)")

LA = OPT.get('la', 6)
def gemm192_loader(a, ph, unit, slot, abase, double_ln, extra, colsum=None):
    if colsum is not None: colsum_setup(a, colsum)
    for m in range(2 * LA): a_pair(a, m, abase)
    nxt = 22
    extra = list(extra)
    items = loader_stats_items(a, double_ln)
    for st in range(24):
        need = []
        if st < 8: need += [("A", 2*st), ("A", 2*st + 1)]
        need += [("W", 2*st), ("W", 2*st + 1)]
        a.wait_vm(need)
        if st == 9 or (colsum is not None and st == 17): a.wait_lg0()
        a.bar(f"{ph}_B{st}")
        if st == 22 and ph.startswith("p1"): kv_flag_store(a, 4, 0, (KVP[1], KVP[2]), ph + "_kf")
        if OPT.get("ts3") == ph: ts(a, 36 + st)
        elif st in (0, 4, 8, 16) and not OPT.get("ts3"): ts(a, (20 if ph.startswith("p1") else 30) + {0: 0, 4: 5, 8: 1, 16: 2}[st])
        if colsum is not None: colsum_hooks(a, slot, st, ph)
        if st + LA < 8:
            a_pair(a, 2*(st + LA), abase); a_pair(a, 2*(st + LA) + 1, abase)
        elif st == 8 - LA:
            loader_stats_issue(a)
        elif nxt < 48:
            unit(a, nxt); unit(a, nxt + 1); nxt += 2
        else:
            for _ in range(2):
                if extra: extra.pop(0)()
        for f in items.get(st, []): f()
    a.bar(f"{ph}_end")
    while extra: extra.pop(0)()

def p1_loader(a, v1):
    ph = "p1a" if v1 else "p1b"
    wo = [(lambda m=m: wo_unit(a, m)) for m in range(16)]
    if v1:
        if OPT.get("cs4", 0): colsum4_setup(a)
        else: colsum_setup(a, CSF_Q)
        pre = OPT.get("p1pre", 12)
        for u in range(pre): wq_unit(a, u)
        nxt = pre
        for st in range(24):
            a.wait_vm([("W", 2*st), ("W", 2*st + 1)])
            if st in (9, 17) or (OPT.get("cs4", 0) and st in (10, 18)): a.wait_lg0()
            a.bar(f"{ph}_B{st}")
            if st == 22: kv_flag_store(a, 4, 0, (KVP[1], KVP[2]), ph + "_kf")
            if st == 1: prep_signal2(a)
            if st == 8: die_check_issue(a)
            if st == 12: prep_check2_issue(a)
            if st == 13: die_check(a)
            if st == 17: prep_check2(a)
            if OPT.get("ts3") == ph: ts(a, 36 + st)
            if OPT.get("cs4", 0): colsum4_hooks(a, slot_p1, st, ph)
            else: colsum_hooks(a, slot_p1, st, ph)
            if nxt < 48 and (nxt < 22 or st >= (nxt + 1 - 22) // 2 + 2):
                wq_unit(a, nxt); wq_unit(a, nxt + 1); nxt += 2
            elif st >= 18:
                for _ in range(3):
                    if wo: wo.pop(0)()
        a.bar(f"{ph}_end")
        while wo: wo.pop(0)()
    else:
        gemm192_loader(a, ph, wq_unit, slot_p1, A_P1, False, wo)
    kv_wait_k(a, ph)
    a.bar(f"{ph}_pubkv")

def _vf(a):
    kv_flag_store(a, 0, 1, (PV[1], PV[2]), "vf")

def read_mode(a):
    lab = a.name + "_mode"
    a(f"s_cmp_lg_u32 s{sPAIR}, 0")
    a(f"s_cbranch_scc1 {lab}")
    a(f"v_mov_b32 v{aT}, {MODEW}")
    a(f"ds_read_b32 v{aT}, v{aT}")
    a("s_waitcnt lgkmcnt(0)")
    a(f"v_readfirstlane_b32 s{sFAST}, v{aT}")
    a.label(lab)

def ts_real(a, idx):
    if not OPT["ts"]: return
    a.wait_lg0()
    a(f"s_memrealtime s[{sTS}:{sTS+1}]")
    a("s_waitcnt lgkmcnt(0)")
    a(f"v_writelane_b32 v{vTS}, s{sTS}, {idx}")

def span_stamp(a, which):
    if not OPT.get("span"): return
    a(f"s_memrealtime s[{sTS}:{sTS+1}]")
    a("s_waitcnt lgkmcnt(0)")
    a(f"s_cmp_lg_u32 s{sW}, 0"); a(f"s_cbranch_scc1 L_span{which}")
    a(f"s_lshl_b32 s{sT1}, s2, 3"); a(f"s_add_u32 s{sT1}, s{sT1}, {WS_TS + 4*which}")
    a(f"v_mov_b32 v80, s{sTS}"); a(f"v_mov_b32 v81, s{sT1}")
    a("s_mov_b64 exec, 1")
    a(f"buffer_store_dword v80, v81, s[{SRD_WS}:{SRD_WS+3}], 0 offen")
    a("s_mov_b64 exec, -1")
    a.label(f"L_span{which}")

def dump_ts(a):
    if not OPT["ts"]: return
    a(f"s_lshl_b32 s{sT1}, s2, 3"); a(f"s_add_u32 s{sT1}, s{sT1}, s{sW}"); a(f"s_lshl_b32 s{sT1}, s{sT1}, 8"); a(f"s_add_u32 s{sT1}, s{sT1}, {WS_TS}")
    a(f"v_lshlrev_b32 v{aT}, 2, v{vLANE}")
    a(f"buffer_store_dword v{vTS}, v{aT}, s[{SRD_WS}:{SRD_WS+3}], s{sT1} offen")

def stop_here(a, name):
    if OPT["stop"] == name:
        dump_ts(a)
        a("s_waitcnt vmcnt(0) lgkmcnt(0)")
        a("s_endpgm")

def build():
    top = Stream("t")
    common_init(top)
    c = Stream("c")
    span_stamp(c, 0)
    if OPT.get("exit0"):
        span_stamp(c, 1) if False else None
        c("s_waitcnt vmcnt(0)"); c("s_endpgm")
    ts(c, 0)
    ts_real(c, 62)
    compute_prologue(c)
    p1_compute(c, True)
    c.label("L_c_loop")
    ts(c, 3)
    if not OPT.get("vearly", 1): _vf(c)
    read_mode(c)
    attention_setup(c)
    c.bar("kready")
    ts(c, 4)
    c("s_branch L_attn")
    c.label("L_c_postattn")
    ts(c, 5)
    publish_pre(c, 1)
    c.bar("pubo")
    publish_local(c, "o", 1, True)
    c.bar("goo")
    stop_here(c, "p2")
    ts(c, 6)
    p3_compute(c)
    stop_here(c, "p3")
    ts(c, 10)
    p4_compute(c)
    stop_here(c, "p4")
    ts(c, 12)
    p5_compute_main(c)
    ts(c, 14)
    c(f"s_cmp_lg_u32 s{sPAIR}, 0")
    c("s_cbranch_scc1 L_c_final")
    st = c.state()
    red_epilogue(c, "p5a", RB_P5, True, False, False)
    publish_pre(c, 4)
    c.wait_all0()
    c.bar("p5a_pub")
    publish_local(c, "x2", 4, True)
    c.bar("p5a_go")
    stop_here(c, "p5")
    ts(c, 16)
    c(f"s_add_u32 s{sKVw}, s{sKVw}, {1 << 22}")
    c(f"s_mov_b32 s{sPAIRN}, 1")
    p1_compute(c, False)
    c(f"s_mov_b32 s{sPAIR}, 1")
    if OPT["ts"]:
        dump_ts(c); c("s_waitcnt vmcnt(0)"); c(f"v_mov_b32 v{vTS}, 0"); c(f"s_add_u32 s2, s2, 256")
    c("s_branch L_c_loop")
    c.label("L_c_final")
    c.set_state(st)
    red_epilogue(c, "p5b", RB_P5, True, True, False)
    c(f"s_or_b32 s{sT1}, s{sG}, s{sJ}"); c(f"s_or_b32 s{sT1}, s{sT1}, s{sW}")
    c(f"s_cmp_lg_u32 s{sT1}, 0"); c("s_cbranch_scc1 L_c_noep")
    c(f"v_mov_b32 v80, s{sEP}"); c(f"v_mov_b32 v81, {WS_EPOCH}")
    c(f"s_mov_b64 s[{sEXEC}:{sEXEC+1}], exec"); c("s_mov_b64 exec, 1")
    c(f"buffer_store_dword v80, v81, s[{SRD_WS}:{SRD_WS+3}], 0 offen sc1")
    c(f"s_mov_b64 exec, s[{sEXEC}:{sEXEC+1}]")
    c.label("L_c_noep")
    ts(c, 17)
    ts_real(c, 63)
    dump_ts(c)
    if OPT.get("span"): c("s_waitcnt vmcnt(0)")
    span_stamp(c, 1)
    c("s_waitcnt vmcnt(0)")
    c("s_endpgm")
    l = Stream("l")
    vT128 = 10
    l.label("L_loader")
    if OPT.get("exit0"): l("s_endpgm")
    ts(l, 0)
    if OPT.get("lprio", 1): l(f"s_setprio {OPT.get('lprio', 1)}")
    loader_prep(l)
    if OPT.get("early2", 1): prep2_fetch(l)
    loader_prologue(l)
    l(f"v_lshlrev_b32 v{vT128}, 7, v{vLANE}")
    if OPT.get("touch", 1) and OPT.get("cpf", 3) < 2:
        l(f"s_cmp_lg_u32 s{sW}, 7"); l("s_cbranch_scc1 L_l_t3")
        l("s_getpc_b64 s[94:95]")
        l.label("L_l_pc")
        l(f"s_sub_u32 s94, s94, L_l_pc-{NAME}_kernel"); l("s_subb_u32 s95, s95, 0")
        l(f"s_lshr_b32 s{sT1}, s2, 3"); l(f"s_lshl_b32 s{sT2}, s{sT1}, 11"); l(f"v_add_u32 v25, s{sT2}, v{vT128}")
        l(f"s_mov_b32 s{sT2}, L_exit-{NAME}_kernel"); l(f"v_min_u32 v25, s{sT2}, v25")
        l(f"s_mov_b64 exec, s[{sM16}:{sM16+1}]")
        l(f"s_mov_b32 m0, {DUMMY}"); l("s_nop 0")
        l(f"global_load_lds_dword v25, s[94:95]")
        l("s_mov_b64 exec, -1")
        l.label("L_l_t3")
    l(f"v_mov_b32 v20, {CNTW}"); l("v_mov_b32 v21, 0")
    l("ds_write_b32 v20, v21")
    if OPT.get("early2", 1):
        l(f"s_cmp_eq_u32 s{sW}, 4"); l("s_cbranch_scc1 L_l_w40")
        l("s_waitcnt vmcnt(4) lgkmcnt(0)"); l("s_branch L_l_w41")
        l.label("L_l_w40")
        l("s_waitcnt vmcnt(0) lgkmcnt(0)")
        l.label("L_l_w41")
        l.vmq = []; l.lg = []
    else: l.wait_all0()
    l(f"s_add_u32 s{sEP}, s{sEP}, 16")
    ts(l, 13)
    l.bar("prep")
    ts(l, 15)
    prep_signal(l)
    if not OPT.get("early2", 1): prep2_fetch(l)
    prep2_emit(l)
    prep_wait(l)
    ts(l, 18)
    p1_loader(l, True)
    l.label("L_l_loop")
    ts(l, 3)
    kv_dma(l, 0)
    read_mode(l)
    attention_setup(l)
    kv_wait_v(l)
    l.wait_vm0()
    l.bar("kready")
    kv_dma(l, 1)
    if OPT.get("ww1", 1): warm_w1(l)
    warm_exchange(l)
    if OPT.get("w2reg", 0):
        for q in range(11):
            l(f"s_add_u32 s{sT0}, s{sW2b}, {(32 + q) * 4096}")
            l(f"buffer_load_dwordx4 {vr(212 + 4*q, 4)}, v{vL16}, s[{SRD_WS}:{SRD_WS+3}], s{sT0} offen sc1")
    l.vmq = []
    ts(l, 4)
    TOUCH = OPT.get("touch", 1)
    if OPT.get("lprio", 1) and not OPT.get("aprio", 0): l("s_setprio 0")
    l("s_branch L_attn")
    l.label("L_l_postattn")
    l.vmq = []; l.lg = []
    if OPT.get("lprio", 1): l(f"s_setprio {OPT.get('lprio', 1)}")
    ts(l, 5)
    l.bar("pubo")
    o1 = OPT.get("o1", 10); o2 = o1 + OPT.get("o2", 6); o3 = o2 + OPT.get("o3", 0)
    for u in range(o1): w1_unit(l, u)
    l.bar("goo")
    stop_here(l, "p2")
    ts(l, 6)
    l.bar("p3_b")
    assert o3 <= 18
    for u in range(o1, o2): w1_unit(l, u)
    l.bar("p3_red2")
    for u in range(o2, o3): w1_unit(l, u)
    l.bar("p3_pub")
    for u in range(o3, 22): w1_unit(l, u)
    l.bar("p3_go")
    stop_here(l, "p3")
    ts(l, 10)
    l(f"s_cmp_lg_u32 s{sPAIR}, 0")
    l("s_cbranch_scc1 L_l_p4b")
    st = l.state()
    ends = []
    nb0 = len(l.bars)
    for v1 in (True, False):
        if not v1:
            l.label("L_l_p4b"); l.set_state(st)
            logged = l.bars[nb0:]; l.bars = l.bars[:nb0]
        gemm192_loader(l, "p4", w1_unit, slot_p4, A_P4, True, [(lambda m=m: w2_unit(l, m)) for m in range(16)], colsum=CSF_1 if v1 else None)
        h1 = 16 + OPT.get("h1", 8); h2 = h1 + OPT.get("h2", 8)
        for m in range(16, h1): w2_unit(l, m)
        if OPT.get("w2reg", 0):
            for m in range(32, 38): w2_from_regs(l, m)
        l.bar("p4_pubh")
        for m in range(h1, h2): w2_unit(l, m)
        l.bar("p4_goh")
        ends.append(l.state())
        if v1: l("s_branch L_l_p5")
    assert ends[0] == ends[1] and l.bars[nb0:] == logged
    l.label("L_l_p5")
    stop_here(l, "p4")
    ts(l, 12)
    l.wait_vm([("W2", m) for m in range(4)])
    l.bar("p5_a")
    w2n = 16 + OPT.get("h1", 8) + OPT.get("h2", 8)
    cond = []
    late5 = list(range(38, 43))
    early = OPT.get("wqe", 0)
    for st5 in range(1, 11):
        need = [("W2", m) for m in range(4*st5, min(4*st5 + 4, 43))]
        l.wait_vm(need)
        if OPT.get("w2reg", 0) and st5 in (8, 9): l.wait_lg0()
        l.bar(f"p5_B{st5}")
        if OPT.get("w2reg", 0):
            if st5 == 4:
                for m in range(38, 43): w2_from_regs(l, m)
        else:
            k_ = 0
            while w2n < 38 and k_ < 3:
                w2_unit(l, w2n); w2n += 1; k_ += 1
            if w2n >= 38 and st5 >= 4 and late5:
                for _ in range(min(3 - k_, len(late5))): w2_unit(l, late5.pop(0))
        if st5 >= 9 - early // 2 and st5 <= 8 and len(cond) < early:
            stt = l.state()
            l(f"s_cmp_lg_u32 s{sPAIR}, 0"); l(f"s_cbranch_scc1 L_l_wqe{st5}")
            for _ in range(2):
                wq_unit(l, len(cond)); cond.append(len(cond))
            l.label(f"L_l_wqe{st5}")
            l.set_state(stt)
    ts(l, 14)
    l(f"s_cmp_lg_u32 s{sPAIR}, 0")
    l("s_cbranch_scc1 L_l_final")
    l.vmq = l.vmq + [("W", u) for u in cond]
    n0 = len(cond); n1 = n0 + OPT.get("wq1", 6); n2 = n1 + OPT.get("wq2", 6)
    for u in range(n0, n1): wq_unit(l, u)
    l.bar("p5a_red2")
    for u in range(n1, n2): wq_unit(l, u)
    l.bar("p5a_pub")
    for u in range(n2, 22): wq_unit(l, u)
    l.bar("p5a_go")
    stop_here(l, "p5")
    ts(l, 16)
    l(f"s_mov_b32 s{sPAIRN}, 1")
    p1_loader(l, False)
    l(f"s_mov_b32 s{sPAIR}, 1")
    if OPT["ts"]:
        dump_ts(l); l("s_waitcnt vmcnt(0)"); l(f"v_mov_b32 v{vTS}, 0"); l(f"s_add_u32 s2, s2, 256")
    l("s_branch L_l_loop")
    l.label("L_l_final")
    l.bar("p5b_red2")
    dump_ts(l)
    l("s_waitcnt vmcnt(0)")
    l("s_endpgm")
    at = Stream("a")
    at.label("L_attn")
    attention(at)
    at(f"s_cmp_ge_u32 s{sW}, 4")
    at("s_cbranch_scc1 L_l_postattn")
    at("s_branch L_c_postattn")
    assert c.bars == l.bars, "\n".join(f"{x} | {y}" for x, y in zip(c.bars, l.bars)) + f"\n{len(c.bars)} {len(l.bars)}"
    al = lambda k: [f".p2align {OPT[k]}"] if OPT.get(k) else []
    sh = lambda k: ["s_nop 0"] * OPT.get(k, 0)
    lines = top.L + sh("shc") + c.L + al("all") + sh("shl0") + l.L + al("ala") + sh("sha") + at.L + ["L_exit:", "s_endpgm"]
    return lines

HEAD = f"""; Fused two-pair transformer block (sliding-window attention + GELU MLP), one persistent launch.
; @launch grid=(256,1,1) block=(512,1,1) lds={LDS_TOTAL}
.amdgcn_target "amdgcn-amd-amdhsa--gfx950"
.text
.globl {NAME}_kernel
.p2align 8
.type {NAME}_kernel,@function
{NAME}_kernel:
"""
TAIL = f"""
.section .rodata,"a"
.p2align 6
.amdhsa_kernel {NAME}_kernel
  .amdhsa_next_free_vgpr 256
  .amdhsa_next_free_sgpr 102
  .amdhsa_accum_offset 256
  .amdhsa_group_segment_fixed_size 0
  .amdhsa_kernarg_size 88
  .amdhsa_user_sgpr_count 2
  .amdhsa_user_sgpr_kernarg_segment_ptr 1
  .amdhsa_system_sgpr_workgroup_id_x 1
.end_amdhsa_kernel
"""
if __name__ == "__main__":
    lines = build()
    errs = lint(lines)
    for e in errs[:40]: print("LINT", e, file=sys.stderr)
    out = OPT.get("out", f"cdna_kernels/{NAME}.s")
    open(out, "w").write(HEAD + "\n".join("    " + x if not x.endswith(":") else x for x in lines) + TAIL)
    print(f"wrote {out}: {len(lines)} lines, {len(errs)} lint findings", file=sys.stderr)
```

```python
import sys, copy
from asmlib import Stream, lint

NAME = "interleave_layers__sliding_block__mixer_channel_mlp__prompt"
OPT = dict(ts=False, stop=None, spin=400000)
for a in sys.argv[1:]:
    if a.startswith("--"):
        k, _, v = a[2:].partition("=")
        OPT[k] = (int(v) if v.lstrip("-").isdigit() else v) if v else True

K = 1024
LDS_TOTAL = 160 * K
MISC = 152 * K
ST_MEAN = MISC
ST_RSTD = MISC + 256
CS_Q = MISC + 512
CS_1 = MISC + 2048
B1F = MISC + 3584
B2F = MISC + 4352
STP = MISC + 4608
CSF_Q = MISC + 5632
CSF_1 = MISC + 6400
MODEW = MISC + 7168
CNTW = MISC + 7172
DUMMY = MISC + 7424
KB, VB, QB, WOB = 0, 40 * K, 80 * K, 88 * K
def slot_p1(u):
    if u < 22: return 64 * K + 4 * K * u
    if u < 32: return 64 * K + 4 * K * (u - 22)
    if u < 40: return 4 * K * (u - 32)
    if u < 46: return 40 * K + 4 * K * (u - 40)
    return 64 * K + 4 * K * (u - 46)
A_P1 = 0
def slot_p4(u):
    if u < 22: return 4 * K * u
    if u < 32: return 4 * K * (u - 22)
    return 88 * K + 4 * K * (u - 32)
A_P4 = 88 * K
def slot_p5(m):
    if m < 12: return 40 * K + 4 * K * m
    if m < 22: return 4 * K * (m - 12)
    if m < 38: return 88 * K + 4 * K * (m - 22)
    return 40 * K + 4 * K * (m - 38)
RB_P3 = 72 * K
RB_P5 = 0
WS_FLAGL = 0x0
WS_FLAGR = 0x2000
WS_STATS = 0x10000
WS_XA = 0x100000
WS_HO = 0x300000
HO_STRIDE = 0x2C000
H_TT = 86 * 1024
WS_KV = 0x900000
WS_TS = 0x1200000
WS_WQP = 0x1400000
WS_W1P = 0x1600000
WS_WOP = 0x1800000
WS_W2P = 0x1900000
J_WQ, J_WO, J_W2 = 0x30000, 0x10000, 0x2C000
PREP = 120 * K
WS_PREPF = 0x1C00000
WS_EPOCH = 0x1F00000
WS_SIZE = 0x2000000
SRD_X, SRD_WQ, SRD_WO, SRD_W1, SRD_W2, SRD_WS, SRD_OUT, SRD_DBG = 4, 8, 12, 16, 20, 24, 28, 32
sG, sJ, sW, sI, sPAIR, sFAST, sTT, sCP = 36, 37, 38, 39, 40, 41, 42, 43
SRD_TMP = 44
sI1K = 48
sT0, sT1, sT2, sT3 = 49, 50, 51, 52
sXA = 53
sHO = 54
sWQb, sW1b, sWOb = 55, 56, 57
sW2b = 100
sKVw = 58
sSTATS = 59
sSPIN = 60
sHST = (61, 62, 63, 64, 65, 66)
sX0 = 63
sKVr = 62
sVMASK = 68
sEXEC = 70
sTMIN = 72
sO = 73
sVAL = 74
sOUTb = 75
sPAIRN = 85
sEP = 87
sTS = 76
sM16 = 78
sM0_32 = 80
sC1, sC2, sC3 = 82, 83, 84
sKPTR = 86
vLANE, vL16 = 0, 1
vTRA = (2, 3, 4)
vTRK = (5, 6, 7)
vTRS = (8, 9, 10)
vAR = 11
vCSA = 12
vTOK = 13
vSTB = 14
vTS = 15
vXR = 16
vACC = (32, 48)
vWF = 64
vE = 88
vA = 128
vPQ, vP1, vPO, vX0, vPOLL, vFLAG, vSTA, vSTW = 2, 3, 4, 5, 6, 7, 8, 9
vLI = (11, 12, 13)

EPS = 1e-5
import struct, math
def f2u(x): return struct.unpack("<I", struct.pack("<f", x))[0]
QSCALE = math.log2(math.e) / 4.0
GC0 = -2.0 * math.sqrt(2.0 / math.pi) * math.log2(math.e)
GC1 = GC0 * 0.044715
NEGBIG = f2u(-1.0e30)

def ts(a, idx):
    if not OPT["ts"]: return
    a.wait_lg0()
    a(f"{'s_memrealtime' if OPT.get('rt') else 's_memtime'} s[{sTS}:{sTS+1}]")
    a("s_waitcnt lgkmcnt(0)")
    a(f"v_writelane_b32 v{vTS}, s{sTS}, {idx}")

def srd(a, d, ptr, size):
    a(f"s_mov_b32 s{d}, s{ptr}")
    a(f"s_and_b32 s{d+1}, s{ptr+1}, 0xffff")
    a(f"s_mov_b32 s{d+2}, {size}")
    a(f"s_mov_b32 s{d+3}, 0x20000")

def vr(b, n): return f"v[{b}:{b+n-1}]"

class LdsBase:
    def __init__(self, regs): self.regs = regs
    def at(self, addr):
        return self.regs[addr >> 16], addr & 0xffff

def dma(a, srdn, vpat, sbase, soff, lds, tag, flags=""):
    a(f"s_add_u32 m0, s{sI1K}, {lds}")
    a(f"s_add_u32 s{sT0}, s{sbase}, {soff}")
    a.vm(f"buffer_load_dwordx4 v{vpat}, s[{srdn}:{srdn+3}], s{sT0} offen {flags} lds".replace("  ", " "), tag)

def dual_store(a, kind, data, vaddr, srdn, soff, extra=""):
    lab = a.name + f"_ds{len(a.L)}"
    a(f"s_cmp_eq_u32 s{sFAST}, 0")
    a(f"s_cbranch_scc1 {lab}_s")
    a(f"{kind} {data}, v{vaddr}, s[{srdn}:{srdn+3}], {soff} offen {extra} nt".replace("  ", " ").rstrip())
    a(f"s_branch {lab}_e")
    a.label(f"{lab}_s")
    a.vm(f"{kind} {data}, v{vaddr}, s[{srdn}:{srdn+3}], {soff} offen {extra} sc1".replace("  ", " "), "st")
    a.label(f"{lab}_e")

def common_init(a):
    if OPT.get("exit1") == 1: a("s_endpgm")
    a("s_cmp_ge_u32 s2, 256")
    a("s_cbranch_scc1 L_exit")
    if OPT.get("perm"):
        a("s_and_b32 s3, s2, 7"); a("s_lshl_b32 s3, s3, 3"); a("s_lshr_b32 s4, s2, 3"); a("s_and_b32 s4, s4, 7"); a("s_or_b32 s3, s3, s4")
        if OPT["perm"] == 2: a("s_xor_b32 s3, s3, 5")
        a("s_and_b32 s2, s2, 0xc0"); a("s_or_b32 s2, s2, s3")
    a(f"s_load_dwordx16 s[{64}:{79}], s[0:1], 0")
    if OPT.get("cpf", 3) == 3:
        a(f"s_getpc_b64 s[94:95]")
        a.label("L_pf_pc3")
        a(f"s_mov_b32 m0, {DUMMY}")
        a(f"v_lshlrev_b32 v2, 7, v0")
        a(f"v_min_u32 v2, L_exit-L_pf_pc3, v2")
        a(f"global_load_lds_dword v2, s[94:95]")
    a(f"s_load_dwordx4 s[{88}:{91}], s[0:1], 64")
    a(f"s_load_dwordx2 s[{92}:{93}], s[0:1], 80")
    a(f"v_lshrrev_b32 v1, 6, v0")
    a(f"v_and_b32 v{vLANE}, 63, v0")
    a(f"s_and_b32 s{sT0}, s2, 7")
    a(f"v_readfirstlane_b32 s{sW}, v1")
    if OPT.get("cpf", 3) in (1, 2):
        a(f"s_getpc_b64 s[94:95]")
        a.label("L_pf_pc")
        a(f"v_lshlrev_b32 v2, 7, v{vLANE}")
        a(f"s_cmp_lt_u32 s{sW}, 6"); a("s_cbranch_scc1 L_pf_no")
        a(f"s_cmp_eq_u32 s{sW}, 6"); a(f"s_cselect_b32 s{sT1}, 0, L_loader-L_pf_pc")
        a(f"s_add_u32 s94, s94, s{sT1}"); a("s_addc_u32 s95, s95, 0")
        a("global_load_dword v255, v2, s[94:95]")
        a.label("L_pf_no")
        if OPT.get("cpf", 3) == 2:
            a(f"s_cmp_lg_u32 s{sW}, 5"); a("s_cbranch_scc1 L_pf_no2")
            a(f"s_lshr_b32 s{sT1}, s2, 3"); a(f"s_lshl_b32 s{sT1}, s{sT1}, 11"); a(f"v_add_u32 v2, s{sT1}, v2")
            a(f"s_mov_b32 s{sT1}, L_exit-L_pf_pc"); a(f"v_min_u32 v2, s{sT1}, v2")
            a("s_mov_b64 exec, 0xffff")
            a("global_load_dword v255, v2, s[94:95]")
            a("s_mov_b64 exec, -1")
            a.label("L_pf_no2")
    a(f"s_lshr_b32 s{sT1}, s2, 3")
    a(f"s_lshr_b32 s{sT2}, s{sT1}, 3")
    a(f"s_lshl_b32 s{sT0}, s{sT0}, 2")
    a(f"s_add_u32 s{sG}, s{sT0}, s{sT2}")
    a(f"s_and_b32 s{sJ}, s{sT1}, 7")
    a(f"s_and_b32 s{sI}, s{sW}, 3")
    a(f"s_lshl_b32 s{sI1K}, s{sI}, 10")
    a(f"s_mov_b32 s{sPAIR}, 0"); a(f"s_mov_b32 s{sPAIRN}, 0")
    a(f"s_mov_b32 s{sFAST}, 0")
    a(f"v_lshlrev_b32 v{vL16}, 4, v{vLANE}")
    a(f"v_mov_b32 v{vTS}, 0")
    a("s_waitcnt lgkmcnt(0)")
    if OPT.get("exit1") == 2: a("s_endpgm")
    srd(a, SRD_X, 64, 2048 * 1024)
    srd(a, SRD_WQ, 66, 512 * 3072)
    srd(a, SRD_WO, 68, 512 * 1024)
    srd(a, SRD_W1, 72, 512 * 2752)
    srd(a, SRD_W2, 76, 1376 * 1024)
    if OPT.get("wsoff", 0):
        a(f"s_add_u32 s92, s92, {OPT['wsoff'] << 20}"); a("s_addc_u32 s93, s93, 0")
    srd(a, SRD_WS, 92, WS_SIZE)
    srd(a, SRD_OUT, 88, 2048 * 1024)
    srd(a, SRD_DBG, 90, 256)
    a(f"s_mov_b32 s{sT3}, {WS_EPOCH}")
    a(f"s_buffer_load_dword s{sEP}, s[{SRD_WS}:{SRD_WS+3}], s{sT3}")
    if OPT.get("tlb", 0):
        a(f"s_cmp_lg_u32 s{sW}, {OPT.get('tlbw', 3)}"); a("s_cbranch_scc1 L_tlb_no")
        for k in range(15):
            a(f"s_mov_b32 s{sT3}, {k << 21}")
            a(f"s_buffer_load_dword s{86}, s[{SRD_WS}:{SRD_WS+3}], s{sT3}")
        a(f"s_buffer_load_dword s86, s[{SRD_OUT}:{SRD_OUT+3}], 0")
        a(f"s_buffer_load_dword s86, s[{SRD_W1}:{SRD_W1+3}], 0")
        a(f"s_buffer_load_dword s86, s[{SRD_W2}:{SRD_W2+3}], 0")
        a.label("L_tlb_no")
    a("s_mov_b32 s94, s74"); a("s_mov_b32 s95, s75"); a("s_mov_b32 s96, s78"); a("s_mov_b32 s97, s79")
    a(f"s_mul_i32 s98, s{sJ}, 10"); a(f"s_add_u32 s98, s98, 6"); a(f"s_mul_i32 s99, s{sJ}, 12")
    a(f"s_cmp_lt_u32 s{sJ}, 3")
    a(f"s_cselect_b32 s98, s99, s98")
    a(f"s_cselect_b32 s99, 12, 10")
    a(f"s_mov_b32 s{sVMASK}, 0x0000ffff"); a(f"s_mov_b32 s{sVMASK+1}, 0x0000ffff")
    a(f"s_mov_b64 s[{sM16}:{sM16+1}], 0xffff")
    a(f"s_mov_b32 s{sM0_32}, 1"); a(f"s_mov_b32 s{sM0_32+1}, 1")
    a(f"s_lshl_b32 s{sSTATS}, s{sG}, 13"); a(f"s_add_u32 s{sSTATS}, s{sSTATS}, {WS_STATS}")
    if OPT.get("exit1") == 3:
        a("s_waitcnt lgkmcnt(0)"); a("s_endpgm")
    a(f"s_cmp_ge_u32 s{sW}, 4")
    a("s_cbranch_scc1 L_loader")

def tr_addr(a, dst, ct_expr_sgpr, natural_second=None, tmp=(vE, vE+1, vE+2, vE+3)):
    t0, t1, t2, t3 = tmp
    def one(d, kexpr):
        kexpr(t0)
        a(f"v_lshrrev_b32 v{t1}, 1, v{t0}"); a(f"v_and_b32 v{t1}, 3, v{t1}")
        a(f"v_and_b32 v{t2}, 1, v{t1}"); a(f"v_lshlrev_b32 v{t2}, 1, v{t2}"); a(f"v_lshrrev_b32 v{t1}, 1, v{t1}")
        a(f"v_or_b32 v{t1}, v{t1}, v{t2}")
        a(f"v_lshrrev_b32 v{t2}, 4, v{vLANE}"); a(f"v_and_b32 v{t2}, 1, v{t2}")
        a(f"s_lshl_b32 s{sT3}, s{ct_expr_sgpr}, 1")
        a(f"v_add_u32 v{t2}, s{sT3}, v{t2}")
        a(f"v_xor_b32 v{t1}, v{t1}, v{t2}"); a(f"v_lshlrev_b32 v{t1}, 5, v{t1}")
        a(f"v_lshlrev_b32 v{t0}, 7, v{t0}")
        a(f"v_and_b32 v{t2}, 3, v{vLANE}"); a(f"v_lshlrev_b32 v{t2}, 3, v{t2}")
        a(f"v_add3_u32 v{d}, v{t0}, v{t1}, v{t2}")
    def kperm(t):
        a(f"v_lshrrev_b32 v{t}, 5, v{vLANE}"); a(f"v_lshlrev_b32 v{t}, 2, v{t}")
        a(f"v_bfe_u32 v{t3}, v{vLANE}, 2, 2"); a(f"v_add_u32 v{t}, v{t}, v{t3}")
    def knat(off):
        def f(t):
            a(f"v_lshrrev_b32 v{t}, 5, v{vLANE}"); a(f"v_lshlrev_b32 v{t}, 3, v{t}")
            a(f"v_bfe_u32 v{t3}, v{vLANE}, 2, 2"); a(f"v_add_u32 v{t}, v{t}, v{t3}")
            if off: a(f"v_add_u32 v{t}, {off}, v{t}")
        return f
    if natural_second is None: one(dst, kperm)
    else:
        one(dst, knat(0)); one(natural_second, knat(4))

def three_bases(a, regs):
    a(f"v_add_u32 v{regs[1]}, 0x10000, v{regs[0]}")
    a(f"v_add_u32 v{regs[2]}, 0x20000, v{regs[0]}")

vNA = vTRA
vNB = (112, 113, 115)
vSEL = vE + 28
vCSACC = vE + 32

def compute_prologue(a):
    a(f"s_lshr_b32 s{sTT}, s{sW}, 1")
    a(f"s_and_b32 s{sCP}, s{sW}, 1")
    if OPT.get("xtouch", 1):
        a(f"s_cmp_lg_u32 s{sW}, 0"); a("s_cbranch_scc1 L_c_xt")
        a(f"v_lshlrev_b32 v{vE}, 7, v{vLANE}"); a(f"s_lshl_b32 s{sT1}, s{sG}, 16"); a(f"s_lshl_b32 s{sT2}, s{sJ}, 13"); a(f"s_add_u32 s{sT1}, s{sT1}, s{sT2}")
        touch(a, SRD_X, vE, sT1, 0)
        a.label("L_c_xt")
        a.vmq = []
    t = vE
    a(f"s_lshl_b32 s{sT0}, s{sG}, 16"); a(f"s_lshl_b32 s{sT1}, s{sTT}, 15"); a(f"s_add_u32 s{sT0}, s{sT0}, s{sT1}")
    a(f"s_lshl_b32 s{sT1}, s{sJ}, 7"); a(f"s_add_u32 s{sT0}, s{sT0}, s{sT1}"); a(f"s_lshl_b32 s{sT1}, s{sCP}, 6"); a(f"s_add_u32 s{sOUTb}, s{sT0}, s{sT1}")
    a(f"s_cmp_lt_u32 s{sW}, 2")
    a("s_cbranch_scc1 L_c_nob")
    a(f"s_cmp_eq_u32 s{sW}, 2")
    a(f"s_cselect_b32 s{sT0}, s94, s96"); a(f"s_cselect_b32 s{sT1}, s95, s97")
    a(f"s_mov_b32 s{SRD_TMP}, s{sT0}"); a(f"s_and_b32 s{SRD_TMP+1}, s{sT1}, 0xffff")
    a(f"s_movk_i32 s{sT2}, 1024"); a(f"s_cmp_eq_u32 s{sW}, 2"); a(f"s_cselect_b32 s{SRD_TMP+2}, 2752, s{sT2}"); a(f"s_mov_b32 s{SRD_TMP+3}, 0x20000")
    a(f"s_cmp_eq_u32 s{sW}, 2")
    a(f"s_lshl_b32 s{sT0}, s98, 5"); a(f"s_lshl_b32 s{sT1}, s{sJ}, 7")
    a(f"s_cmp_eq_u32 s{sW}, 2")
    a(f"s_cselect_b32 s{sT0}, s{sT0}, s{sT1}")
    a(f"s_mov_b32 s{sT1}, {B2F}"); a(f"s_cselect_b32 s{sT1}, {B1F}, s{sT1}")
    a(f"s_cselect_b32 s{sT2}, 48, 16")
    a(f"v_lshlrev_b32 v{t+2}, 3, v{vLANE}")
    a(f"buffer_load_dwordx2 {vr(vBR,2)}, v{t+2}, s[{SRD_TMP}:{SRD_TMP+3}], s{sT0} offen")
    a(f"v_add_u32 v{vBR+2}, s{sT1}, v{vL16}")
    a(f"s_mov_b32 s{sBL}, s{sT2}")
    a.label("L_c_nob")
    a(f"s_lshl_b32 s{sT0}, s{sCP}, 10"); a(f"v_add_u32 v{vTRA[0]}, s{sT0}, v{vL16}"); three_bases(a, vTRA)
    a(f"s_mul_i32 s{sT0}, s{sCP}, 3072"); a(f"v_add_u32 v{vTRK[0]}, s{sT0}, v{vL16}")
    a(f"s_lshl_b32 s{sT0}, s{sCP}, 10"); a(f"s_add_u32 s{sT0}, s{sT0}, 1024"); a(f"v_add_u32 v{vTRS[0]}, s{sT0}, v{vL16}")
    three_bases(a, vTRK); three_bases(a, vTRS)
    a(f"s_lshl_b32 s{sT0}, s{sTT}, 10"); a(f"v_add_u32 v{vAR}, s{sT0}, v{vL16}")
    a(f"v_lshrrev_b32 v{t}, 5, v{vLANE}"); a(f"v_lshlrev_b32 v{t}, 4, v{t}")
    a(f"s_lshl_b32 s{sT0}, s{sCP}, 7"); a(f"v_add_u32 v{vCSA}, s{sT0}, v{t}")
    a(f"s_lshl_b32 s{sT0}, s{sTT}, 7"); a(f"v_add_u32 v{vSTB}, s{sT0}, v{t}")
    a(f"v_and_b32 v{t}, 31, v{vLANE}"); a(f"v_lshlrev_b32 v{t}, 2, v{t}"); a(f"v_add_u32 v{vTOK}, s{sT0}, v{t}")
    a(f"s_lshl_b32 s{sXA}, s{sG}, 16"); a(f"s_lshl_b32 s{sT0}, s{sTT}, 15"); a(f"s_add_u32 s{sXA}, s{sXA}, s{sT0}")
    a(f"s_lshl_b32 s{sT0}, s{sJ}, 12"); a(f"s_add_u32 s{sXA}, s{sXA}, s{sT0}"); a(f"s_lshl_b32 s{sT0}, s{sCP}, 11"); a(f"s_add_u32 s{sXA}, s{sXA}, s{sT0}")
    a(f"s_add_u32 s{sXA}, s{sXA}, {WS_XA}")
    a(f"s_mul_i32 s{sHO}, s{sG}, {HO_STRIDE}"); a(f"s_add_u32 s{sHO}, s{sHO}, {WS_HO}")
    a(f"s_lshl_b32 s{sKVw}, s{sG}, 3"); a(f"s_add_u32 s{sKVw}, s{sKVw}, s{sJ}"); a(f"s_lshl_b32 s{sKVw}, s{sKVw}, 14")
    a(f"s_lshl_b32 s{sT0}, s{sTT}, 12"); a(f"s_add_u32 s{sKVw}, s{sKVw}, s{sT0}"); a(f"s_lshl_b32 s{sT0}, s{sCP}, 11"); a(f"s_add_u32 s{sKVw}, s{sKVw}, s{sT0}")
    a(f"s_add_u32 s{sKVw}, s{sKVw}, {WS_KV}")
    for s in range(3):
        for sub in range(2):
            d = sHST[2*s+sub]
            a(f"s_lshl_b32 s{sT0}, s{sCP}, 1"); a(f"s_add_u32 s{sT0}, s{sT0}, {4*s+sub}")
            a(f"s_add_u32 s{sT1}, s{sT0}, s98"); a(f"s_lshl_b32 s{sT1}, s{sT1}, 10")
            a(f"s_mul_i32 s{sT2}, s{sTT}, {H_TT}"); a(f"s_add_u32 s{sT1}, s{sT1}, s{sT2}"); a(f"s_add_u32 s{sT1}, s{sT1}, s{sHO}")
            a(f"s_cmp_lt_u32 s{sT0}, s99")
            a(f"s_cselect_b32 s{d}, s{sT1}, 0x7ffff000")
    a(f"s_mov_b32 s{sC1}, {f2u(1.0/512.0)}"); a(f"s_mov_b32 s{sC2}, {f2u(EPS)}"); a(f"s_mov_b32 s{sC3}, {f2u(QSCALE)}")
    a(f"s_lshl_b32 s{sT1}, s{sW}, 14"); a(f"s_lshl_b32 s{sT2}, s{sG}, 16"); a(f"s_add_u32 s{sT2}, s{sT2}, s{sT1}")
    for r in range(16):
        a(f"v_xor_b32 v{vE}, {r << 4}, v{vL16}")
        a(f"s_add_u32 m0, s{sT1}, {A_P1 + r*1024}")
        a(f"s_add_u32 s{sT0}, s{sT2}, {r*1024}")
        a(f"buffer_load_dwordx4 v{vE}, s[{SRD_X}:{SRD_X+3}], s{sT0} offen lds")

vBR, sBL = 240, 101
def after_meet(a):
    a(f"s_cmp_lt_u32 s{sW}, 2")
    a("s_cbranch_scc1 L_c_nob2")
    a(f"v_cmp_gt_u32 vcc, s{sBL}, v{vLANE}")
    a(f"v_lshlrev_b32 v{vBR+4}, 16, v{vBR}"); a(f"v_and_b32 v{vBR+5}, 0xffff0000, v{vBR}")
    a(f"v_lshlrev_b32 v{vBR+6}, 16, v{vBR+1}"); a(f"v_and_b32 v{vBR+7}, 0xffff0000, v{vBR+1}")
    a(f"s_and_saveexec_b64 s[{sEXEC}:{sEXEC+1}], vcc")
    a(f"ds_write_b128 v{vBR+2}, {vr(vBR+4,4)}")
    a(f"s_mov_b64 exec, s[{sEXEC}:{sEXEC+1}]")
    a.label("L_c_nob2")

def touch(a, srdn, vpat, sbase, imm, dst=None):
    a(f"s_mov_b32 m0, {DUMMY}")
    a(f"s_add_u32 s{sT3}, s{sbase}, {imm}")
    a.vm(f"buffer_load_dword v{vpat}, s[{srdn}:{srdn+3}], s{sT3} offen lds", "touch")

def stats_finalize(a, v, tmp, vaddr, double_ln):
    t0, t1, t2, t3 = tmp
    a(f"v_mov_b32 v{t0}, v{v}")
    a.nop(2)
    a(f"v_permlane32_swap_b32 v{v}, v{t0}")
    a(f"v_mul_f32 v{v}, s{sC1}, v{v}")
    a(f"v_mul_f32 v{t0}, s{sC1}, v{t0}")
    a(f"v_fma_f32 v{t0}, -v{v}, v{v}, v{t0}")
    a(f"v_max_f32 v{t0}, 0, v{t0}")
    a(f"v_add_f32 v{t1}, s{sC2}, v{t0}")
    a(f"v_rsq_f32 v{t1}, v{t1}")
    a.nop(1)
    if double_ln:
        a(f"v_mul_f32 v{t2}, v{t1}, v{t1}")
        a(f"v_mul_f32 v{t2}, v{t2}, v{t0}")
        a(f"v_add_f32 v{t2}, s{sC2}, v{t2}")
        a(f"v_rsq_f32 v{t2}, v{t2}")
        a.nop(1)
        a(f"v_mul_f32 v{t1}, v{t1}, v{t2}")
    a(f"v_cmp_gt_u32 s[{sEXEC}:{sEXEC+1}], 32, v{vLANE}")
    a.nop(2)
    a(f"v_cndmask_b32 v{t3}, v{t1}, v{v}, s[{sEXEC}:{sEXEC+1}]")
    a.ds(f"ds_write_b32 v{vaddr}, v{t3}", "stw")

E = 80
ePK = 84
D_AHEAD = 4

class VM:
    def __init__(self, f): self.f = f
    def __call__(self): self.f()

def items_kq(a, ac, T, v1, is_q):
    mean, rs, ad, adc = E, E + 1, E + 2, E + 3
    w = 92
    cs = [96, 100, 104, 108]
    it = []
    it.append(lambda: a(f"v_add_u32 v{ad}, {ST_MEAN}, v{vTOK}"))
    it.append(lambda: a(f"v_add_u32 v{adc}, {MISC}, v{vCSA}"))
    it.append(lambda: a.ds(f"ds_read_b32 v{mean}, v{ad} offset:0", "em"))
    it.append(lambda: a.ds(f"ds_read_b32 v{rs}, v{ad} offset:256", "er"))
    if not v1:
        for g in range(4):
            it.append(lambda g=g: a.ds(f"ds_read_b128 {vr(cs[g],4)}, v{adc} offset:{CSF_Q - MISC + T*256 + g*32}", f"ca{g}"))
        for _ in range(6): it.append(lambda: None)
    if is_q:
        def fq():
            a.wait_lg("er"); a(f"v_mul_f32 v{rs}, s{sC3}, v{rs}")
        it.append(fq)
    for g in range(4):
        c = cs[0] if v1 else cs[g]
        if v1:
            it.append(lambda g=g: a.ds(f"ds_read_b128 {vr(cs[0],4)}, v{adc} offset:{CS_Q - MISC + T*256 + g*32}", f"ca{g}"))
            it.append(lambda g=g: a.ds(f"ds_read_b128 {vr(cs[1],4)}, v{adc} offset:{CS_Q - MISC + 768 + T*256 + g*32}", f"cb{g}"))
            for e in range(4):
                def f(e=e, g=g):
                    a.wait_lg([f"ca{g}", f"cb{g}"]); a(f"v_add_f32 v{cs[0]+e}, v{cs[0]+e}, v{cs[1]+e}")
                it.append(f)
            def fw(g=g):
                a(f"s_mov_b64 exec, s[{sM0_32}:{sM0_32+1}]")
                a.ds(f"ds_write_b128 v{adc}, {vr(cs[0],4)} offset:{CSF_Q - MISC + T*256 + g*32}", "cw")
                a("s_mov_b64 exec, -1")
            it.append(fw)
        for e in range(4):
            def f(e=e, g=g, c=c):
                a.wait_lg(["em", "er", f"ca{g}", f"cb{g}"])
                a(f"v_fma_f32 v{w+e}, -v{mean}, v{c+e}, v{ac+4*g+e}")
            it.append(f)
        for e in range(4):
            it.append(lambda e=e: a(f"v_mul_f32 v{w+e}, v{w+e}, v{rs}"))
        it.append(lambda g=g: a(f"v_cvt_pk_bf16_f32 v{ePK+2*g}, v{w}, v{w+1}"))
        it.append(lambda g=g: a(f"v_cvt_pk_bf16_f32 v{ePK+2*g+1}, v{w+2}, v{w+3}"))
    if not is_q:
        it.append(lambda: a(f"s_lshl_b32 s{sT1}, s{sTT}, 12"))
        it.append(lambda: a(f"s_lshl_b32 s{sT2}, s{sCP}, 11"))
        it.append(lambda: a(f"s_add_u32 s{sT1}, s{sT1}, s{sT2}"))
        it.append(lambda: a(f"v_add_u32 v{ad}, s{sT1}, v{vL16}"))
        for hh in range(2):
            it.append(VM(lambda hh=hh: a.vm(f"buffer_store_dwordx4 {vr(ePK+4*hh,4)}, v{vL16}, s[{SRD_WS}:{SRD_WS+3}], s{sKVw} offen offset:{hh*1024} sc1", "kvK")))
            it.append(lambda hh=hh: a.ds(f"ds_write_b128 v{ad}, {vr(ePK+4*hh,4)} offset:{KB + 32*K + hh*1024}", "kw"))
    else:
        it.append(lambda: a(f"s_lshl_b32 s{sT1}, s{sTT}, 10"))
        it.append(lambda: a(f"s_lshl_b32 s{sT2}, s{sCP}, 12"))
        it.append(lambda: a(f"s_add_u32 s{sT1}, s{sT1}, s{sT2}"))
        it.append(lambda: a(f"s_add_u32 s{sT1}, s{sT1}, {QB}"))
        it.append(lambda: a(f"v_add_u32 v{ad}, s{sT1}, v{vL16}"))
        for hh in range(2):
            it.append(lambda hh=hh: a.ds(f"ds_write_b128 v{ad}, {vr(ePK+4*hh,4)} offset:{hh*2048}", "qw"))
    return it

def items_v(a, ac, T, v1):
    cs, cs2, ad, ads = E, E + 1, E + 2, E + 3
    w = 92
    mb, rb = ((96, 96), (100, 100)) if v1 else ((96, 104), (100, 108))
    it = []
    it.append(lambda: a(f"v_and_b32 v{ad}, 31, v{vLANE}"))
    it.append(lambda: a(f"v_lshlrev_b32 v{ad}, 2, v{ad}"))
    it.append(lambda: a(f"s_lshl_b32 s{sT1}, s{sCP}, 7"))
    it.append(lambda: a(f"s_add_u32 s{sT1}, s{sT1}, {MISC}"))
    it.append(lambda: a(f"v_add_u32 v{ad}, s{sT1}, v{ad}"))
    it.append(lambda: a(f"v_add_u32 v{ads}, {MISC}, v{vSTB}"))
    def rd(g):
        it.append(lambda g=g: a.ds(f"ds_read_b128 {vr(mb[g%2],4)}, v{ads} offset:{ST_MEAN - MISC + g*32}", f"m{g}"))
        it.append(lambda g=g: a.ds(f"ds_read_b128 {vr(rb[g%2],4)}, v{ads} offset:{ST_RSTD - MISC + g*32}", f"r{g}"))
    if v1:
        it.append(lambda: a.ds(f"ds_read_b32 v{cs}, v{ad} offset:{CS_Q - MISC + T*256}", "ca"))
        it.append(lambda: a.ds(f"ds_read_b32 v{cs2}, v{ad} offset:{CS_Q - MISC + 768 + T*256}", "cb"))
        def f():
            a.wait_lg(["ca", "cb"]); a(f"v_add_f32 v{cs}, v{cs}, v{cs2}")
        it.append(f)
        it.append(lambda: a.ds(f"ds_write_b32 v{ad}, v{cs} offset:{CSF_Q - MISC + T*256}", "cw"))
    else:
        it.append(lambda: a.ds(f"ds_read_b32 v{cs}, v{ad} offset:{CSF_Q - MISC + T*256}", "ca"))
        rd(0)
        for _ in range(6): it.append(lambda: None)
    for g in range(4):
        if v1: rd(g)
        elif g < 3: rd(g + 1)
        for e in range(4):
            def f(e=e, g=g):
                a.wait_lg(["ca", f"m{g}"])
                a(f"v_fma_f32 v{w+e}, -v{mb[g%2]+e}, v{cs}, v{ac+4*g+e}")
            it.append(f)
        for e in range(4):
            def f(e=e, g=g):
                a.wait_lg(f"r{g}"); a(f"v_mul_f32 v{w+e}, v{w+e}, v{rb[g%2]+e}")
            it.append(f)
        it.append(lambda g=g: a(f"v_cvt_pk_bf16_f32 v{ePK+2*g}, v{w}, v{w+1}"))
        it.append(lambda g=g: a(f"v_cvt_pk_bf16_f32 v{ePK+2*g+1}, v{w+2}, v{w+3}"))
    it.append(lambda: a(f"v_bfe_u32 v{ad}, v{vLANE}, 4, 1"))
    it.append(lambda: a(f"v_lshlrev_b32 v{ad}, 10, v{ad}"))
    it.append(lambda: a(f"v_lshrrev_b32 v{cs2}, 5, v{vLANE}"))
    it.append(lambda: a(f"v_lshl_add_u32 v{ad}, v{cs2}, 8, v{ad}"))
    it.append(lambda: a(f"v_and_b32 v{cs2}, 15, v{vLANE}"))
    it.append(lambda: a(f"v_lshl_add_u32 v{ad}, v{cs2}, 4, v{ad}"))
    it.append(lambda: a(f"s_lshl_b32 s{sT1}, s{sTT}, 12"))
    it.append(lambda: a(f"s_lshl_b32 s{sT2}, s{sCP}, 11"))
    it.append(lambda: a(f"s_add_u32 s{sT1}, s{sT1}, s{sT2}"))
    it.append(lambda: a(f"s_add_u32 s{sT1}, s{sT1}, {VB + 32*K}"))
    it.append(lambda: a(f"v_add_u32 v{ads}, s{sT1}, v{ad}"))
    it.append(lambda: a(f"s_add_u32 s{sT2}, s{sKVw}, 8192"))
    for s in range(2):
        it.append(VM(lambda s=s: a.vm(f"buffer_store_dwordx4 {vr(ePK+4*s,4)}, v{ad}, s[{SRD_WS}:{SRD_WS+3}], s{sT2} offen offset:{s*512} sc1", "kvV")))
        it.append(lambda s=s: a.ds(f"ds_write_b128 v{ads}, {vr(ePK+4*s,4)} offset:{s*512}", "vw"))
    return it

def items_h(a, ac, T, v1):
    mr, rs, gc, ad2 = E, E + 1, E + 2, E + 3
    u, t = 92, 96
    if v1: csA, bbs, csB = (100, 100), (104, 104), 108
    else:  csA, bbs, csB = (100, 108), (104, 112), None
    CSR = CS_1 if v1 else CSF_1
    it = []
    it.append(lambda: a(f"v_add_u32 v{ad2}, {ST_MEAN}, v{vTOK}"))
    it.append(lambda: a.ds(f"ds_read_b32 v{mr}, v{ad2} offset:0", "em"))
    it.append(lambda: a.ds(f"ds_read_b32 v{rs}, v{ad2} offset:256", "er"))
    it.append(lambda: a(f"v_add_u32 v{ad2}, {MISC}, v{vCSA}"))
    it.append(lambda: a(f"v_mov_b32 v{gc}, {f2u(GC1)}"))
    def rd(g):
        it.append(lambda g=g: a.ds(f"ds_read_b128 {vr(csA[g%2],4)}, v{ad2} offset:{CSR - MISC + T*256 + g*32}", f"ca{g}"))
        if v1: it.append(lambda g=g: a.ds(f"ds_read_b128 {vr(csB,4)}, v{ad2} offset:{CS_1 - MISC + 768 + T*256 + g*32}", f"cb{g}"))
        it.append(lambda g=g: a.ds(f"ds_read_b128 {vr(bbs[g%2],4)}, v{ad2} offset:{B1F - MISC + T*256 + g*32}", f"b{g}"))
    if not v1:
        rd(0)
        for _ in range(5): it.append(lambda: None)
    def fm():
        a.wait_lg(["em", "er"]); a(f"v_mul_f32 v{mr}, v{mr}, v{rs}")
    it.append(fm)
    for g in range(4):
        cA, bb = csA[g % 2], bbs[g % 2]
        if v1:
            rd(g)
            for e in range(4):
                def f(e=e, g=g, cA=cA):
                    a.wait_lg([f"ca{g}", f"cb{g}"]); a(f"v_add_f32 v{cA+e}, v{cA+e}, v{csB+e}")
                it.append(f)
            def fw(g=g, cA=cA):
                a(f"s_mov_b64 exec, s[{sM0_32}:{sM0_32+1}]")
                a.ds(f"ds_write_b128 v{ad2}, {vr(cA,4)} offset:{CSF_1 - MISC + T*256 + g*32}", "cw")
                a("s_mov_b64 exec, -1")
            it.append(fw)
        for e in range(4):
            def f(e=e, g=g, cA=cA, bb=bb):
                a.wait_lg([f"ca{g}", f"b{g}"]); a(f"v_fma_f32 v{bb+e}, -v{mr}, v{cA+e}, v{bb+e}")
            it.append(f)
        for e in range(4): it.append(lambda e=e, g=g, bb=bb: a(f"v_fma_f32 v{u+e}, v{ac+4*g+e}, v{rs}, v{bb+e}"))
        if not v1 and g < 3: rd(g + 1)
        for e in range(4): it.append(lambda e=e: a(f"v_mul_f32 v{t+e}, v{u+e}, v{u+e}"))
        for e in range(4): it.append(lambda e=e: a(f"v_fmaak_f32 v{t+e}, v{t+e}, v{gc}, {f2u(GC0)}"))
        for e in range(4): it.append(lambda e=e: a(f"v_mul_f32 v{t+e}, v{t+e}, v{u+e}"))
        for e in range(4): it.append(lambda e=e: a(f"v_exp_f32 v{t+e}, v{t+e}"))
        for e in range(4): it.append(lambda e=e: a(f"v_add_f32 v{t+e}, 1.0, v{t+e}"))
        for e in range(4): it.append(lambda e=e: a(f"v_rcp_f32 v{t+e}, v{t+e}"))
        for e in range(4): it.append(lambda e=e: a(f"v_mul_f32 v{u+e}, v{u+e}, v{t+e}"))
        it.append(lambda g=g: a(f"v_cvt_pk_bf16_f32 v{ePK+2*g}, v{u}, v{u+1}"))
        it.append(lambda g=g: a(f"v_cvt_pk_bf16_f32 v{ePK+2*g+1}, v{u+2}, v{u+3}"))
        if g % 2 == 1:
            sub = g // 2
            it.append(lambda: a("s_nop 0"))
            it.append(VM(lambda sub=sub: dual_store(a, "buffer_store_dwordx4", vr(ePK + 4*sub, 4), vL16, SRD_WS, f"s{sHST[2*T+sub]}")))
    return it

def tail_h(a, ac, T):
    nmr, rs, gc1, gc0, ad = 80, 82, 120, 122, 124
    cs, b1, u, t = 48, 96, 112, 116
    a(f"v_add_u32 v{ad}, {ST_MEAN}, v{vTOK}"); a(f"v_add_u32 v{ad+1}, {MISC}, v{vCSA}")
    a.ds(f"ds_read_b32 v{nmr}, v{ad} offset:0", "em"); a.ds(f"ds_read_b32 v{rs}, v{ad} offset:256", "er")
    for g in range(4):
        a.ds(f"ds_read_b128 {vr(cs+4*g,4)}, v{ad+1} offset:{CSF_1 - MISC + T*256 + g*32}", f"ca{g}")
        a.ds(f"ds_read_b128 {vr(b1+4*g,4)}, v{ad+1} offset:{B1F - MISC + T*256 + g*32}", f"b{g}")
    a(f"v_mov_b32 v{gc1}, {f2u(GC1)}"); a(f"v_mov_b32 v{gc0}, {f2u(GC0)}")
    a.wait_lg(["em", "er"])
    a(f"v_mul_f32 v{nmr}, v{nmr}, v{rs}"); a(f"v_sub_f32 v{nmr}, 0, v{nmr}")
    P = lambda r: vr(r, 2)
    for g in range(4):
        a.wait_lg([f"ca{g}", f"b{g}"])
        for p in range(2): a(f"v_pk_fma_f32 {P(b1+4*g+2*p)}, {P(cs+4*g+2*p)}, {P(nmr)}, {P(b1+4*g+2*p)} op_sel_hi:[1,0,1]")
        for p in range(2): a(f"v_pk_fma_f32 {P(u+2*p)}, {P(ac+4*g+2*p)}, {P(rs)}, {P(b1+4*g+2*p)} op_sel_hi:[1,0,1]")
        for p in range(2): a(f"v_pk_mul_f32 {P(t+2*p)}, {P(u+2*p)}, {P(u+2*p)}")
        for p in range(2): a(f"v_pk_fma_f32 {P(t+2*p)}, {P(t+2*p)}, {P(gc1)}, {P(gc0)} op_sel_hi:[1,0,0]")
        for p in range(2): a(f"v_pk_mul_f32 {P(t+2*p)}, {P(t+2*p)}, {P(u+2*p)}")
        for e in range(4): a(f"v_exp_f32 v{t+e}, v{t+e}")
        for p in range(2): a(f"v_pk_add_f32 {P(t+2*p)}, {P(t+2*p)}, 1.0 op_sel_hi:[1,0]")
        for e in range(4): a(f"v_rcp_f32 v{t+e}, v{t+e}")
        for p in range(2): a(f"v_pk_mul_f32 {P(u+2*p)}, {P(u+2*p)}, {P(t+2*p)}")
        a(f"v_cvt_pk_bf16_f32 v{ePK+2*g}, v{u}, v{u+1}"); a(f"v_cvt_pk_bf16_f32 v{ePK+2*g+1}, v{u+2}, v{u+3}")
        if g % 2 == 1:
            sub = g // 2
            a.nop(1)
            dual_store(a, "buffer_store_dwordx4", vr(ePK + 4*sub, 4), vL16, SRD_WS, f"s{sHST[2*T+sub]}")

def gemm192(a, ph, slot, abase, tiles, a_interleave, after_b0=None):
    pre = f"{ph}"
    trA = LdsBase(vTRA)
    vAb = 115
    if a_interleave and abase:
        a(f"v_add_u32 v{vAb}, {abase}, v{vAR}")
    areg = vAb if (a_interleave and abase) else vAR
    def issue_reads(n):
        T, ks = divmod(n, 32)
        u = 16 * T + (ks >> 1)
        r, off = trA.at(slot(u) + (ks & 1) * 2048)
        a.ds(f"ds_read_b128 {vr(vWF + 4 * (n % 4),4)}, v{r} offset:{off}", ("W", n))
        if a_interleave and T == 0:
            a.ds(f"ds_read_b128 {vr(vA+4*ks,4)}, v{areg} offset:{ks*2048}", ("W", n))
    a.bar(f"{pre}_B0")
    if after_b0:
        after_b0()
    tsb = 20 if ph.startswith("p1") else 30
    ts(a, tsb)
    for n in range(D_AHEAD): issue_reads(n)
    pending = []; deferred = []
    for n in range(96):
        T, ks = divmod(n, 32)
        form = tiles[T][0]
        ac = vACC[T % 2]
        buf = vWF + 4 * (n % 4)
        a.wait_lg(("W", n))
        c = "0" if ks == 0 else vr(ac, 16)
        if form == "T": a(f"v_mfma_f32_32x32x16_bf16 {vr(ac,16)}, {vr(buf,4)}, {vr(vA+4*ks,4)}, {c}")
        else:           a(f"v_mfma_f32_32x32x16_bf16 {vr(ac,16)}, {vr(vA+4*ks,4)}, {vr(buf,4)}, {c}")
        nn = n + D_AHEAD
        if nn < 96 and nn % 4 == 0:
            if nn == 88: a.wait_vm("kvK")
            a.bar(f"{pre}_B{nn//4}")
        if nn < 96: issue_reads(nn)
        if T >= 1:
            start = 3
            if ks == start:
                pending = tiles[T-1][1](a, vACC[(T - 1) % 2], T - 1, False)
                if OPT.get("noepi") and ph == "p4": pending = []
                if OPT.get("noepi") == 2 and ph == "p4":
                    pending = [(lambda: a("v_add_f32 v100, v101, v102"))] * 136
            if ks >= start:
                left = 31 - ks + 1
                k = max(4, -(-len(pending) // max(left - 1, 1)))
                for _ in range(min(k, len(pending))):
                    if isinstance(pending[0], VM) and OPT.get("defer", 1):
                        deferred.append(pending.pop(0))
                    else: pending.pop(0)()
                if deferred and (n % 4 == 3):
                    while deferred: deferred.pop(0)()
            if ks == 31:
                while pending: pending.pop(0)()
                while deferred: deferred.pop(0)()
    ts(a, tsb + 3)
    a.nop(12)
    if ph == "p1a" and OPT.get("cs4", 0): a.bar("p1a_cs")
    a.bar(f"{pre}_end")
    if ph == "p4" and OPT.get("pktail", 1): tail_h(a, vACC[0], 2)
    else:
        for f in tiles[2][1](a, vACC[0], 2, False): f()
    ts(a, tsb + 4)

def p1_compute(a, v1):
    ph = "p1a" if v1 else "p1b"
    tiles = [("T", lambda a_, ac, T, v: items_kq(a_, ac, T, v, False)),
             ("N", lambda a_, ac, T, v: items_v(a_, ac, T, v)),
             ("T", lambda a_, ac, T, v: items_kq(a_, ac, T, v, True))]
    if v1:
        a(f"v_and_b32 v{E+4}, 31, v{vLANE}"); a(f"s_lshl_b32 s{sT1}, s{sTT}, 5"); a(f"v_add_u32 v{E+5}, s{sT1}, v{E+4}")
        a(f"v_lshlrev_b32 v{E+5}, 10, v{E+5}")
        a(f"v_lshrrev_b32 v{E+6}, 5, v{vLANE}"); a(f"v_lshl_add_u32 v{E+5}, v{E+6}, 3, v{E+5}")
        a(f"v_and_b32 v{E+4}, 15, v{vLANE}"); a(f"v_lshl_add_u32 v{E+5}, v{E+4}, 4, v{E+5}")
        a(f"v_and_b32 v{E+16}, 15, v{vLANE}"); a(f"s_lshl_b32 s{sT1}, s{sJ}, 3"); a(f"s_lshl_b32 s{sT2}, s{sCP}, 2"); a(f"s_add_u32 s{sT1}, s{sT1}, s{sT2}")
        a(f"v_and_b32 v{E+17}, 31, v{vLANE}"); a(f"s_lshl_b32 s{sT2}, s{sTT}, 5"); a(f"v_add_u32 v{E+17}, s{sT2}, v{E+17}"); a(f"v_lshlrev_b32 v{E+17}, 10, v{E+17}")
        a(f"v_lshrrev_b32 v{E+18}, 5, v{vLANE}"); a(f"v_lshl_add_u32 v{E+17}, v{E+18}, 3, v{E+17}")
        for q in range(4):
            a(f"s_add_u32 s{sT2}, s{sT1}, {q}"); a(f"v_xor_b32 v{E+18}, s{sT2}, v{E+16}"); a(f"v_lshl_add_u32 v{E+20+q}, v{E+18}, 4, v{E+17}")
        ts(a, 29)
        a("s_waitcnt lgkmcnt(0)")
        a(f"s_add_u32 s{sEP}, s{sEP}, 16")
        a.bar("prep")
        a("s_waitcnt vmcnt(0)")
        a(f"v_mov_b32 v{E+24}, {CNTW}"); a(f"v_mov_b32 v{E+25}, 1")
        a(f"s_mov_b64 exec, 1")
        a(f"ds_add_u32 v{E+24}, v{E+25}")
        a("s_mov_b64 exec, -1")
        a(f"s_mov_b32 s{sSPIN}, {OPT['spin']}")
        a.label("L_p1a_meet")
        a(f"ds_read_b32 v{E+25}, v{E+24}")
        a("s_waitcnt lgkmcnt(0)")
        a(f"v_cmp_gt_u32 vcc, 4, v{E+25}")
        a(f"s_sub_u32 s{sSPIN}, s{sSPIN}, 1")
        a("s_cbranch_scc1 L_p1a_met")
        a("s_cbranch_vccnz L_p1a_meet")
        a.label("L_p1a_met")
        ts(a, 1)
        after_meet(a)
        for q in range(4): a.ds(f"ds_read_b64 {vr(vACC[0]+2*q,2)}, v{E+20+q}", "xr")
        a.wait_lg0()
        for q in range(4):
            for h in range(2):
                a(f"v_lshlrev_b32 v{vXR+4*q+2*h}, 16, v{vACC[0]+2*q+h}")
                a(f"v_and_b32 v{vXR+4*q+2*h+1}, 0xffff0000, v{vACC[0]+2*q+h}")
        for cc in range(16): a(f"v_xor_b32 v{vACC[1]+cc}, {cc << 4}, v{E+5}")
        sm, sq, one = E, E + 1, E + 2
        a(f"v_mov_b32 v{sm}, 0"); a(f"v_mov_b32 v{sq}, 0"); a(f"v_mov_b32 v{one}, 0x3f803f80")
        for ks in range(32):
            for hh in range(2):
                cch = 2 * ks + hh
                a.ds(f"ds_read_b64 {vr(vA+4*ks+2*hh,2)}, v{vACC[1]+(cch & 15)} offset:{(cch >> 4) << 8}", ("A", cch))
                if cch >= 12: a.wait_lg(("A", cch - 12))
        a.wait_lg0()
        a(f"s_cmp_eq_u32 s{sCP}, 0")
        a("s_cbranch_scc0 L_p1a_odd")
        for par in range(2):
            if par == 1: a.label("L_p1a_odd")
            for ks in range(par, 32, 2):
                for q in range(4):
                    a(f"v_dot2c_f32_bf16 v{sm}, v{vA+4*ks+q}, v{one}")
                    a(f"v_dot2c_f32_bf16 v{sq}, v{vA+4*ks+q}, v{vA+4*ks+q}")
            if par == 0: a("s_branch L_p1a_sdone")
        a.label("L_p1a_sdone")
        a.nop(5)
        a(f"v_permlane32_swap_b32 v{sm}, v{sq}")
        a(f"v_add_f32 v{sm}, v{sm}, v{sq}")
        a(f"v_lshrrev_b32 v{E+3}, 5, v{vLANE}"); a(f"v_lshlrev_b32 v{E+3}, 8, v{E+3}"); a(f"v_add_u32 v{E+3}, v{E+3}, v{vTOK}")
        a(f"v_add_u32 v{E+4}, {STP}, v{E+3}")
        a(f"s_lshl_b32 s{sT1}, s{sCP}, 9"); a(f"v_add_u32 v{E+5}, s{sT1}, v{E+4}")
        a.ds(f"ds_write_b32 v{E+5}, v{sm}", "stp")
        a.wait_lg0()
        def fin():
            a.ds(f"ds_read_b32 v{E+6}, v{E+4} offset:0", "x"); a.ds(f"ds_read_b32 v{E+7}, v{E+4} offset:512", "x")
            a(f"v_subrev_u32 v{E+3}, {STP - ST_MEAN}, v{E+4}")
            a.wait_lg0()
            a(f"v_add_f32 v{E+6}, v{E+6}, v{E+7}")
            stats_finalize(a, E + 6, (E + 8, E + 9, E + 10, E + 11), E + 3, False)
            a.wait_lg0()
            ts(a, 2)
        after_b0 = fin
    if v1: a.bar("prepgo")
    gemm192(a, ph, slot_p1, A_P1, tiles, a_interleave=not v1, after_b0=after_b0 if v1 else None)
    a.wait_all0()
    if OPT.get("vearly", 1):
        target = 8 if v1 else 12
        a(f"v_mov_b32 v{E}, {CNTW}"); a(f"v_mov_b32 v{E+1}, 1")
        a("s_mov_b64 exec, 1")
        a(f"ds_add_u32 v{E}, v{E+1}")
        a("s_mov_b64 exec, -1")
        a(f"s_cmp_lg_u32 s{sW}, 0"); a(f"s_cbranch_scc1 L_{ph}_vm_x")
        a(f"s_mov_b32 s{sSPIN}, {OPT['spin']}")
        a.label(f"L_{ph}_vm")
        a(f"ds_read_b32 v{E+1}, v{E}")
        a("s_waitcnt lgkmcnt(0)")
        a(f"v_cmp_gt_u32 vcc, {target}, v{E+1}")
        a(f"s_sub_u32 s{sSPIN}, s{sSPIN}, 1")
        a(f"s_cbranch_scc1 L_{ph}_vm_y")
        a(f"s_cbranch_vccnz L_{ph}_vm")
        a.label(f"L_{ph}_vm_y")
        kv_flag_store(a, 0, 1, (PV[1], PV[2]), ph + "_vf")
        a.label(f"L_{ph}_vm_x")
        a("s_waitcnt lgkmcnt(0)")
    a.bar(f"{ph}_pubkv")

def p4_compute(a):
    tiles = [("T", lambda a_, ac, T, v: items_h(a_, ac, T, v))] * 3
    gemm192(a, "p4", slot_p4, A_P4, tiles, a_interleave=True)
    publish_pre(a, 3)
    a.wait_all0()
    a.bar("p4_pubh")
    publish_local(a, "p4h", 3, True)
    a.bar("p4_goh")

def gemm64(a, ph, nsteps, slot, abase_sgpr, window, stage_bars, midbar=None):
    trK, trS = LdsBase(vTRK), LdsBase(vTRS)
    aK, aS = vACC
    D = 2
    def issue_w(i):
        base = slot(i)
        buf = vWF + 8 * (i % 3)
        for tr, o in ((trK, 0), (trS, 4)):
            r, off = tr.at(base)
            a.ds(f"ds_read_b128 {vr(buf+o,4)}, v{r} offset:{off}", ("W", i))
    def issue_a(i):
        a(f"s_add_u32 s{sT1}, s{abase_sgpr}, {i*2048}")
        a.vm(f"buffer_load_dwordx4 {vr(vA+4*(i % window),4)}, v{vL16}, s[{SRD_WS}:{SRD_WS+3}], s{sT1} offen sc1", ("A", i))
    for i in range(min(window, nsteps)): issue_a(i)
    if stage_bars: a.bar(f"{ph}_a")
    for i in range(D): issue_w(i)
    for i in range(nsteps):
        buf = vWF + 8 * (i % 3)
        af = vA + 4 * (i % window)
        a.wait_vm(("A", i)); a.wait_lg(("W", i))
        a(f"v_mfma_f32_32x32x16_bf16 {vr(aK,16)}, {vr(buf,4)}, {vr(af,4)}, {'0' if i == 0 else vr(aK,16)}")
        nn = i + D
        if stage_bars and nn < nsteps and nn % 4 == 0: a.bar(f"{ph}_B{nn//4}")
        if midbar is not None and i == midbar: a.bar(f"{ph}_b")
        if nn < nsteps: issue_w(nn)
        a(f"v_mfma_f32_32x32x16_bf16 {vr(aS,16)}, {vr(buf+4,4)}, {vr(af,4)}, {'0' if i == 0 else vr(aS,16)}")
        if i + window < nsteps: issue_a(i + window)

def red_epilogue(a, ph, rb, add_b2, final, pre_bar):
    aK, aS = vACC
    rv = E
    ad = 96
    if pre_bar: a.bar(f"{ph}_red1")
    a(f"s_lshl_b32 s{sT1}, s{sW}, 12"); a(f"s_add_u32 s{sT1}, s{sT1}, {rb}")
    a(f"v_add_u32 v{ad}, s{sT1}, v{vL16}")
    a(f"s_xor_b32 s{sT2}, s{sW}, 1"); a(f"s_lshl_b32 s{sT2}, s{sT2}, 12"); a(f"s_add_u32 s{sT2}, s{sT2}, {rb}")
    a(f"v_add_u32 v{ad+1}, s{sT2}, v{vL16}")
    if add_b2:
        a(f"v_add_u32 v{ad+2}, {MISC}, v{vCSA}")
        for g in range(4): a.ds(f"ds_read_b128 {vr(100+4*g,4)}, v{ad+2} offset:{B2F - MISC + g*32}", "b2")
    a.nop(8)
    for q in range(4): a.ds(f"ds_write_b128 v{ad}, {vr(aS+4*q,4)} offset:{q*1024}", "rw")
    a.wait_lg0()
    a.bar(f"{ph}_red2")
    for q in range(4): a.ds(f"ds_read_b128 {vr(rv+4*q,4)}, v{ad+1} offset:{q*1024}", "rr")
    for p in range(8): a(f"v_pk_add_f32 {vr(vXR+2*p,2)}, {vr(vXR+2*p,2)}, {vr(aK+2*p,2)}")
    if add_b2:
        for p in range(8): a(f"v_pk_add_f32 {vr(vXR+2*p,2)}, {vr(vXR+2*p,2)}, {vr(100+2*p,2)}")
    a.wait_lg0()
    for p in range(8): a(f"v_pk_add_f32 {vr(vXR+2*p,2)}, {vr(vXR+2*p,2)}, {vr(rv+2*p,2)}")
    pk = 116
    for p in range(8): a(f"v_cvt_pk_bf16_f32 v{pk+p}, v{vXR+2*p}, v{vXR+2*p+1}")
    if final:
        a.nop(2)
        for q in (0, 4):
            a(f"v_permlane32_swap_b32 v{pk+q}, v{pk+q+2}")
            a(f"v_permlane32_swap_b32 v{pk+q+1}, v{pk+q+3}")
        a(f"v_and_b32 v{ad}, 15, v{vLANE}"); a(f"v_lshlrev_b32 v{ad}, 10, v{ad}")
        a(f"v_bfe_u32 v{ad+1}, v{vLANE}, 4, 1"); a(f"v_lshl_add_u32 v{ad}, v{ad+1}, 5, v{ad}")
        a(f"v_lshrrev_b32 v{ad+1}, 5, v{vLANE}"); a(f"v_lshl_add_u32 v{ad}, v{ad+1}, 4, v{ad}")
        for q in range(4): a(f"v_permlane16_swap_b32 v{pk+q}, v{pk+4+q}")
        a(f"s_add_u32 s{sT1}, s{sOUTb}, 16384")
        a.vm(f"buffer_store_dwordx4 {vr(pk,4)}, v{ad}, s[{SRD_OUT}:{SRD_OUT+3}], s{sOUTb} offen nt", "out")
        a.vm(f"buffer_store_dwordx4 {vr(pk+4,4)}, v{ad}, s[{SRD_OUT}:{SRD_OUT+3}], s{sT1} offen nt", "out")
        return
    dual_store(a, "buffer_store_dwordx4", vr(pk, 4), vL16, SRD_WS, f"s{sXA}")
    dual_store(a, "buffer_store_dwordx4", vr(pk+4, 4), vL16, SRD_WS, f"s{sXA}", "offset:1024")
    s0, q0 = 100, 102
    a(f"v_pk_add_f32 {vr(s0,2)}, {vr(vXR,2)}, {vr(vXR+2,2)}")
    a(f"v_pk_mul_f32 {vr(q0,2)}, {vr(vXR,2)}, {vr(vXR,2)}")
    for p in range(1, 8):
        if p >= 2: a(f"v_pk_add_f32 {vr(s0,2)}, {vr(s0,2)}, {vr(vXR+2*p,2)}")
        a(f"v_pk_fma_f32 {vr(q0,2)}, {vr(vXR+2*p,2)}, {vr(vXR+2*p,2)}, {vr(q0,2)}")
    a(f"v_add_f32 v{s0}, v{s0}, v{s0+1}"); a(f"v_add_f32 v{q0}, v{q0}, v{q0+1}")
    a(f"s_lshl_b32 s{sT1}, s{sJ}, 1"); a(f"s_add_u32 s{sT1}, s{sT1}, s{sCP}")
    a(f"s_lshr_b32 s{sT2}, s{sT1}, 2"); a(f"s_lshl_b32 s{sT2}, s{sT2}, 10"); a(f"s_and_b32 s{sT1}, s{sT1}, 3"); a(f"s_lshl_b32 s{sT1}, s{sT1}, 2")
    a(f"s_add_u32 s{sT1}, s{sT1}, s{sT2}"); a(f"s_lshl_b32 s{sT2}, s{sTT}, 12"); a(f"s_add_u32 s{sT1}, s{sT1}, s{sT2}"); a(f"s_add_u32 s{sT1}, s{sT1}, s{sSTATS}")
    a(f"v_permlane32_swap_b32 v{s0}, v{q0}")
    a(f"v_add_f32 v{s0}, v{s0}, v{q0}")
    a.nop(1)
    dual_store(a, "buffer_store_dword", f"v{s0}", vL16, SRD_WS, f"s{sT1}")

def p3_compute(a):
    a(f"s_lshl_b32 s{sT2}, s{sTT}, 15"); a(f"s_add_u32 s{sT2}, s{sT2}, s{sHO}"); a(f"s_lshl_b32 s{sT3}, s{sCP}, 10"); a(f"s_add_u32 s{sT2}, s{sT2}, s{sT3}")
    gemm64(a, "p3", 16, lambda m: WOB + 4 * K * m, sT2, 16, False, midbar=OPT.get("p3mid", 10))
    ts(a, 9)
    red_epilogue(a, "p3", RB_P3, False, False, False)
    publish_pre(a, 2)
    a.wait_all0()
    a.bar("p3_pub")
    publish_local(a, "x1", 2, True)
    a.bar("p3_go")

def p5_compute_main(a):
    a(f"s_mul_i32 s{sT2}, s{sTT}, {H_TT}"); a(f"s_add_u32 s{sT2}, s{sT2}, s{sHO}"); a(f"s_lshl_b32 s{sT3}, s{sCP}, 10"); a(f"s_add_u32 s{sT2}, s{sT2}, s{sT3}")
    gemm64(a, "p5", 43, slot_p5, sT2, OPT.get("p5w", 12), True)

aQ, aKa, aKb = 32, 36, 40
aS = (48, 64)
aO, aP = 80, 96
aV = (104, 112)
aM, aT, aT2 = 120, 121, 122
aB8, aB0, aCm, aC8, aC0 = 128, 144, 160, 176, 192
aKA, aVA, aQA, aOA = 208, 209, 210, 211

def attention_setup(a):
    a(f"s_and_b32 s{sT1}, s{sW}, 3"); a(f"s_lshr_b32 s{sT2}, s{sW}, 2")
    a(f"s_lshl_b32 s{sT3}, s{sT1}, 10"); a(f"s_lshl_b32 s{sT0}, s{sT2}, 12"); a(f"s_add_u32 s{sT3}, s{sT3}, s{sT0}")
    a(f"v_add_u32 v{aKA}, s{sT3}, v{vL16}")
    a(f"v_lshrrev_b32 v{aT}, 5, v{vLANE}"); a(f"v_lshlrev_b32 v{aT}, 8, v{aT}")
    a(f"v_and_b32 v{aT2}, 15, v{vLANE}"); a(f"v_lshl_add_u32 v{aT}, v{aT2}, 4, v{aT}")
    a(f"s_add_u32 s{sT3}, s{sT3}, {VB}"); a(f"v_add_u32 v{aVA}, s{sT3}, v{aT}")
    a(f"s_lshl_b32 s{sT3}, s{sT1}, 11"); a(f"s_lshl_b32 s{sT0}, s{sT2}, 10"); a(f"s_add_u32 s{sT3}, s{sT3}, s{sT0}"); a(f"s_add_u32 s{sT3}, s{sT3}, {QB}")
    a(f"v_add_u32 v{aQA}, s{sT3}, v{vL16}")
    a(f"s_lshl_b32 s{sT3}, s{sG}, 1"); a(f"s_add_u32 s{sT3}, s{sT3}, s{sT2}")
    a(f"s_sub_i32 s{sTMIN}, 8, s{sT3}"); a(f"s_max_i32 s{sTMIN}, s{sTMIN}, 0")
    a(f"s_mul_i32 s{sO}, s{sG}, {HO_STRIDE}"); a(f"s_add_u32 s{sO}, s{sO}, {WS_HO}")
    a(f"s_lshl_b32 s{sT3}, s{sT2}, 15"); a(f"s_add_u32 s{sO}, s{sO}, s{sT3}")
    a(f"s_lshl_b32 s{sT3}, s{sJ}, 2"); a(f"s_add_u32 s{sT3}, s{sT3}, s{sT1}"); a(f"s_lshl_b32 s{sT3}, s{sT3}, 10"); a(f"s_add_u32 s{sO}, s{sO}, s{sT3}")
    a(f"v_and_b32 v{aT}, 31, v{vLANE}"); a(f"v_lshrrev_b32 v{aT2}, 5, v{vLANE}"); a(f"v_lshlrev_b32 v{aT2}, 2, v{aT2}")
    a(f"v_sub_u32 v{aT}, v{aT}, v{aT2}")
    a(f"v_mov_b32 v{aM}, {NEGBIG}"); a(f"v_mov_b32 v{aT2}, 0")
    for r in range(16):
        m0 = (r & 3) + 8 * (r >> 2)
        pair = 88 + 2 * (r % 2)
        a(f"v_cmp_le_i32 s[{pair}:{pair+1}], {m0}, v{aT}")
        if r >= 1:
            pp = 88 + 2 * ((r - 1) % 2)
            a(f"v_cndmask_b32 v{aB8+r-1}, v{aM}, v{aT2}, s[{pp}:{pp+1}]") if False else None
        a.nop(2)
        a(f"v_cndmask_b32 v{aB8+r}, v{aM}, v{aT2}, s[{pair}:{pair+1}]")
        a(f"v_cndmask_b32 v{aB0+r}, v{aT2}, v{aM}, s[{pair}:{pair+1}]")
    for q in range(16): a(f"v_mov_b32 v{aV[0]+q}, 0x3f803f80")

def warm_exchange(a):
    a(f"s_cmp_eq_u32 s{sI}, 3"); a("s_cbranch_scc1 L_we_x")
    a(f"s_mul_i32 s{sT1}, s{sG}, {HO_STRIDE}"); a(f"s_mul_i32 s{sT2}, s{sJ}, 22528"); a(f"s_add_u32 s{sT1}, s{sT1}, s{sT2}")
    a(f"s_lshl_b32 s{sT2}, s{sI}, 13"); a(f"s_add_u32 s{sT1}, s{sT1}, s{sT2}")
    touch(a, SRD_WS, 10, sT1, WS_HO)
    a("s_branch L_we_e")
    a.label("L_we_x")
    a(f"s_lshl_b32 s{sT2}, s{sG}, 16"); a(f"s_lshl_b32 s{sT0}, s{sJ}, 13"); a(f"s_add_u32 s{sT2}, s{sT2}, s{sT0}")
    touch(a, SRD_WS, 10, sT2, WS_XA)
    touch(a, SRD_WS, 10, sSTATS, 0)
    a.label("L_we_e")
def warm_w1(a):
    a(f"s_cmp_eq_u32 s{sI}, 3"); a("s_cbranch_scc1 L_ww_e")
    a(f"s_mul_i32 s{sT1}, s{sJ}, {J_WQ}"); a(f"s_and_b32 s{sT2}, s{sG}, 3"); a(f"s_mul_i32 s{sT2}, s{sT2}, 22528"); a(f"s_add_u32 s{sT1}, s{sT1}, s{sT2}")
    a(f"s_lshl_b32 s{sT2}, s{sI}, 13"); a(f"s_add_u32 s{sT1}, s{sT1}, s{sT2}")
    touch(a, SRD_WS, 10, sT1, WS_W1P)
    a.label("L_ww_e")

def _p2c2(a):
    a(f"s_cmp_lt_u32 s{sW}, 4"); a("s_cbranch_scc1 L_p2c2_skip")
    a(f"s_cmp_lg_u32 s{sPAIR}, 0"); a("s_cbranch_scc1 L_p2c2_skip")
    prep2_check_addr(a, 230)
    a(f"buffer_load_dwordx3 v[232:234], v230, s[{SRD_WS}:{SRD_WS+3}], 0 offen sc1")
    a.label("L_p2c2_skip")

def attention(a):
    S3 = (aS[0], aS[1], aO)
    def rdK(t):
        buf = aKa if t % 2 == 0 else aKb
        a.ds(f"ds_read_b128 {vr(buf,4)}, v{aKA} offset:{KB + t*4096}", ("K", t))
    def Kf(t): return vr(aKa if t % 2 == 0 else aKb, 4)
    def s1(t):
        a.wait_lg(("K", t))
        c = vr(aB8, 16) if t == 8 else (vr(aB0, 16) if t == 0 else "0")
        a(f"v_mfma_f32_32x32x16_bf16 {vr(S3[t % 3],16)}, {Kf(t)}, {vr(aQ,4)}, {c}")
        if t >= 2: rdK(t - 2)
    a.ds(f"ds_read_b128 {vr(aQ,4)}, v{aQA}", "Q")
    rdK(8); rdK(7)
    a.wait_lg("Q")
    s1(8); s1(7)
    a.nop(6)
    for t in range(8, -1, -1):
        if t >= 2: s1(t - 2)
        elif t == 1: a.nop(2)
        else: a.nop(3)
        s = S3[t % 3]
        if t == 8:
            a.nop(2)
            a(f"v_max3_f32 v{aM}, v{s}, v{s+1}, v{s+2}")
            a(f"v_max_f32 v{aM}, v{aM}, v{s+3}")
            for p in range(2, 8): a(f"v_max3_f32 v{aM}, v{aM}, v{s+2*p}, v{s+2*p+1}")
        else:
            for p in range(8): a(f"v_max3_f32 v{aM}, v{aM}, v{s+2*p}, v{s+2*p+1}")
        if t >= 1:
            a(f"s_cmp_eq_u32 s{sTMIN}, {t}")
            a("s_cbranch_scc1 L_at_p1done")
    a.label("L_at_p1done")
    a.wait_lg0()
    if OPT.get("tsa"): ts(a, 26)
    a(f"v_mov_b32 v{aT}, v{aM}")
    rdK(8); rdK(7)
    a(f"v_permlane32_swap_b32 v{aM}, v{aT}")
    a(f"v_max_f32 v{aM}, v{aM}, v{aT}")
    a(f"v_sub_f32 v{aM}, 0, v{aM}")
    a.nop(8)
    for p in range(8): a(f"v_pk_add_f32 {vr(aC8+2*p,2)}, {vr(aB8+2*p,2)}, {vr(aM,2)} op_sel_hi:[1,0]")
    a(f"v_mov_b32 v{aT}, v{aM}")
    for p in range(8): a(f"v_pk_add_f32 {vr(aC0+2*p,2)}, {vr(aB0+2*p,2)}, {vr(aM,2)} op_sel_hi:[1,0]")
    for r in range(0, 16, 2): a(f"v_pk_mul_f32 {vr(aCm+r,2)}, {vr(aM,2)}, 1.0 op_sel_hi:[1,0]")
    def S(t): return aS[t % 2]
    def rdV(t):
        vb = aV[t % 2]
        a(f"s_mov_b64 exec, s[{sVMASK}:{sVMASK+1}]")
        a.ds(f"ds_read_b128 {vr(vb,4)}, v{aVA} offset:{t*4096}", ("V", t))
        a.ds(f"ds_read_b128 {vr(vb+4,4)}, v{aVA} offset:{t*4096 + 512}", ("V", t))
        a("s_mov_b64 exec, -1")
    def s2(t):
        a.wait_lg(("K", t))
        c = vr(aC8, 16) if t == 8 else (vr(aC0, 16) if t == 0 else vr(aCm, 16))
        a(f"v_mfma_f32_32x32x16_bf16 {vr(S(t),16)}, {Kf(t)}, {vr(aQ,4)}, {c}")
    s2(8)
    rdK(6)
    a(f"s_cmp_lt_u32 s{sW}, 4"); a("s_cbranch_scc1 L_at_vw0")
    if OPT.get("w2late", 1):
        a(f"s_cmp_lg_u32 s{sPAIR}, 0"); a("s_cbranch_scc1 L_at_vw6")
        a(f"s_cmp_eq_u32 s{sW}, 4"); a("s_cbranch_scc1 L_at_vw6")
        a("s_waitcnt vmcnt(4)"); a("s_branch L_at_vw1")
        a.label("L_at_vw6")
    nb = 11 if OPT.get("w2reg", 0) else 0
    if OPT.get("ww1", 1): a(f"s_waitcnt vmcnt({2 + nb})")
    else:
        a(f"s_cmp_eq_u32 s{sW}, 7"); a("s_cbranch_scc1 L_at_vw5")
        a(f"s_waitcnt vmcnt({1 + nb})"); a("s_branch L_at_vw1")
        a.label("L_at_vw5")
        a(f"s_waitcnt vmcnt({2 + nb})")
    a("s_branch L_at_vw1")
    a.label("L_at_vw0")
    a("s_waitcnt vmcnt(0)")
    a.label("L_at_vw1")
    a("s_barrier")
    if OPT.get("tsa"): ts(a, 27)
    if OPT.get("tsa"): ts(a, 28)
    rdV(8)
    a.nop(5)
    PR = {8: 3, 5: 2, 2: 1, 0: 0} if OPT.get("bal", 2) == 1 else ({8: 3, 6: 2, 3: 1, 1: 0} if OPT.get("bal", 2) == 2 else {})
    for t in range(8, -1, -1):
        s = S(t); vb = aV[t % 2]
        if t in PR: a(f"s_setprio {PR[t]}")
        for r in range(0, 4): a(f"v_exp_f32 v{s+r}, v{s+r}")
        if t >= 1:
            s2(t - 1)
            if t >= 3: rdK(t - 3)
        for r in range(4, 8): a(f"v_exp_f32 v{s+r}, v{s+r}")
        for p in range(4): a(f"v_cvt_pk_bf16_f32 v{aP+p}, v{s+2*p}, v{s+2*p+1}")
        a.wait_lg(("V", t))
        a(f"v_exp_f32 v{s+8}, v{s+8}")
        a(f"v_mfma_f32_32x32x16_bf16 {vr(aO,16)}, {vr(vb,4)}, {vr(aP,4)}, {'0' if t == 8 else vr(aO,16)}")
        for r in range(9, 16): a(f"v_exp_f32 v{s+r}, v{s+r}")
        if t >= 1: rdV(t - 1)
        for p in range(4, 8): a(f"v_cvt_pk_bf16_f32 v{aP+p}, v{s+2*p}, v{s+2*p+1}")
        if t >= 1: a(f"s_cmp_eq_u32 s{sTMIN}, {t}")
        a.nop(1 if t >= 1 else 2)
        a(f"v_mfma_f32_32x32x16_bf16 {vr(aO,16)}, {vr(vb+4,4)}, {vr(aP+4,4)}, {vr(aO,16)}")
        if t >= 1: a("s_cbranch_scc1 L_at_p2done")
    a.label("L_at_p2done")
    if OPT.get("bal", 2): a("s_setprio 0")
    if OPT.get("tsa"): ts(a, 7)
    a.wait_lg0()
    a.nop(12)
    a(f"v_rcp_f32 v{aT}, v{aO+8}")
    a.nop(1)
    for r in range(8): a(f"v_mul_f32 v{aO+r}, v{aO+r}, v{aT}")
    for p in range(4): a(f"v_cvt_pk_bf16_f32 v{aP+p}, v{aO+2*p}, v{aO+2*p+1}")
    a.nop(1)
    dual_store(a, "buffer_store_dwordx4", vr(aP, 4), vL16, SRD_WS, f"s{sO}")
    a.wait_all0()

def src_patterns(a, regs, t0, t1, t2):
    a(f"v_lshrrev_b32 v{t0}, 3, v{vLANE}")
    a(f"v_bfe_u32 v{t1}, v{vLANE}, 4, 2")
    a(f"v_and_b32 v{t2}, 1, v{t1}"); a(f"v_lshlrev_b32 v{t2}, 1, v{t2}"); a(f"v_lshrrev_b32 v{t1}, 1, v{t1}"); a(f"v_or_b32 v{t1}, v{t1}, v{t2}")
    a(f"v_bfe_u32 v{t2}, v{vLANE}, 1, 2"); a(f"v_xor_b32 v{t1}, v{t1}, v{t2}"); a(f"v_lshlrev_b32 v{t1}, 5, v{t1}")
    a(f"v_and_b32 v{t2}, 1, v{vLANE}"); a(f"v_lshl_add_u32 v{t1}, v{t2}, 4, v{t1}")
    for reg, stride in regs:
        a(f"s_mov_b32 s{sT0}, {stride}"); a(f"v_mul_lo_u32 v{t2}, v{t0}, s{sT0}"); a(f"v_add_u32 v{reg}, v{t2}, v{t1}")

pT0, pT1 = 40, 41
pF = 44
def prep_setup(a):
    a(f"s_mov_b32 s{sT2}, 0"); tr_addr(a, pT0, sT2, tmp=(60, 61, 62, 63))
    a(f"s_mov_b32 s{sT2}, 1"); tr_addr(a, pT1, sT2, tmp=(60, 61, 62, 63))
    a(f"s_lshl_b32 s{sT2}, s{sW}, 12"); a(f"s_add_u32 s{sT2}, s{sT2}, {PREP}")
    a(f"v_add_u32 v{pT0}, s{sT2}, v{pT0}"); a(f"v_add_u32 v{pT1}, s{sT2}, v{pT1}")
def prep_fetch(a, srdn, vpat, stride, ssrc, slot, tag):
    for o in range(2):
        a(f"s_lshl_b32 s{sT3}, s{sW}, 12"); a(f"s_add_u32 m0, s{sT3}, {PREP + slot*2048 + o*1024}")
        a(f"s_add_u32 s{sT0}, s{ssrc}, {o*8*stride}")
        a.vm(f"buffer_load_dwordx4 v{vpat}, s[{srdn}:{srdn+3}], s{sT0} offen lds", tag)
def prep_read(a, f, slot, tag):
    a.wait_vm(tag)
    for ct, ad in ((0, pT0), (1, pT1)):
        for h in range(2):
            a.ds(f"ds_read_b64_tr_b16 {vr(f+4*ct+2*h,2)}, v{ad} offset:{slot*2048 + h*1024}", "pf")
    a.wait_lg0()
def prep_store(a, f, sdst):
    for ct in range(2):
        a.vm(f"buffer_store_dwordx4 {vr(f+4*ct,4)}, v{vL16}, s[{SRD_WS}:{SRD_WS+3}], s{sdst} offen offset:{ct*1024} sc1", "pst")
def prep_emit(a, sdst, slot, tag):
    f = pF + 8 * slot
    prep_read(a, f, slot, tag)
    prep_store(a, f, sdst)
def w2_item(a, ssrc, sdst, ks_sgpr):
    a(f"s_lshl_b32 s{ssrc}, s{ks_sgpr}, 14"); a(f"s_lshl_b32 s{sT0}, s{sJ}, 7"); a(f"s_add_u32 s{ssrc}, s{ssrc}, s{sT0}")
    a(f"s_lshl_b32 s{sdst}, s{ks_sgpr}, 11"); a(f"s_mul_i32 s{sT0}, s{sJ}, {J_W2}"); a(f"s_add_u32 s{sdst}, s{sdst}, s{sT0}"); a(f"s_add_u32 s{sdst}, s{sdst}, {WS_W2P}")

def loader_prep(a):
    pA, pB = 88, 89
    a(f"s_cmp_eq_u32 s{sW}, 7"); a("s_cbranch_scc1 L_prep7")
    src_patterns(a, ((vPQ, 3072),), 16, 17, 18)
    a(f"s_sub_u32 s{sT1}, s{sW}, 4")
    a(f"s_add_u32 s{sT2}, s{sT1}, 1"); a(f"s_cmp_eq_u32 s{sT1}, 2"); a(f"s_cselect_b32 s{sT2}, 0, s{sT2}")
    a(f"s_mul_i32 s{pA}, s{sG}, {16*3072}"); a(f"s_lshl_b32 s{sT2}, s{sT2}, 10"); a(f"s_add_u32 s{pA}, s{pA}, s{sT2}")
    a(f"s_lshl_b32 s{sT2}, s{sJ}, 7"); a(f"s_add_u32 s{pA}, s{pA}, s{sT2}")
    prep_fetch(a, SRD_WQ, vPQ, 3072, pA, 0, "p0")
    if OPT.get("vtlb"):
        a(f"s_cmp_lg_u32 s{sW}, 4"); a("s_cbranch_scc1 L_vtlb")
        a(f"v_lshlrev_b32 v19, 21, v{vLANE}"); a(f"v_add_u32 v19, 0x1ff000, v19")
        a(f"s_mov_b64 exec, s[{sM16}:{sM16+1}]")
        a(f"s_mov_b32 s{sT2}, 0")
        touch(a, SRD_WS, 19, sT2, 0)
        a("s_mov_b64 exec, -1")
        a.label("L_vtlb")
    a(f"s_mul_i32 s{pB}, s{sJ}, {J_WQ}"); a(f"s_lshl_b32 s{sT2}, s{sG}, 11"); a(f"s_add_u32 s{pB}, s{pB}, s{sT2}")
    a(f"s_lshl_b32 s{sT2}, s{sT1}, 16"); a(f"s_add_u32 s{pB}, s{pB}, s{sT2}"); a(f"s_add_u32 s{pB}, s{pB}, {WS_WQP}")
    a("s_branch L_prep_go")
    a.label("L_prep7")
    a.vmq = []
    src_patterns(a, ((vPO, 1024),), 16, 17, 18)
    a(f"s_lshl_b32 s{pA}, s{sG}, 14"); a(f"s_lshl_b32 s{sT2}, s{sJ}, 7"); a(f"s_add_u32 s{pA}, s{pA}, s{sT2}")
    prep_fetch(a, SRD_WO, vPO, 1024, pA, 0, "p0")
    a(f"s_lshl_b32 s{pB}, s{sG}, 11"); a(f"s_lshl_b32 s{sT2}, s{sJ}, 16"); a(f"s_add_u32 s{pB}, s{pB}, s{sT2}"); a(f"s_add_u32 s{pB}, s{pB}, {WS_WOP}")
    a.label("L_prep_go")
    prep_setup(a)
    if OPT["ts"]:
        a.wait_vm("p0"); ts(a, 1)
    prep_emit(a, pB, 0, "p0")
    ts(a, 2)
    a.vmq = []

qF = 212
sQ1, sQ2 = 92, 93
def prep2_fetch(a):
    pA, pC = 88, 89
    a(f"s_cmp_eq_u32 s{sW}, 4"); a("s_cbranch_scc1 L_p2f_skip")
    src_patterns(a, ((vP1, 2752), (vPO, 1024)), 16, 17, 18)
    a(f"s_sub_u32 s{sT1}, s{sW}, 5")
    a(f"s_mul_i32 s{pA}, s{sG}, {16*2752}"); a(f"s_lshl_b32 s{sT2}, s98, 5"); a(f"s_add_u32 s{pA}, s{pA}, s{sT2}")
    a(f"s_lshl_b32 s{sT2}, s{sT1}, 7"); a(f"s_add_u32 s{pA}, s{pA}, s{sT2}")
    a(f"s_mul_i32 s{sQ1}, s{sJ}, {J_WQ}"); a(f"s_lshl_b32 s{sT2}, s{sG}, 11"); a(f"s_add_u32 s{sQ1}, s{sQ1}, s{sT2}")
    a(f"s_lshl_b32 s{sT2}, s{sT1}, 16"); a(f"s_add_u32 s{sQ1}, s{sQ1}, s{sT2}"); a(f"s_add_u32 s{sQ1}, s{sQ1}, {WS_W1P}")
    prep_fetch(a, SRD_W1, vP1, 2752, pA, 0, "q0")
    a(f"s_lshl_b32 s{sT1}, s{sT1}, 5"); a(f"s_add_u32 s{sT1}, s{sT1}, s{sG}")
    w2_item(a, pC, sQ2, sT1)
    a(f"s_cmp_lt_u32 s{sT1}, 86"); a(f"s_cselect_b32 s{sQ2}, s{sQ2}, 0x7ffff000")
    prep_fetch(a, SRD_W2, vPO, 1024, pC, 1, "q1")
    a.label("L_p2f_skip")
    a.vmq = []
def prep2_emit(a):
    a(f"s_cmp_eq_u32 s{sW}, 4"); a("s_cbranch_scc1 L_p2r_skip")
    a("s_waitcnt vmcnt(0)")
    for slot in range(2):
        for ct, ad in ((0, pT0), (1, pT1)):
            for h in range(2):
                a(f"ds_read_b64_tr_b16 {vr(qF+8*slot+4*ct+2*h,2)}, v{ad} offset:{slot*2048 + h*1024}")
    a("s_waitcnt lgkmcnt(0)")
    for q, sd in (() if OPT.get("w1st") is not None else ((0, sQ1),)) if OPT.get("w2late", 1) else ((0, sQ1), (1, sQ2)):
        for ct in range(2):
            a(f"buffer_store_dwordx4 {vr(qF+8*q+4*ct,4)}, v{vL16}, s[{SRD_WS}:{SRD_WS+3}], s{sd} offen offset:{ct*1024} sc1")
    a.label("L_p2r_skip")
def w1_mid_store(a):
    a(f"s_cmp_eq_u32 s{sW}, 4"); a("s_cbranch_scc1 L_w1m_skip")
    for ct in range(2):
        a(f"buffer_store_dwordx4 {vr(qF+4*ct,4)}, v{vL16}, s[{SRD_WS}:{SRD_WS+3}], s{sQ1} offen offset:{ct*1024} sc1")
    a.label("L_w1m_skip")
def w2_late_store(a):
    a(f"s_cmp_lg_u32 s{sPAIR}, 0"); a("s_cbranch_scc1 L_w2l_skip")
    a(f"s_cmp_eq_u32 s{sW}, 4"); a("s_cbranch_scc1 L_w2l_skip")
    for ct in range(2):
        a(f"buffer_store_dwordx4 {vr(qF+8+4*ct,4)}, v{vL16}, s[{SRD_WS}:{SRD_WS+3}], s{sQ2} offen offset:{ct*1024} sc1")
    a.label("L_w2l_skip")
def prep_signal3(a):
    a(f"s_cmp_lg_u32 s{sPAIR}, 0"); a("s_cbranch_scc1 L_sig3_skip")
    a(f"s_cmp_lg_u32 s{sW}, 4"); a("s_cbranch_scc1 L_sig3_skip")
    a(f"s_add_u32 s{sVAL}, s{sEP}, 3")
    a(f"s_lshl_b32 s{sT2}, s{sJ}, 5"); a(f"s_add_u32 s{sT2}, s{sT2}, s{sG}"); a(f"s_lshl_b32 s{sT2}, s{sT2}, 7"); a(f"s_add_u32 s{sT2}, s{sT2}, {WS_PREPF}")
    a(f"v_mov_b32 v20, s{sVAL}"); a(f"v_mov_b32 v22, s{sT2}")
    a("s_mov_b64 exec, 1")
    a(f"buffer_store_dword v20, v22, s[{SRD_WS}:{SRD_WS+3}], 0 offen sc1")
    a("s_mov_b64 exec, -1")
    a.label("L_sig3_skip")
def prep_check3_issue(a):
    _prep2_addr(a)
    a.vm(f"buffer_load_dword v27, v26, s[{SRD_WS}:{SRD_WS+3}], 0 offen sc1", "s3")
def prep_check3(a):
    a.wait_vm("s3")
    a(f"s_add_u32 s{sVAL}, s{sEP}, 3")
    a(f"v_subrev_u32 v27, s{sVAL}, v27")
    a(f"v_cmp_le_u32 vcc, 8, v27")
    a("s_nop 1")
    a("s_cbranch_vccz L_s3_ok")
    poll_loop(a, "s3p", 26, 27)
    a.label("L_s3_ok")

def loader_prologue(a):
    t0, t1, t2 = 16, 17, 18
    a(f"s_mul_i32 s{sT0}, s{sJ}, {J_WQ}"); a(f"s_add_u32 s{sT0}, s{sT0}, s{sI1K}")
    a(f"s_add_u32 s{sWQb}, s{sT0}, {WS_WQP}"); a(f"s_add_u32 s{sW1b}, s{sT0}, {WS_W1P}")
    a(f"s_lshl_b32 s{sWOb}, s{sJ}, 16"); a(f"s_add_u32 s{sWOb}, s{sWOb}, s{sI1K}"); a(f"s_add_u32 s{sWOb}, s{sWOb}, {WS_WOP}")
    a(f"s_mul_i32 s{sW2b}, s{sJ}, {J_W2}"); a(f"s_add_u32 s{sW2b}, s{sW2b}, s{sI1K}"); a(f"s_add_u32 s{sW2b}, s{sW2b}, {WS_W2P}")
    a(f"v_add_u32 v{vLI[0]}, s{sI1K}, v{vL16}"); three_bases(a, vLI)
    a(f"s_and_b32 s{sT0}, s{sI}, 1"); a(f"s_lshr_b32 s{sT1}, s{sI}, 1")
    a(f"s_lshl_b32 s{sXA}, s{sG}, 16"); a(f"s_lshl_b32 s{sT2}, s{sT0}, 15"); a(f"s_add_u32 s{sXA}, s{sXA}, s{sT2}")
    a(f"s_lshl_b32 s{sT2}, s{sT1}, 10"); a(f"s_add_u32 s{sXA}, s{sXA}, s{sT2}"); a(f"s_add_u32 s{sXA}, s{sXA}, {WS_XA}")
    a(f"s_mov_b32 s{sTT}, s{sT0}")
    a(f"s_sub_i32 s{sKVr}, s{sG}, 4"); a(f"s_lshl_b32 s{sKVr}, s{sKVr}, 3"); a(f"s_add_i32 s{sKVr}, s{sKVr}, s{sJ}"); a(f"s_lshl_b32 s{sKVr}, s{sKVr}, 14")
    a(f"s_add_i32 s{sKVr}, s{sKVr}, s{sI1K}"); a(f"s_add_i32 s{sKVr}, s{sKVr}, {WS_KV}")
    a(f"s_lshl_b32 s{sT0}, s{sG}, 7")
    a(f"v_and_b32 v{t0}, 7, v{vLANE}"); a(f"v_lshlrev_b32 v{t0}, 2, v{t0}"); a(f"v_add_u32 v{vPOLL}, s{sT0}, v{t0}")
    a(f"s_lshl_b32 s{sT1}, s{sJ}, 2"); a(f"s_add_u32 s{sT0}, s{sT0}, s{sT1}"); a(f"v_mov_b32 v{vFLAG}, s{sT0}")
    a(f"v_lshlrev_b32 v{vSTA}, 6, v{vLANE}")
    a(f"v_and_b32 v{t0}, 31, v{vLANE}"); a(f"v_lshlrev_b32 v{t0}, 2, v{t0}"); a(f"v_lshrrev_b32 v{t1}, 5, v{vLANE}"); a(f"v_lshl_add_u32 v{t0}, v{t1}, 8, v{t0}")
    a(f"s_lshl_b32 s{sT0}, s{sTT}, 7"); a(f"s_add_u32 s{sT0}, s{sT0}, {ST_MEAN}"); a(f"v_add_u32 v{vSTW}, s{sT0}, v{t0}")
    a(f"s_mov_b32 s{sC1}, {f2u(1.0/512.0)}"); a(f"s_mov_b32 s{sC2}, {f2u(EPS)}")

def wq_unit(a, u): dma(a, SRD_WS, vL16, sWQb, u * 4096, slot_p1(u), ("W", u), "sc1")
def w1_unit(a, u): dma(a, SRD_WS, vL16, sW1b, u * 4096, slot_p4(u), ("W", u), "sc1")
def wo_unit(a, m): dma(a, SRD_WS, vL16, sWOb, m * 4096, WOB + 4 * K * m, ("WO", m), "sc1")
def w2_unit(a, m): dma(a, SRD_WS, vL16, sW2b, m * 4096, slot_p5(m), ("W2", m), "sc1")
def w2_from_regs(a, m):
    li = LdsBase(vLI)
    r, off = li.at(slot_p5(m))
    a.ds(f"ds_write_b128 v{r}, {vr(212 + 4*(m - 32), 4)} offset:{off}", ("w2r", m))
def a_pair(a, m, abase):
    dma(a, SRD_WS, vL16, sXA, m * 2048, abase + m * 4096, ("A", m), "sc1")

PV = (80, 81, 82, 83, 84, 85)
def poll_loop(a, name, vaddr, vdat):
    lab = f"L_{name}"
    a(f"s_mov_b32 s{sSPIN}, {OPT['spin']}")
    a.label(lab)
    a(f"buffer_load_dword v{vdat}, v{vaddr}, s[{SRD_WS}:{SRD_WS+3}], 0 offen sc1")
    a("s_waitcnt vmcnt(0)")
    a(f"v_subrev_u32 v{vdat}, s{sVAL}, v{vdat}")
    a(f"v_cmp_le_u32 vcc, 8, v{vdat}")
    a(f"s_sub_u32 s{sSPIN}, s{sSPIN}, 1")
    a(f"s_cbranch_scc1 {lab}_x")
    a(f"s_cbranch_vccnz {lab}")
    a.label(f"{lab}_x")
def poll(a, name, vaddr): poll_loop(a, name, vaddr, PV[0])

def publish_pre(a, ev):
    vf, vp, vv = PV[1], PV[2], PV[3]
    a(f"s_lshl_b32 s{sT1}, s{sG}, 7"); a(f"s_lshl_b32 s{sT2}, s{sJ}, 2"); a(f"s_add_u32 s{sT2}, s{sT2}, s{sT1}")
    a(f"s_lshl_b32 s{sVAL}, s{sPAIR}, 2"); a(f"s_add_u32 s{sVAL}, s{sVAL}, {ev}"); a(f"s_add_u32 s{sVAL}, s{sVAL}, s{sEP}")
    a(f"v_mov_b32 v{vf}, s{sT2}"); a(f"v_mov_b32 v{vv}, s{sVAL}")
    a(f"v_and_b32 v{vp}, 7, v{vLANE}"); a(f"v_lshlrev_b32 v{vp}, 2, v{vp}"); a(f"v_add_u32 v{vp}, s{sT1}, v{vp}")
    a(f"s_mov_b32 s{sSPIN}, {OPT['spin']}")
def publish_local(a, name, ev, pre_done=False):
    vf, vp, vv = PV[1], PV[2], PV[3]
    if not pre_done: publish_pre(a, ev)
    a(f"s_cmp_lg_u32 s{sW}, 0")
    a(f"s_cbranch_scc1 L_{name}_skip")
    a("s_mov_b64 exec, 1")
    a(f"s_cmp_eq_u32 s{sFAST}, 0")
    a(f"s_cbranch_scc1 L_{name}_sl")
    a(f"buffer_store_dword v{vv}, v{vf}, s[{SRD_WS}:{SRD_WS+3}], 0 offen")
    a(f"s_branch L_{name}_st")
    a.label(f"L_{name}_sl")
    a(f"buffer_store_dword v{vv}, v{vf}, s[{SRD_WS}:{SRD_WS+3}], 0 offen sc1")
    a.label(f"L_{name}_st")
    a("s_mov_b64 exec, -1")
    lab = f"L_{name}_p"
    a.label(lab)
    a(f"buffer_load_dword v{PV[0]}, v{vp}, s[{SRD_WS}:{SRD_WS+3}], 0 offen sc1")
    a("s_waitcnt vmcnt(0)")
    a(f"v_subrev_u32 v{PV[0]}, s{sVAL}, v{PV[0]}")
    a(f"v_cmp_le_u32 vcc, 8, v{PV[0]}")
    a(f"s_sub_u32 s{sSPIN}, s{sSPIN}, 1")
    a(f"s_cbranch_scc1 {lab}_x")
    a(f"s_cbranch_vccnz {lab}")
    a.label(f"{lab}_x")
    a.label(f"L_{name}_skip")

KVP = (20, 21, 22, 23, 24)
def kv_flag_store(a, wave, which, regs, name):
    v1_, v2_ = regs
    a(f"s_cmp_lg_u32 s{sW}, {wave}")
    a(f"s_cbranch_scc1 L_{name}_skip")
    a(f"s_lshl_b32 s{sT1}, s{sG}, 3"); a(f"s_add_u32 s{sT1}, s{sT1}, s{sJ}"); a(f"s_lshl_b32 s{sT1}, s{sT1}, 7"); a(f"s_add_u32 s{sT1}, s{sT1}, {WS_FLAGR + 4*which}")
    a(f"s_add_u32 s{sVAL}, s{sPAIRN}, 1"); a(f"s_add_u32 s{sVAL}, s{sVAL}, s{sEP}")
    a(f"v_mov_b32 v{v1_}, s{sVAL}"); a(f"v_mov_b32 v{v2_}, s{sT1}")
    a(f"s_mov_b64 s[{sEXEC}:{sEXEC+1}], exec"); a("s_mov_b64 exec, 1")
    a(f"buffer_store_dword v{v1_}, v{v2_}, s[{SRD_WS}:{SRD_WS+3}], 0 offen sc1")
    a(f"s_mov_b64 exec, s[{sEXEC}:{sEXEC+1}]")
    a.label(f"L_{name}_skip")

def kv_pred_addr(a, v2_, v3_, which):
    a(f"v_and_b32 v{v2_}, 3, v{vLANE}"); a(f"v_add_u32 v{v2_}, 1, v{v2_}"); a(f"v_sub_u32 v{v2_}, s{sG}, v{v2_}")
    a(f"v_cmp_gt_i32 vcc, 0, v{v2_}"); a(f"v_mov_b32 v{v3_}, s{sG}"); a("s_nop 1"); a(f"v_cndmask_b32 v{v2_}, v{v2_}, v{v3_}, vcc")
    a(f"v_lshlrev_b32 v{v2_}, 3, v{v2_}"); a(f"v_add_u32 v{v2_}, s{sJ}, v{v2_}"); a(f"v_lshlrev_b32 v{v2_}, 7, v{v2_}"); a(f"v_add_u32 v{v2_}, {WS_FLAGR + 4*which}, v{v2_}")

def poll_r(a, name, vaddr, vdat): poll_loop(a, name, vaddr, vdat)

def die_check_issue(a):
    a(f"v_and_b32 v24, 7, v{vLANE}"); a(f"v_lshlrev_b32 v24, 5, v24"); a(f"v_add_u32 v24, s{sG}, v24")
    a(f"v_lshlrev_b32 v24, 7, v24"); a(f"v_add_u32 v24, {WS_PREPF}, v24")
    a.vm(f"buffer_load_dwordx2 v[28:29], v24, s[{SRD_WS}:{SRD_WS+3}], 0 offen sc1", "die")
def die_check(a):
    a.wait_vm("die")
    a(f"s_cmp_lg_u32 s{sW}, 4"); a("s_cbranch_scc1 L_die_skip")
    a(f"s_add_u32 s{sVAL}, s{sEP}, 1")
    a(f"s_mov_b32 s{sSPIN}, {OPT['spin']}")
    a.label("L_die_loop")
    a(f"v_subrev_u32 v28, s{sVAL}, v28")
    a(f"v_cmp_le_u32 vcc, 8, v28")
    a(f"s_sub_u32 s{sSPIN}, s{sSPIN}, 1")
    a("s_cbranch_scc1 L_die_x")
    a("s_cbranch_vccz L_die_x")
    a(f"buffer_load_dwordx2 v[28:29], v24, s[{SRD_WS}:{SRD_WS+3}], 0 offen sc1")
    a("s_waitcnt vmcnt(0)")
    a("s_branch L_die_loop")
    a.label("L_die_x")
    a(f"s_getreg_b32 s{sT2}, hwreg(HW_REG_XCC_ID, 0, 3)")
    a(f"v_cmp_ne_u32 vcc, s{sT2}, v29")
    a("s_nop 4")
    a(f"s_cmp_eq_u64 vcc, 0")
    a(f"s_cselect_b32 s{sT1}, 1, 0")
    if OPT.get("slow"): a(f"s_mov_b32 s{sT1}, 0")
    a(f"v_mov_b32 v28, s{sT1}"); a(f"v_mov_b32 v29, {MODEW}")
    a(f"ds_write_b32 v29, v28")
    a("s_waitcnt lgkmcnt(0)")
    a.label("L_die_skip")

def kv_wait_k(a, ph):
    v0_, v1_, v2_, v3_, v4_ = KVP
    a(f"s_cmp_lg_u32 s{sW}, 4")
    a(f"s_cbranch_scc1 L_{ph}_kw_skip")
    kv_pred_addr(a, v2_, v3_, 0)
    a(f"s_add_u32 s{sVAL}, s{sPAIRN}, 1"); a(f"s_add_u32 s{sVAL}, s{sVAL}, s{sEP}")
    poll_r(a, f"{ph}_kp", v2_, v0_)
    a.label(f"L_{ph}_kw_skip")

def kv_wait_v(a):
    v0_, v1_, v2_, v3_, v4_ = KVP
    a(f"s_cmp_lg_u32 s{sW}, 4")
    a(f"s_cbranch_scc1 L_vw_skip")
    kv_pred_addr(a, v2_, v3_, 1)
    a(f"s_add_u32 s{sVAL}, s{sPAIR}, 1"); a(f"s_add_u32 s{sVAL}, s{sVAL}, s{sEP}")
    poll_r(a, "vp", v2_, v0_)
    a.label(f"L_vw_skip")

def kv_dma(a, part):
    a(f"s_lshl_b32 s{sT2}, s{sPAIR}, 22"); a(f"s_add_i32 s{sT2}, s{sT2}, s{sKVr}")
    for b in range(3, -1, -1):
        lab = f"L_kv{part}{b}"
        a(f"s_cmp_lt_u32 s{sG}, {4-b}")
        a(f"s_cbranch_scc1 {lab}")
        for h in range(2):
            dma(a, SRD_WS, vL16, sT2, b * 8 * 16384 + part * 8192 + h * 4096, (KB if part == 0 else VB) + b * 8192 + h * 4096, "KV", "nt sc1" if OPT.get("nt", 0) & 4 else "sc1")
        a.label(lab)

def xcd_touch_ws(a, base, share, npieces, vpat):
    a(f"s_lshr_b32 s{sT1}, s2, 3"); a(f"s_and_b32 s{sT1}, s{sT1}, 31"); a(f"s_mul_i32 s{sT1}, s{sT1}, {share}")
    a(f"s_lshl_b32 s{sT2}, s{sI}, 13"); a(f"s_add_u32 s{sT1}, s{sT1}, s{sT2}")
    touch(a, SRD_WS, vpat, sT1, base)
    a(f"s_cmp_ge_u32 s{sI}, 2"); a("s_cbranch_scc1 L_xt_skip")
    touch(a, SRD_WS, vpat, sT1, base + 4 * 8192)
    a.label("L_xt_skip")

def xcd_touch(a, srdn, share, npieces, vpat, dst):
    a(f"s_lshr_b32 s{sT1}, s2, 3"); a(f"s_and_b32 s{sT1}, s{sT1}, 31"); a(f"s_mul_i32 s{sT1}, s{sT1}, {share}")
    a(f"s_lshl_b32 s{sT2}, s{sI}, 13"); a(f"s_add_u32 s{sT1}, s{sT1}, s{sT2}")
    for p in range(0, npieces, 4): touch(a, srdn, vpat, sT1, p * 8192, dst)

def loader_stats_issue(a):
    a(f"s_lshl_b32 s{sT1}, s{sTT}, 12"); a(f"s_add_u32 s{sT1}, s{sT1}, s{sSTATS}")
    for q in range(4):
        a.vm(f"buffer_load_dwordx4 {vr(32+4*q,4)}, v{vL16}, s[{SRD_WS}:{SRD_WS+3}], s{sT1} offen offset:{1024*q} sc1", "ST")
def loader_stats_items(a, double_ln):
    I = lambda txt: (lambda: a(txt))
    s1 = [lambda: a.wait_vm("ST")] + [I(f"v_add_f32 v{32+e}, v{32+e}, v{40+e}") for e in range(8)]
    s2 = [I(f"v_add_f32 v{32+e}, v{32+e}, v{36+e}") for e in range(4)] + [I("v_add_f32 v32, v32, v34"), I("v_add_f32 v33, v33, v35"), I("v_add_f32 v32, v32, v33")]
    t0, t1, t2, t3, v = 48, 49, 50, 51, 32
    def f1():
        a(f"v_mov_b32 v{t0}, v{v}")
        a(f"v_cmp_gt_u32 s[{sEXEC}:{sEXEC+1}], 32, v{vLANE}")
        a.nop(1)
        a(f"v_permlane32_swap_b32 v{v}, v{t0}")
        a(f"v_mul_f32 v{v}, s{sC1}, v{v}"); a(f"v_mul_f32 v{t0}, s{sC1}, v{t0}")
        a(f"v_fma_f32 v{t0}, -v{v}, v{v}, v{t0}"); a(f"v_max_f32 v{t0}, 0, v{t0}"); a(f"v_add_f32 v{t1}, s{sC2}, v{t0}")
        a(f"v_rsq_f32 v{t1}, v{t1}")
        a.nop(1)
    def f2():
        if double_ln:
            a(f"v_mul_f32 v{t2}, v{t1}, v{t1}"); a(f"v_mul_f32 v{t2}, v{t2}, v{t0}"); a(f"v_add_f32 v{t2}, s{sC2}, v{t2}")
            a(f"v_rsq_f32 v{t2}, v{t2}")
            a.nop(1)
            a(f"v_mul_f32 v{t1}, v{t1}, v{t2}")
        a(f"v_cndmask_b32 v{t3}, v{t1}, v{v}, s[{sEXEC}:{sEXEC+1}]")
        a.ds(f"ds_write_b32 v{vSTW}, v{t3}", "stw")
    return {6: s1 + s2, 7: [f1, f2]}

def prep_signal(a):
    v0_, v1_, v2_ = 20, 21, 22
    a(f"s_cmp_lg_u32 s{sW}, 4"); a("s_cbranch_scc1 L_sig_skip0")
    a(f"s_getreg_b32 s{sT1}, hwreg(HW_REG_XCC_ID, 0, 3)")
    a(f"s_add_u32 s{sVAL}, s{sEP}, 1")
    a(f"s_lshl_b32 s{sT2}, s{sJ}, 5"); a(f"s_add_u32 s{sT2}, s{sT2}, s{sG}"); a(f"s_lshl_b32 s{sT2}, s{sT2}, 7"); a(f"s_add_u32 s{sT2}, s{sT2}, {WS_PREPF}")
    a(f"v_mov_b32 v{v0_}, s{sVAL}"); a(f"v_mov_b32 v{v0_+1}, s{sT1}"); a(f"v_mov_b32 v{v2_}, s{sT2}")
    a(f"s_mov_b64 s[{sEXEC}:{sEXEC+1}], exec"); a("s_mov_b64 exec, 1")
    a(f"buffer_store_dwordx2 v[{v0_}:{v0_+1}], v{v2_}, s[{SRD_WS}:{SRD_WS+3}], 0 offen sc1")
    a(f"s_mov_b64 exec, s[{sEXEC}:{sEXEC+1}]")
    a.label("L_sig_skip0")
def prep_wait(a):
    v2_ = 22
    a(f"s_cmp_lg_u32 s{sW}, 4"); a("s_cbranch_scc1 L_sig_skip")
    a(f"s_add_u32 s{sVAL}, s{sEP}, 1")
    a(f"v_and_b32 v{v2_}, 31, v{vLANE}"); a(f"s_lshl_b32 s{sT2}, s{sJ}, 5"); a(f"v_add_u32 v{v2_}, s{sT2}, v{v2_}")
    a(f"v_lshlrev_b32 v{v2_}, 7, v{v2_}"); a(f"v_add_u32 v{v2_}, {WS_PREPF}, v{v2_}")
    a(f"s_mov_b32 exec_hi, 0")
    poll_loop(a, "sig", v2_, 23)
    a("s_mov_b64 exec, -1")
    a.label("L_sig_skip")
    ts(a, 19)
    a.bar("prepgo")

def prep_signal2(a):
    a(f"s_cmp_lg_u32 s{sW}, 4"); a("s_cbranch_scc1 L_sig2_skip")
    a(f"s_add_u32 s{sVAL}, s{sEP}, 2")
    a(f"s_lshl_b32 s{sT2}, s{sJ}, 5"); a(f"s_add_u32 s{sT2}, s{sT2}, s{sG}"); a(f"s_lshl_b32 s{sT2}, s{sT2}, 7"); a(f"s_add_u32 s{sT2}, s{sT2}, {WS_PREPF}")
    a(f"v_mov_b32 v20, s{sVAL}"); a(f"v_mov_b32 v22, s{sT2}")
    a(f"s_mov_b64 s[{sEXEC}:{sEXEC+1}], exec"); a("s_mov_b64 exec, 1")
    a(f"buffer_store_dword v20, v22, s[{SRD_WS}:{SRD_WS+3}], 0 offen sc1")
    a(f"s_mov_b64 exec, s[{sEXEC}:{sEXEC+1}]")
    a.label("L_sig2_skip")
def _prep2_addr(a):
    a(f"v_and_b32 v26, 31, v{vLANE}"); a(f"s_lshl_b32 s{sT2}, s{sJ}, 5"); a(f"v_add_u32 v26, s{sT2}, v26")
    a(f"v_lshlrev_b32 v26, 7, v26"); a(f"v_add_u32 v26, {WS_PREPF}, v26")
def prep_check2_issue(a):
    _prep2_addr(a)
    a(f"s_mov_b32 exec_hi, 0")
    a.vm(f"buffer_load_dword v27, v26, s[{SRD_WS}:{SRD_WS+3}], 0 offen sc1", "s2")
    a("s_mov_b64 exec, -1")
def prep_check2(a):
    a.wait_vm("s2")
    a(f"s_add_u32 s{sVAL}, s{sEP}, 2")
    a(f"s_mov_b32 exec_hi, 0")
    a(f"v_subrev_u32 v27, s{sVAL}, v27")
    a(f"v_cmp_le_u32 vcc, 8, v27")
    a("s_cbranch_vccz L_s2_ok")
    poll_loop(a, "s2p", 26, 27)
    a.label("L_s2_ok")
    a("s_mov_b64 exec, -1")

cFB, cACC, cSEL, cAD = (64, 68, 72, 76), 80, 84, 88
def colsum_setup(a, csf):
    a(f"v_bfe_u32 v89, v{vLANE}, 4, 1"); a(f"v_and_b32 v90, 15, v{vLANE}")
    a(f"v_cmp_eq_u32 s[{sEXEC}:{sEXEC+1}], v89, v90")
    a(f"v_mov_b32 v91, 0x3f803f80"); a(f"v_mov_b32 v92, 0")
    a.nop(1)
    for q in range(4): a(f"v_cndmask_b32 v{cSEL+q}, v92, v91, s[{sEXEC}:{sEXEC+1}]")
    a(f"s_lshl_b32 s{sT1}, s{sI}, 7"); a(f"s_add_u32 s{sT1}, s{sT1}, {csf}")
    a(f"v_lshlrev_b32 v{cAD}, 2, v{vLANE}"); a(f"v_add_u32 v{cAD}, s{sT1}, v{cAD}")
def colsum_read(a, slot, st):
    li = LdsBase(vLI)
    for q in range(4):
        r, off = li.at(slot(2*st + (q >> 1)) + (q & 1) * 2048)
        a(f"ds_read_b128 {vr(cFB[q],4)}, v{r} offset:{off}")
def colsum_acc(a, st):
    a("s_waitcnt lgkmcnt(0)")
    first = st % 8 == 0
    for q in range(4):
        a(f"v_mfma_f32_16x16x32_bf16 {vr(cACC,4)}, {vr(cSEL,4)}, {vr(cFB[q],4)}, {'0' if (first and q == 0) else vr(cACC,4)}")
def colsum_flush(a, T):
    a.nop(8)
    a(f"s_mov_b64 exec, s[{sM16}:{sM16+1}]")
    a(f"ds_write_b32 v{cAD}, v{cACC} offset:{T*256}"); a(f"ds_write_b32 v{cAD}, v{cACC+1} offset:{T*256 + 64}")
    a("s_mov_b64 exec, -1")
def colsum_hooks(a, slot, st, ph):
    lab = f"L_{ph}_cs{st}_{len(a.L)}"
    a(f"s_cmp_ge_u32 s{sI}, 2"); a(f"s_cbranch_scc1 {lab}")
    if st >= 1:
        colsum_acc(a, st - 1)
        if (st - 1) % 8 == 7: colsum_flush(a, (st - 1) // 8)
    colsum_read(a, slot, st)
    if st == 23:
        colsum_acc(a, 23); colsum_flush(a, 2); a("s_waitcnt lgkmcnt(0)")
    a.label(lab)

def colsum4_setup(a):
    colsum_setup(a, CSF_Q)
    a(f"s_and_b32 s{sT1}, s{sI}, 1"); a(f"s_lshl_b32 s{sT1}, s{sT1}, 7")
    a(f"v_lshlrev_b32 v{cAD}, 2, v{vLANE}"); a(f"v_add_u32 v{cAD}, s{sT1}, v{cAD}")
    a(f"v_add_u32 v{cAD+1}, {STP}, v{cAD}"); a(f"v_add_u32 v{cAD}, {CSF_Q}, v{cAD}")
def colsum4_hooks(a, slot, st, ph):
    li = LdsBase(vLI)
    def rd(st_):
        for q in range(2):
            r, off = li.at(slot(2*st_ + q))
            a(f"ds_read_b128 {vr(cFB[q],4)}, v{r} offset:{off}")
    def acc(st_):
        a("s_waitcnt lgkmcnt(0)")
        for q in range(2):
            a(f"v_mfma_f32_16x16x32_bf16 {vr(cACC,4)}, {vr(cSEL,4)}, {vr(cFB[q],4)}, {'0' if (st_ % 8 == 0 and q == 0) else vr(cACC,4)}")
    def put(T):
        lab = f"L_{ph}_cp{T}"
        a.nop(8)
        a(f"s_cmp_lt_u32 s{sI}, 2"); a(f"s_cbranch_scc1 {lab}")
        a(f"s_mov_b64 exec, s[{sM16}:{sM16+1}]")
        a(f"ds_write_b32 v{cAD+1}, v{cACC}"); a(f"ds_write_b32 v{cAD+1}, v{cACC+1} offset:64")
        a("s_mov_b64 exec, -1")
        a.label(lab)
        a(f"v_mov_b32 v{cAD+2}, v{cACC}"); a(f"v_mov_b32 v{cAD+3}, v{cACC+1}")
    def get(T):
        lab = f"L_{ph}_cg{T}"
        a(f"s_cmp_ge_u32 s{sI}, 2"); a(f"s_cbranch_scc1 {lab}")
        a(f"s_mov_b64 exec, s[{sM16}:{sM16+1}]")
        a(f"ds_read_b32 v{cAD+4}, v{cAD+1}"); a(f"ds_read_b32 v{cAD+5}, v{cAD+1} offset:64")
        a("s_waitcnt lgkmcnt(0)")
        a(f"v_add_f32 v{cAD+2}, v{cAD+2}, v{cAD+4}"); a(f"v_add_f32 v{cAD+3}, v{cAD+3}, v{cAD+5}")
        a(f"ds_write_b32 v{cAD}, v{cAD+2} offset:{T*256}"); a(f"ds_write_b32 v{cAD}, v{cAD+3} offset:{T*256 + 64}")
        a("s_mov_b64 exec, -1")
        a.label(lab)
    if st >= 1:
        acc(st - 1)
        if (st - 1) % 8 == 7: put((st - 1) // 8)
    if st >= 9 and (st - 1) % 8 == 0: get((st - 9) // 8)
    rd(st)
    if st == 23:
        acc(23); put(2); a("s_waitcnt lgkmcnt(0)")
        a.bar(f"{ph}_cs")
        get(2); a("s_waitcnt lgkmcnt(0)")

LA = OPT.get('la', 6)
def gemm192_loader(a, ph, unit, slot, abase, double_ln, extra, colsum=None):
    if colsum is not None: colsum_setup(a, colsum)
    for m in range(2 * LA): a_pair(a, m, abase)
    nxt = 22
    extra = list(extra)
    items = loader_stats_items(a, double_ln)
    for st in range(24):
        need = []
        if st < 8: need += [("A", 2*st), ("A", 2*st + 1)]
        need += [("W", 2*st), ("W", 2*st + 1)]
        a.wait_vm(need)
        if st == 9 or (colsum is not None and st == 17): a.wait_lg0()
        a.bar(f"{ph}_B{st}")
        if st == 22 and ph.startswith("p1"): kv_flag_store(a, 4, 0, (KVP[1], KVP[2]), ph + "_kf")
        if OPT.get("ts3") == ph: ts(a, 36 + st)
        elif st in (0, 4, 8, 16) and not OPT.get("ts3"): ts(a, (20 if ph.startswith("p1") else 30) + {0: 0, 4: 5, 8: 1, 16: 2}[st])
        if colsum is not None and OPT.get("w2late", 1):
            if st == 8: prep_check3_issue(a)
            if st == 14: prep_check3(a)
        if colsum is not None: colsum_hooks(a, slot, st, ph)
        if st + LA < 8:
            a_pair(a, 2*(st + LA), abase); a_pair(a, 2*(st + LA) + 1, abase)
        elif st == 8 - LA:
            loader_stats_issue(a)
        elif nxt < 48:
            unit(a, nxt); unit(a, nxt + 1); nxt += 2
        else:
            for _ in range(2):
                if extra: extra.pop(0)()
        for f in items.get(st, []): f()
    a.bar(f"{ph}_end")
    while extra: extra.pop(0)()

def p1_loader(a, v1):
    ph = "p1a" if v1 else "p1b"
    wo = [(lambda m=m: wo_unit(a, m)) for m in range(16)]
    if v1:
        if OPT.get("cs4", 0): colsum4_setup(a)
        else: colsum_setup(a, CSF_Q)
        pre = OPT.get("p1pre", 12)
        for u in range(pre): wq_unit(a, u)
        nxt = pre
        for st in range(24):
            a.wait_vm([("W", 2*st), ("W", 2*st + 1)])
            if st in (9, 17) or (OPT.get("cs4", 0) and st in (10, 18)): a.wait_lg0()
            a.bar(f"{ph}_B{st}")
            if st == 22: kv_flag_store(a, 4, 0, (KVP[1], KVP[2]), ph + "_kf")
            w1st = OPT.get("w1st")
            if w1st is not None and st == w1st: w1_mid_store(a)
            if st == (1 if w1st is None else w1st + 6): prep_signal2(a)
            if st == 8: die_check_issue(a)
            if st == (12 if w1st is None else 13): prep_check2_issue(a)
            if st == 13: die_check(a)
            if st == 17: prep_check2(a)
            if OPT.get("ts3") == ph: ts(a, 36 + st)
            if OPT.get("cs4", 0): colsum4_hooks(a, slot_p1, st, ph)
            else: colsum_hooks(a, slot_p1, st, ph)
            if nxt < 48 and (nxt < 22 or st >= (nxt + 1 - 22) // 2 + 2):
                wq_unit(a, nxt); wq_unit(a, nxt + 1); nxt += 2
            elif st >= 18:
                for _ in range(3):
                    if wo: wo.pop(0)()
        a.bar(f"{ph}_end")
        while wo: wo.pop(0)()
    else:
        gemm192_loader(a, ph, wq_unit, slot_p1, A_P1, False, wo)
    kv_wait_k(a, ph)
    a.bar(f"{ph}_pubkv")

def _vf(a):
    kv_flag_store(a, 0, 1, (PV[1], PV[2]), "vf")

def read_mode(a):
    lab = a.name + "_mode"
    a(f"s_cmp_lg_u32 s{sPAIR}, 0")
    a(f"s_cbranch_scc1 {lab}")
    a(f"v_mov_b32 v{aT}, {MODEW}")
    a(f"ds_read_b32 v{aT}, v{aT}")
    a("s_waitcnt lgkmcnt(0)")
    a(f"v_readfirstlane_b32 s{sFAST}, v{aT}")
    a.label(lab)

def ts_real(a, idx):
    if not OPT["ts"]: return
    a.wait_lg0()
    a(f"s_memrealtime s[{sTS}:{sTS+1}]")
    a("s_waitcnt lgkmcnt(0)")
    a(f"v_writelane_b32 v{vTS}, s{sTS}, {idx}")

def span_stamp(a, which):
    if not OPT.get("span"): return
    a(f"s_memrealtime s[{sTS}:{sTS+1}]")
    a("s_waitcnt lgkmcnt(0)")
    a(f"s_cmp_lg_u32 s{sW}, 0"); a(f"s_cbranch_scc1 L_span{which}")
    a(f"s_lshl_b32 s{sT1}, s2, 3"); a(f"s_add_u32 s{sT1}, s{sT1}, {WS_TS + 4*which}")
    a(f"v_mov_b32 v80, s{sTS}"); a(f"v_mov_b32 v81, s{sT1}")
    a("s_mov_b64 exec, 1")
    a(f"buffer_store_dword v80, v81, s[{SRD_WS}:{SRD_WS+3}], 0 offen")
    a("s_mov_b64 exec, -1")
    a.label(f"L_span{which}")

def dump_ts(a):
    if not OPT["ts"]: return
    a(f"s_lshl_b32 s{sT1}, s2, 3"); a(f"s_add_u32 s{sT1}, s{sT1}, s{sW}"); a(f"s_lshl_b32 s{sT1}, s{sT1}, 8"); a(f"s_add_u32 s{sT1}, s{sT1}, {WS_TS}")
    a(f"v_lshlrev_b32 v{aT}, 2, v{vLANE}")
    a(f"buffer_store_dword v{vTS}, v{aT}, s[{SRD_WS}:{SRD_WS+3}], s{sT1} offen")

def stop_here(a, name):
    if OPT["stop"] == name:
        dump_ts(a)
        a("s_waitcnt vmcnt(0) lgkmcnt(0)")
        a("s_endpgm")

def build():
    top = Stream("t")
    common_init(top)
    c = Stream("c")
    span_stamp(c, 0)
    if OPT.get("exit0"):
        span_stamp(c, 1) if False else None
        c("s_waitcnt vmcnt(0)"); c("s_endpgm")
    ts(c, 0)
    ts_real(c, 62)
    compute_prologue(c)
    p1_compute(c, True)
    c.label("L_c_loop")
    ts(c, 3)
    if not OPT.get("vearly", 1): _vf(c)
    read_mode(c)
    attention_setup(c)
    c.bar("kready")
    ts(c, 4)
    c("s_branch L_attn")
    c.label("L_c_postattn")
    ts(c, 5)
    publish_pre(c, 1)
    c.bar("pubo")
    publish_local(c, "o", 1, True)
    c.bar("goo")
    stop_here(c, "p2")
    ts(c, 6)
    p3_compute(c)
    stop_here(c, "p3")
    ts(c, 10)
    p4_compute(c)
    stop_here(c, "p4")
    ts(c, 12)
    p5_compute_main(c)
    ts(c, 14)
    c(f"s_cmp_lg_u32 s{sPAIR}, 0")
    c("s_cbranch_scc1 L_c_final")
    st = c.state()
    red_epilogue(c, "p5a", RB_P5, True, False, False)
    publish_pre(c, 4)
    c.wait_all0()
    c.bar("p5a_pub")
    publish_local(c, "x2", 4, True)
    c.bar("p5a_go")
    stop_here(c, "p5")
    ts(c, 16)
    c(f"s_add_u32 s{sKVw}, s{sKVw}, {1 << 22}")
    c(f"s_mov_b32 s{sPAIRN}, 1")
    p1_compute(c, False)
    c(f"s_mov_b32 s{sPAIR}, 1")
    if OPT["ts"]:
        dump_ts(c); c("s_waitcnt vmcnt(0)"); c(f"v_mov_b32 v{vTS}, 0"); c(f"s_add_u32 s2, s2, 256")
    c("s_branch L_c_loop")
    c.label("L_c_final")
    c.set_state(st)
    red_epilogue(c, "p5b", RB_P5, True, True, False)
    c(f"s_or_b32 s{sT1}, s{sG}, s{sJ}"); c(f"s_or_b32 s{sT1}, s{sT1}, s{sW}")
    c(f"s_cmp_lg_u32 s{sT1}, 0"); c("s_cbranch_scc1 L_c_noep")
    c(f"v_mov_b32 v80, s{sEP}"); c(f"v_mov_b32 v81, {WS_EPOCH}")
    c(f"s_mov_b64 s[{sEXEC}:{sEXEC+1}], exec"); c("s_mov_b64 exec, 1")
    c(f"buffer_store_dword v80, v81, s[{SRD_WS}:{SRD_WS+3}], 0 offen sc1")
    c(f"s_mov_b64 exec, s[{sEXEC}:{sEXEC+1}]")
    c.label("L_c_noep")
    ts(c, 17)
    ts_real(c, 63)
    dump_ts(c)
    if OPT.get("span"): c("s_waitcnt vmcnt(0)")
    span_stamp(c, 1)
    c("s_waitcnt vmcnt(0)")
    c("s_endpgm")
    l = Stream("l")
    vT128 = 10
    l.label("L_loader")
    if OPT.get("exit0"): l("s_endpgm")
    ts(l, 0)
    if OPT.get("lprio", 1): l(f"s_setprio {OPT.get('lprio', 1)}")
    loader_prep(l)
    if OPT.get("early2", 1): prep2_fetch(l)
    loader_prologue(l)
    l(f"v_lshlrev_b32 v{vT128}, 7, v{vLANE}")
    if OPT.get("touch", 1) and OPT.get("cpf", 3) < 2:
        l(f"s_cmp_lg_u32 s{sW}, 7"); l("s_cbranch_scc1 L_l_t3")
        l("s_getpc_b64 s[94:95]")
        l.label("L_l_pc")
        l(f"s_sub_u32 s94, s94, L_l_pc-{NAME}_kernel"); l("s_subb_u32 s95, s95, 0")
        l(f"s_lshr_b32 s{sT1}, s2, 3"); l(f"s_lshl_b32 s{sT2}, s{sT1}, 11"); l(f"v_add_u32 v25, s{sT2}, v{vT128}")
        l(f"s_mov_b32 s{sT2}, L_exit-{NAME}_kernel"); l(f"v_min_u32 v25, s{sT2}, v25")
        l(f"s_mov_b64 exec, s[{sM16}:{sM16+1}]")
        l(f"s_mov_b32 m0, {DUMMY}"); l("s_nop 0")
        l(f"global_load_lds_dword v25, s[94:95]")
        l("s_mov_b64 exec, -1")
        l.label("L_l_t3")
    l(f"v_mov_b32 v20, {CNTW}"); l("v_mov_b32 v21, 0")
    l("ds_write_b32 v20, v21")
    if OPT.get("early2", 1):
        l(f"s_cmp_eq_u32 s{sW}, 4"); l("s_cbranch_scc1 L_l_w40")
        if OPT.get("wo2", 1):
            l(f"s_cmp_eq_u32 s{sW}, 7"); l("s_cbranch_scc1 L_l_w42")
        l("s_waitcnt vmcnt(4)")
        l.label("L_l_w42")
        l("s_waitcnt lgkmcnt(0)"); l("s_branch L_l_w41")
        l.label("L_l_w40")
        l("s_waitcnt vmcnt(0) lgkmcnt(0)")
        l.label("L_l_w41")
        l.vmq = []; l.lg = []
    else: l.wait_all0()
    l(f"s_add_u32 s{sEP}, s{sEP}, 16")
    ts(l, 13)
    l.bar("prep")
    ts(l, 15)
    prep_signal(l)
    if not OPT.get("early2", 1): prep2_fetch(l)
    prep2_emit(l)
    prep_wait(l)
    ts(l, 18)
    p1_loader(l, True)
    l.label("L_l_loop")
    ts(l, 3)
    kv_dma(l, 0)
    read_mode(l)
    attention_setup(l)
    kv_wait_v(l)
    l.wait_vm0()
    l.bar("kready")
    kv_dma(l, 1)
    if OPT.get("w2late", 1): w2_late_store(l)
    if OPT.get("ww1", 1): warm_w1(l)
    warm_exchange(l)
    if OPT.get("w2reg", 0):
        for q in range(11):
            l(f"s_add_u32 s{sT0}, s{sW2b}, {(32 + q) * 4096}")
            l(f"buffer_load_dwordx4 {vr(212 + 4*q, 4)}, v{vL16}, s[{SRD_WS}:{SRD_WS+3}], s{sT0} offen sc1")
    l.vmq = []
    ts(l, 4)
    TOUCH = OPT.get("touch", 1)
    if OPT.get("lprio", 1) and not OPT.get("aprio", 0): l("s_setprio 0")
    l("s_branch L_attn")
    l.label("L_l_postattn")
    l.vmq = []; l.lg = []
    if OPT.get("lprio", 1): l(f"s_setprio {OPT.get('lprio', 1)}")
    ts(l, 5)
    l.bar("pubo")
    if OPT.get("w2late", 1): prep_signal3(l)
    o1 = OPT.get("o1", 10); o2 = o1 + OPT.get("o2", 6); o3 = o2 + OPT.get("o3", 0)
    for u in range(o1): w1_unit(l, u)
    l.bar("goo")
    stop_here(l, "p2")
    ts(l, 6)
    l.bar("p3_b")
    assert o3 <= 18
    for u in range(o1, o2): w1_unit(l, u)
    l.bar("p3_red2")
    for u in range(o2, o3): w1_unit(l, u)
    l.bar("p3_pub")
    for u in range(o3, 22): w1_unit(l, u)
    l.bar("p3_go")
    stop_here(l, "p3")
    ts(l, 10)
    l(f"s_cmp_lg_u32 s{sPAIR}, 0")
    l("s_cbranch_scc1 L_l_p4b")
    st = l.state()
    ends = []
    nb0 = len(l.bars)
    for v1 in (True, False):
        if not v1:
            l.label("L_l_p4b"); l.set_state(st)
            logged = l.bars[nb0:]; l.bars = l.bars[:nb0]
        gemm192_loader(l, "p4", w1_unit, slot_p4, A_P4, True, [(lambda m=m: w2_unit(l, m)) for m in range(16)], colsum=CSF_1 if v1 else None)
        h1 = 16 + OPT.get("h1", 8); h2 = h1 + OPT.get("h2", 8)
        for m in range(16, h1): w2_unit(l, m)
        if OPT.get("w2reg", 0):
            for m in range(32, 38): w2_from_regs(l, m)
        l.bar("p4_pubh")
        for m in range(h1, h2): w2_unit(l, m)
        l.bar("p4_goh")
        ends.append(l.state())
        if v1: l("s_branch L_l_p5")
    assert ends[0] == ends[1] and l.bars[nb0:] == logged
    l.label("L_l_p5")
    stop_here(l, "p4")
    ts(l, 12)
    l.wait_vm([("W2", m) for m in range(4)])
    l.bar("p5_a")
    w2n = 16 + OPT.get("h1", 8) + OPT.get("h2", 8)
    cond = []
    late5 = list(range(38, 43))
    early = OPT.get("wqe", 0)
    for st5 in range(1, 11):
        need = [("W2", m) for m in range(4*st5, min(4*st5 + 4, 43))]
        l.wait_vm(need)
        if OPT.get("w2reg", 0) and st5 in (8, 9): l.wait_lg0()
        l.bar(f"p5_B{st5}")
        if OPT.get("w2reg", 0):
            if st5 == 4:
                for m in range(38, 43): w2_from_regs(l, m)
        else:
            k_ = 0
            while w2n < 38 and k_ < 3:
                w2_unit(l, w2n); w2n += 1; k_ += 1
            if w2n >= 38 and st5 >= 4 and late5:
                for _ in range(min(3 - k_, len(late5))): w2_unit(l, late5.pop(0))
        if st5 >= 9 - early // 2 and st5 <= 8 and len(cond) < early:
            stt = l.state()
            l(f"s_cmp_lg_u32 s{sPAIR}, 0"); l(f"s_cbranch_scc1 L_l_wqe{st5}")
            for _ in range(2):
                wq_unit(l, len(cond)); cond.append(len(cond))
            l.label(f"L_l_wqe{st5}")
            l.set_state(stt)
    ts(l, 14)
    l(f"s_cmp_lg_u32 s{sPAIR}, 0")
    l("s_cbranch_scc1 L_l_final")
    l.vmq = l.vmq + [("W", u) for u in cond]
    n0 = len(cond); n1 = n0 + OPT.get("wq1", 6); n2 = n1 + OPT.get("wq2", 6)
    for u in range(n0, n1): wq_unit(l, u)
    l.bar("p5a_red2")
    for u in range(n1, n2): wq_unit(l, u)
    l.bar("p5a_pub")
    for u in range(n2, 22): wq_unit(l, u)
    l.bar("p5a_go")
    stop_here(l, "p5")
    ts(l, 16)
    l(f"s_mov_b32 s{sPAIRN}, 1")
    p1_loader(l, False)
    l(f"s_mov_b32 s{sPAIR}, 1")
    if OPT["ts"]:
        dump_ts(l); l("s_waitcnt vmcnt(0)"); l(f"v_mov_b32 v{vTS}, 0"); l(f"s_add_u32 s2, s2, 256")
    l("s_branch L_l_loop")
    l.label("L_l_final")
    l.bar("p5b_red2")
    dump_ts(l)
    l("s_waitcnt vmcnt(0)")
    l("s_endpgm")
    at = Stream("a")
    at.label("L_attn")
    attention(at)
    at(f"s_cmp_ge_u32 s{sW}, 4")
    at("s_cbranch_scc1 L_l_postattn")
    at("s_branch L_c_postattn")
    assert c.bars == l.bars, "\n".join(f"{x} | {y}" for x, y in zip(c.bars, l.bars)) + f"\n{len(c.bars)} {len(l.bars)}"
    al = lambda k: [f".p2align {OPT[k]}"] if OPT.get(k) else []
    sh = lambda k: ["s_nop 0"] * OPT.get(k, 0)
    lines = top.L + sh("shc") + c.L + al("all") + sh("shl0") + l.L + al("ala") + sh("sha") + at.L + ["L_exit:", "s_endpgm"]
    return lines

HEAD = f"""; Fused two-pair transformer block (sliding-window attention + GELU MLP), one persistent launch.
; @launch grid=(256,1,1) block=(512,1,1) lds={LDS_TOTAL}
.amdgcn_target "amdgcn-amd-amdhsa--gfx950"
.text
.globl {NAME}_kernel
.p2align 8
.type {NAME}_kernel,@function
{NAME}_kernel:
"""
TAIL = f"""
.section .rodata,"a"
.p2align 6
.amdhsa_kernel {NAME}_kernel
  .amdhsa_next_free_vgpr 256
  .amdhsa_next_free_sgpr 102
  .amdhsa_accum_offset 256
  .amdhsa_group_segment_fixed_size 0
  .amdhsa_kernarg_size 88
  .amdhsa_user_sgpr_count 2
  .amdhsa_user_sgpr_kernarg_segment_ptr 1
  .amdhsa_system_sgpr_workgroup_id_x 1
.end_amdhsa_kernel
"""
if __name__ == "__main__":
    lines = build()
    errs = lint(lines)
    for e in errs[:40]: print("LINT", e, file=sys.stderr)
    out = OPT.get("out", f"cdna_kernels/{NAME}.s")
    open(out, "w").write(HEAD + "\n".join("    " + x if not x.endswith(":") else x for x in lines) + TAIL)
    print(f"wrote {out}: {len(lines)} lines, {len(errs)} lint findings", file=sys.stderr)
```

```python
import sys, copy
from asmlib import Stream, lint

NAME = "interleave_layers__sliding_block__mixer_channel_mlp__prompt"
OPT = dict(ts=False, stop=None, spin=400000)
for a in sys.argv[1:]:
    if a.startswith("--"):
        k, _, v = a[2:].partition("=")
        OPT[k] = (int(v) if v.lstrip("-").isdigit() else v) if v else True

K = 1024
LDS_TOTAL = 160 * K
MISC = 152 * K
ST_MEAN = MISC
ST_RSTD = MISC + 256
CS_Q = MISC + 512
CS_1 = MISC + 2048
B1F = MISC + 3584
B2F = MISC + 4352
STP = MISC + 4608
CSF_Q = MISC + 5632
CSF_1 = MISC + 6400
MODEW = MISC + 7168
CNTW = MISC + 7172
DUMMY = MISC + 7424
KB, VB, QB, WOB = 0, 40 * K, 80 * K, 88 * K
def slot_p1(u):
    if u < 22: return 64 * K + 4 * K * u
    if u < 32: return 64 * K + 4 * K * (u - 22)
    if u < 40: return 4 * K * (u - 32)
    if u < 46: return 40 * K + 4 * K * (u - 40)
    return 64 * K + 4 * K * (u - 46)
A_P1 = 0
def slot_p4(u):
    if u < 22: return 4 * K * u
    if u < 32: return 4 * K * (u - 22)
    return 88 * K + 4 * K * (u - 32)
A_P4 = 88 * K
def slot_p5(m):
    if m < 12: return 40 * K + 4 * K * m
    if m < 22: return 4 * K * (m - 12)
    if m < 38: return 88 * K + 4 * K * (m - 22)
    return 40 * K + 4 * K * (m - 38)
RB_P3 = 72 * K
RB_P5 = 0
WS_FLAGL = 0x0
WS_FLAGR = 0x2000
WS_STATS = 0x10000
WS_XA = 0x100000
WS_HO = 0x300000
HO_STRIDE = 0x2C000
H_TT = 86 * 1024
WS_KV = 0x900000
WS_TS = 0x1200000
WS_WQP = 0x1400000
WS_W1P = 0x1600000
WS_WOP = 0x1800000
WS_W2P = 0x1900000
J_WQ, J_WO, J_W2 = 0x30000, 0x10000, 0x2C000
PREP = 120 * K
WS_PREPF = 0x1C00000
WS_EPOCH = 0x1F00000
WS_SIZE = 0x2000000
SRD_X, SRD_WQ, SRD_WO, SRD_W1, SRD_W2, SRD_WS, SRD_OUT, SRD_DBG = 4, 8, 12, 16, 20, 24, 28, 32
sG, sJ, sW, sI, sPAIR, sFAST, sTT, sCP = 36, 37, 38, 39, 40, 41, 42, 43
SRD_TMP = 44
sI1K = 48
sT0, sT1, sT2, sT3 = 49, 50, 51, 52
sXA = 53
sHO = 54
sWQb, sW1b, sWOb = 55, 56, 57
sW2b = 100
sKVw = 58
sSTATS = 59
sSPIN = 60
sHST = (61, 62, 63, 64, 65, 66)
sX0 = 63
sKVr = 62
sVMASK = 68
sEXEC = 70
sTMIN = 72
sO = 73
sVAL = 74
sOUTb = 75
sPAIRN = 85
sEP = 87
sTS = 76
sM16 = 78
sM0_32 = 80
sC1, sC2, sC3 = 82, 83, 84
sKPTR = 86
vLANE, vL16 = 0, 1
vTRA = (2, 3, 4)
vTRK = (5, 6, 7)
vTRS = (8, 9, 10)
vAR = 11
vCSA = 12
vTOK = 13
vSTB = 14
vTS = 15
vXR = 16
vACC = (32, 48)
vWF = 64
vE = 88
vA = 128
vPQ, vP1, vPO, vX0, vPOLL, vFLAG, vSTA, vSTW = 2, 3, 4, 5, 6, 7, 8, 9
vLI = (11, 12, 13)

EPS = 1e-5
import struct, math
def f2u(x): return struct.unpack("<I", struct.pack("<f", x))[0]
QSCALE = math.log2(math.e) / 4.0
GC0 = -2.0 * math.sqrt(2.0 / math.pi) * math.log2(math.e)
GC1 = GC0 * 0.044715
NEGBIG = f2u(-1.0e30)

def ts(a, idx):
    if not OPT["ts"]: return
    a.wait_lg0()
    a(f"{'s_memrealtime' if OPT.get('rt') else 's_memtime'} s[{sTS}:{sTS+1}]")
    a("s_waitcnt lgkmcnt(0)")
    a(f"v_writelane_b32 v{vTS}, s{sTS}, {idx}")

def srd(a, d, ptr, size):
    a(f"s_mov_b32 s{d}, s{ptr}")
    a(f"s_and_b32 s{d+1}, s{ptr+1}, 0xffff")
    a(f"s_mov_b32 s{d+2}, {size}")
    a(f"s_mov_b32 s{d+3}, 0x20000")

def vr(b, n): return f"v[{b}:{b+n-1}]"

class LdsBase:
    def __init__(self, regs): self.regs = regs
    def at(self, addr):
        return self.regs[addr >> 16], addr & 0xffff

def dma(a, srdn, vpat, sbase, soff, lds, tag, flags=""):
    a(f"s_add_u32 m0, s{sI1K}, {lds}")
    a(f"s_add_u32 s{sT0}, s{sbase}, {soff}")
    a.vm(f"buffer_load_dwordx4 v{vpat}, s[{srdn}:{srdn+3}], s{sT0} offen {flags} lds".replace("  ", " "), tag)

def dual_store(a, kind, data, vaddr, srdn, soff, extra=""):
    lab = a.name + f"_ds{len(a.L)}"
    a(f"s_cmp_eq_u32 s{sFAST}, 0")
    a(f"s_cbranch_scc1 {lab}_s")
    a(f"{kind} {data}, v{vaddr}, s[{srdn}:{srdn+3}], {soff} offen {extra} nt".replace("  ", " ").rstrip())
    a(f"s_branch {lab}_e")
    a.label(f"{lab}_s")
    a.vm(f"{kind} {data}, v{vaddr}, s[{srdn}:{srdn+3}], {soff} offen {extra} sc1".replace("  ", " "), "st")
    a.label(f"{lab}_e")

def common_init(a):
    if OPT.get("exit1") == 1: a("s_endpgm")
    a("s_cmp_ge_u32 s2, 256")
    a("s_cbranch_scc1 L_exit")
    if OPT.get("perm"):
        a("s_and_b32 s3, s2, 7"); a("s_lshl_b32 s3, s3, 3"); a("s_lshr_b32 s4, s2, 3"); a("s_and_b32 s4, s4, 7"); a("s_or_b32 s3, s3, s4")
        if OPT["perm"] == 2: a("s_xor_b32 s3, s3, 5")
        a("s_and_b32 s2, s2, 0xc0"); a("s_or_b32 s2, s2, s3")
    a(f"s_load_dwordx16 s[{64}:{79}], s[0:1], 0")
    if OPT.get("cpf", 3) == 3:
        a(f"s_getpc_b64 s[94:95]")
        a.label("L_pf_pc3")
        a(f"s_mov_b32 m0, {DUMMY}")
        a(f"v_lshlrev_b32 v2, 7, v0")
        a(f"v_min_u32 v2, L_exit-L_pf_pc3, v2")
        a(f"global_load_lds_dword v2, s[94:95]")
    a(f"s_load_dwordx4 s[{88}:{91}], s[0:1], 64")
    a(f"s_load_dwordx2 s[{92}:{93}], s[0:1], 80")
    a(f"v_lshrrev_b32 v1, 6, v0")
    a(f"v_and_b32 v{vLANE}, 63, v0")
    a(f"s_and_b32 s{sT0}, s2, 7")
    a(f"v_readfirstlane_b32 s{sW}, v1")
    if OPT.get("cpf", 3) in (1, 2):
        a(f"s_getpc_b64 s[94:95]")
        a.label("L_pf_pc")
        a(f"v_lshlrev_b32 v2, 7, v{vLANE}")
        a(f"s_cmp_lt_u32 s{sW}, 6"); a("s_cbranch_scc1 L_pf_no")
        a(f"s_cmp_eq_u32 s{sW}, 6"); a(f"s_cselect_b32 s{sT1}, 0, L_loader-L_pf_pc")
        a(f"s_add_u32 s94, s94, s{sT1}"); a("s_addc_u32 s95, s95, 0")
        a("global_load_dword v255, v2, s[94:95]")
        a.label("L_pf_no")
        if OPT.get("cpf", 3) == 2:
            a(f"s_cmp_lg_u32 s{sW}, 5"); a("s_cbranch_scc1 L_pf_no2")
            a(f"s_lshr_b32 s{sT1}, s2, 3"); a(f"s_lshl_b32 s{sT1}, s{sT1}, 11"); a(f"v_add_u32 v2, s{sT1}, v2")
            a(f"s_mov_b32 s{sT1}, L_exit-L_pf_pc"); a(f"v_min_u32 v2, s{sT1}, v2")
            a("s_mov_b64 exec, 0xffff")
            a("global_load_dword v255, v2, s[94:95]")
            a("s_mov_b64 exec, -1")
            a.label("L_pf_no2")
    a(f"s_lshr_b32 s{sT1}, s2, 3")
    a(f"s_lshr_b32 s{sT2}, s{sT1}, 3")
    a(f"s_lshl_b32 s{sT0}, s{sT0}, 2")
    a(f"s_add_u32 s{sG}, s{sT0}, s{sT2}")
    a(f"s_and_b32 s{sJ}, s{sT1}, 7")
    a(f"s_and_b32 s{sI}, s{sW}, 3")
    a(f"s_lshl_b32 s{sI1K}, s{sI}, 10")
    a(f"s_mov_b32 s{sPAIR}, 0"); a(f"s_mov_b32 s{sPAIRN}, 0")
    a(f"s_mov_b32 s{sFAST}, 0")
    a(f"v_lshlrev_b32 v{vL16}, 4, v{vLANE}")
    a(f"v_mov_b32 v{vTS}, 0")
    a("s_waitcnt lgkmcnt(0)")
    if OPT.get("exit1") == 2: a("s_endpgm")
    srd(a, SRD_X, 64, 2048 * 1024)
    srd(a, SRD_WQ, 66, 512 * 3072)
    srd(a, SRD_WO, 68, 512 * 1024)
    srd(a, SRD_W1, 72, 512 * 2752)
    srd(a, SRD_W2, 76, 1376 * 1024)
    if OPT.get("wsoff", 0):
        a(f"s_add_u32 s92, s92, {OPT['wsoff'] << 20}"); a("s_addc_u32 s93, s93, 0")
    srd(a, SRD_WS, 92, WS_SIZE)
    srd(a, SRD_OUT, 88, 2048 * 1024)
    srd(a, SRD_DBG, 90, 256)
    a(f"s_mov_b32 s{sT3}, {WS_EPOCH}")
    a(f"s_buffer_load_dword s{sEP}, s[{SRD_WS}:{SRD_WS+3}], s{sT3}")
    if OPT.get("tlb", 0):
        a(f"s_cmp_lg_u32 s{sW}, {OPT.get('tlbw', 3)}"); a("s_cbranch_scc1 L_tlb_no")
        for k in range(15):
            a(f"s_mov_b32 s{sT3}, {k << 21}")
            a(f"s_buffer_load_dword s{86}, s[{SRD_WS}:{SRD_WS+3}], s{sT3}")
        a(f"s_buffer_load_dword s86, s[{SRD_OUT}:{SRD_OUT+3}], 0")
        a(f"s_buffer_load_dword s86, s[{SRD_W1}:{SRD_W1+3}], 0")
        a(f"s_buffer_load_dword s86, s[{SRD_W2}:{SRD_W2+3}], 0")
        a.label("L_tlb_no")
    a("s_mov_b32 s94, s74"); a("s_mov_b32 s95, s75"); a("s_mov_b32 s96, s78"); a("s_mov_b32 s97, s79")
    a(f"s_mul_i32 s98, s{sJ}, 10"); a(f"s_add_u32 s98, s98, 6"); a(f"s_mul_i32 s99, s{sJ}, 12")
    a(f"s_cmp_lt_u32 s{sJ}, 3")
    a(f"s_cselect_b32 s98, s99, s98")
    a(f"s_cselect_b32 s99, 12, 10")
    a(f"s_mov_b32 s{sVMASK}, 0x0000ffff"); a(f"s_mov_b32 s{sVMASK+1}, 0x0000ffff")
    a(f"s_mov_b64 s[{sM16}:{sM16+1}], 0xffff")
    a(f"s_mov_b32 s{sM0_32}, 1"); a(f"s_mov_b32 s{sM0_32+1}, 1")
    a(f"s_lshl_b32 s{sSTATS}, s{sG}, 13"); a(f"s_add_u32 s{sSTATS}, s{sSTATS}, {WS_STATS}")
    if OPT.get("exit1") == 3:
        a("s_waitcnt lgkmcnt(0)"); a("s_endpgm")
    a(f"s_cmp_ge_u32 s{sW}, 4")
    a("s_cbranch_scc1 L_loader")

def tr_addr(a, dst, ct_expr_sgpr, natural_second=None, tmp=(vE, vE+1, vE+2, vE+3)):
    t0, t1, t2, t3 = tmp
    def one(d, kexpr):
        kexpr(t0)
        a(f"v_lshrrev_b32 v{t1}, 1, v{t0}"); a(f"v_and_b32 v{t1}, 3, v{t1}")
        a(f"v_and_b32 v{t2}, 1, v{t1}"); a(f"v_lshlrev_b32 v{t2}, 1, v{t2}"); a(f"v_lshrrev_b32 v{t1}, 1, v{t1}")
        a(f"v_or_b32 v{t1}, v{t1}, v{t2}")
        a(f"v_lshrrev_b32 v{t2}, 4, v{vLANE}"); a(f"v_and_b32 v{t2}, 1, v{t2}")
        a(f"s_lshl_b32 s{sT3}, s{ct_expr_sgpr}, 1")
        a(f"v_add_u32 v{t2}, s{sT3}, v{t2}")
        a(f"v_xor_b32 v{t1}, v{t1}, v{t2}"); a(f"v_lshlrev_b32 v{t1}, 5, v{t1}")
        a(f"v_lshlrev_b32 v{t0}, 7, v{t0}")
        a(f"v_and_b32 v{t2}, 3, v{vLANE}"); a(f"v_lshlrev_b32 v{t2}, 3, v{t2}")
        a(f"v_add3_u32 v{d}, v{t0}, v{t1}, v{t2}")
    def kperm(t):
        a(f"v_lshrrev_b32 v{t}, 5, v{vLANE}"); a(f"v_lshlrev_b32 v{t}, 2, v{t}")
        a(f"v_bfe_u32 v{t3}, v{vLANE}, 2, 2"); a(f"v_add_u32 v{t}, v{t}, v{t3}")
    def knat(off):
        def f(t):
            a(f"v_lshrrev_b32 v{t}, 5, v{vLANE}"); a(f"v_lshlrev_b32 v{t}, 3, v{t}")
            a(f"v_bfe_u32 v{t3}, v{vLANE}, 2, 2"); a(f"v_add_u32 v{t}, v{t}, v{t3}")
            if off: a(f"v_add_u32 v{t}, {off}, v{t}")
        return f
    if natural_second is None: one(dst, kperm)
    else:
        one(dst, knat(0)); one(natural_second, knat(4))

def three_bases(a, regs):
    a(f"v_add_u32 v{regs[1]}, 0x10000, v{regs[0]}")
    a(f"v_add_u32 v{regs[2]}, 0x20000, v{regs[0]}")

vNA = vTRA
vNB = (112, 113, 115)
vSEL = vE + 28
vCSACC = vE + 32

def compute_prologue(a):
    a(f"s_lshr_b32 s{sTT}, s{sW}, 1")
    a(f"s_and_b32 s{sCP}, s{sW}, 1")
    if OPT.get("xtouch", 1):
        a(f"s_cmp_lg_u32 s{sW}, 0"); a("s_cbranch_scc1 L_c_xt")
        a(f"v_lshlrev_b32 v{vE}, 7, v{vLANE}"); a(f"s_lshl_b32 s{sT1}, s{sG}, 16"); a(f"s_lshl_b32 s{sT2}, s{sJ}, 13"); a(f"s_add_u32 s{sT1}, s{sT1}, s{sT2}")
        touch(a, SRD_X, vE, sT1, 0)
        a.label("L_c_xt")
        a.vmq = []
    t = vE
    a(f"s_lshl_b32 s{sT0}, s{sG}, 16"); a(f"s_lshl_b32 s{sT1}, s{sTT}, 15"); a(f"s_add_u32 s{sT0}, s{sT0}, s{sT1}")
    a(f"s_lshl_b32 s{sT1}, s{sJ}, 7"); a(f"s_add_u32 s{sT0}, s{sT0}, s{sT1}"); a(f"s_lshl_b32 s{sT1}, s{sCP}, 6"); a(f"s_add_u32 s{sOUTb}, s{sT0}, s{sT1}")
    a(f"s_cmp_lt_u32 s{sW}, 2")
    a("s_cbranch_scc1 L_c_nob")
    a(f"s_cmp_eq_u32 s{sW}, 2")
    a(f"s_cselect_b32 s{sT0}, s94, s96"); a(f"s_cselect_b32 s{sT1}, s95, s97")
    a(f"s_mov_b32 s{SRD_TMP}, s{sT0}"); a(f"s_and_b32 s{SRD_TMP+1}, s{sT1}, 0xffff")
    a(f"s_movk_i32 s{sT2}, 1024"); a(f"s_cmp_eq_u32 s{sW}, 2"); a(f"s_cselect_b32 s{SRD_TMP+2}, 2752, s{sT2}"); a(f"s_mov_b32 s{SRD_TMP+3}, 0x20000")
    a(f"s_cmp_eq_u32 s{sW}, 2")
    a(f"s_lshl_b32 s{sT0}, s98, 5"); a(f"s_lshl_b32 s{sT1}, s{sJ}, 7")
    a(f"s_cmp_eq_u32 s{sW}, 2")
    a(f"s_cselect_b32 s{sT0}, s{sT0}, s{sT1}")
    a(f"s_mov_b32 s{sT1}, {B2F}"); a(f"s_cselect_b32 s{sT1}, {B1F}, s{sT1}")
    a(f"s_cselect_b32 s{sT2}, 48, 16")
    a(f"v_lshlrev_b32 v{t+2}, 3, v{vLANE}")
    a(f"buffer_load_dwordx2 {vr(vBR,2)}, v{t+2}, s[{SRD_TMP}:{SRD_TMP+3}], s{sT0} offen")
    a(f"v_add_u32 v{vBR+2}, s{sT1}, v{vL16}")
    a(f"s_mov_b32 s{sBL}, s{sT2}")
    a.label("L_c_nob")
    a(f"s_lshl_b32 s{sT0}, s{sCP}, 10"); a(f"v_add_u32 v{vTRA[0]}, s{sT0}, v{vL16}"); three_bases(a, vTRA)
    a(f"s_mul_i32 s{sT0}, s{sCP}, 3072"); a(f"v_add_u32 v{vTRK[0]}, s{sT0}, v{vL16}")
    a(f"s_lshl_b32 s{sT0}, s{sCP}, 10"); a(f"s_add_u32 s{sT0}, s{sT0}, 1024"); a(f"v_add_u32 v{vTRS[0]}, s{sT0}, v{vL16}")
    three_bases(a, vTRK); three_bases(a, vTRS)
    a(f"s_lshl_b32 s{sT0}, s{sTT}, 10"); a(f"v_add_u32 v{vAR}, s{sT0}, v{vL16}")
    a(f"v_lshrrev_b32 v{t}, 5, v{vLANE}"); a(f"v_lshlrev_b32 v{t}, 4, v{t}")
    a(f"s_lshl_b32 s{sT0}, s{sCP}, 7"); a(f"v_add_u32 v{vCSA}, s{sT0}, v{t}")
    a(f"s_lshl_b32 s{sT0}, s{sTT}, 7"); a(f"v_add_u32 v{vSTB}, s{sT0}, v{t}")
    a(f"v_and_b32 v{t}, 31, v{vLANE}"); a(f"v_lshlrev_b32 v{t}, 2, v{t}"); a(f"v_add_u32 v{vTOK}, s{sT0}, v{t}")
    a(f"s_lshl_b32 s{sXA}, s{sG}, 16"); a(f"s_lshl_b32 s{sT0}, s{sTT}, 15"); a(f"s_add_u32 s{sXA}, s{sXA}, s{sT0}")
    a(f"s_lshl_b32 s{sT0}, s{sJ}, 12"); a(f"s_add_u32 s{sXA}, s{sXA}, s{sT0}"); a(f"s_lshl_b32 s{sT0}, s{sCP}, 11"); a(f"s_add_u32 s{sXA}, s{sXA}, s{sT0}")
    a(f"s_add_u32 s{sXA}, s{sXA}, {WS_XA}")
    a(f"s_mul_i32 s{sHO}, s{sG}, {HO_STRIDE}"); a(f"s_add_u32 s{sHO}, s{sHO}, {WS_HO}")
    a(f"s_lshl_b32 s{sKVw}, s{sG}, 3"); a(f"s_add_u32 s{sKVw}, s{sKVw}, s{sJ}"); a(f"s_lshl_b32 s{sKVw}, s{sKVw}, 14")
    a(f"s_lshl_b32 s{sT0}, s{sTT}, 12"); a(f"s_add_u32 s{sKVw}, s{sKVw}, s{sT0}"); a(f"s_lshl_b32 s{sT0}, s{sCP}, 11"); a(f"s_add_u32 s{sKVw}, s{sKVw}, s{sT0}")
    a(f"s_add_u32 s{sKVw}, s{sKVw}, {WS_KV}")
    for s in range(3):
        for sub in range(2):
            d = sHST[2*s+sub]
            a(f"s_lshl_b32 s{sT0}, s{sCP}, 1"); a(f"s_add_u32 s{sT0}, s{sT0}, {4*s+sub}")
            a(f"s_add_u32 s{sT1}, s{sT0}, s98"); a(f"s_lshl_b32 s{sT1}, s{sT1}, 10")
            a(f"s_mul_i32 s{sT2}, s{sTT}, {H_TT}"); a(f"s_add_u32 s{sT1}, s{sT1}, s{sT2}"); a(f"s_add_u32 s{sT1}, s{sT1}, s{sHO}")
            a(f"s_cmp_lt_u32 s{sT0}, s99")
            a(f"s_cselect_b32 s{d}, s{sT1}, 0x7ffff000")
    a(f"s_mov_b32 s{sC1}, {f2u(1.0/512.0)}"); a(f"s_mov_b32 s{sC2}, {f2u(EPS)}"); a(f"s_mov_b32 s{sC3}, {f2u(QSCALE)}")
    a(f"s_lshl_b32 s{sT1}, s{sW}, 14"); a(f"s_lshl_b32 s{sT2}, s{sG}, 16"); a(f"s_add_u32 s{sT2}, s{sT2}, s{sT1}")
    for r in range(16):
        a(f"v_xor_b32 v{vE}, {r << 4}, v{vL16}")
        a(f"s_add_u32 m0, s{sT1}, {A_P1 + r*1024}")
        a(f"s_add_u32 s{sT0}, s{sT2}, {r*1024}")
        a(f"buffer_load_dwordx4 v{vE}, s[{SRD_X}:{SRD_X+3}], s{sT0} offen lds")

vBR, sBL = 240, 101
def after_meet(a):
    a(f"s_cmp_lt_u32 s{sW}, 2")
    a("s_cbranch_scc1 L_c_nob2")
    a(f"v_cmp_gt_u32 vcc, s{sBL}, v{vLANE}")
    a(f"v_lshlrev_b32 v{vBR+4}, 16, v{vBR}"); a(f"v_and_b32 v{vBR+5}, 0xffff0000, v{vBR}")
    a(f"v_lshlrev_b32 v{vBR+6}, 16, v{vBR+1}"); a(f"v_and_b32 v{vBR+7}, 0xffff0000, v{vBR+1}")
    a(f"s_and_saveexec_b64 s[{sEXEC}:{sEXEC+1}], vcc")
    a(f"ds_write_b128 v{vBR+2}, {vr(vBR+4,4)}")
    a(f"s_mov_b64 exec, s[{sEXEC}:{sEXEC+1}]")
    a.label("L_c_nob2")

def touch(a, srdn, vpat, sbase, imm, dst=None):
    a(f"s_mov_b32 m0, {DUMMY}")
    a(f"s_add_u32 s{sT3}, s{sbase}, {imm}")
    a.vm(f"buffer_load_dword v{vpat}, s[{srdn}:{srdn+3}], s{sT3} offen lds", "touch")

def stats_finalize(a, v, tmp, vaddr, double_ln):
    t0, t1, t2, t3 = tmp
    a(f"v_mov_b32 v{t0}, v{v}")
    a.nop(2)
    a(f"v_permlane32_swap_b32 v{v}, v{t0}")
    a(f"v_mul_f32 v{v}, s{sC1}, v{v}")
    a(f"v_mul_f32 v{t0}, s{sC1}, v{t0}")
    a(f"v_fma_f32 v{t0}, -v{v}, v{v}, v{t0}")
    a(f"v_max_f32 v{t0}, 0, v{t0}")
    a(f"v_add_f32 v{t1}, s{sC2}, v{t0}")
    a(f"v_rsq_f32 v{t1}, v{t1}")
    a.nop(1)
    if double_ln:
        a(f"v_mul_f32 v{t2}, v{t1}, v{t1}")
        a(f"v_mul_f32 v{t2}, v{t2}, v{t0}")
        a(f"v_add_f32 v{t2}, s{sC2}, v{t2}")
        a(f"v_rsq_f32 v{t2}, v{t2}")
        a.nop(1)
        a(f"v_mul_f32 v{t1}, v{t1}, v{t2}")
    a(f"v_cmp_gt_u32 s[{sEXEC}:{sEXEC+1}], 32, v{vLANE}")
    a.nop(2)
    a(f"v_cndmask_b32 v{t3}, v{t1}, v{v}, s[{sEXEC}:{sEXEC+1}]")
    a.ds(f"ds_write_b32 v{vaddr}, v{t3}", "stw")

E = 80
ePK = 84
D_AHEAD = 4

class VM:
    def __init__(self, f): self.f = f
    def __call__(self): self.f()

def items_kq(a, ac, T, v1, is_q):
    mean, rs, ad, adc = E, E + 1, E + 2, E + 3
    w = 92
    cs = [96, 100, 104, 108]
    it = []
    it.append(lambda: a(f"v_add_u32 v{ad}, {ST_MEAN}, v{vTOK}"))
    it.append(lambda: a(f"v_add_u32 v{adc}, {MISC}, v{vCSA}"))
    it.append(lambda: a.ds(f"ds_read_b32 v{mean}, v{ad} offset:0", "em"))
    it.append(lambda: a.ds(f"ds_read_b32 v{rs}, v{ad} offset:256", "er"))
    if not v1:
        for g in range(4):
            it.append(lambda g=g: a.ds(f"ds_read_b128 {vr(cs[g],4)}, v{adc} offset:{CSF_Q - MISC + T*256 + g*32}", f"ca{g}"))
        for _ in range(6): it.append(lambda: None)
    if is_q:
        def fq():
            a.wait_lg("er"); a(f"v_mul_f32 v{rs}, s{sC3}, v{rs}")
        it.append(fq)
    for g in range(4):
        c = cs[0] if v1 else cs[g]
        if v1:
            it.append(lambda g=g: a.ds(f"ds_read_b128 {vr(cs[0],4)}, v{adc} offset:{CS_Q - MISC + T*256 + g*32}", f"ca{g}"))
            it.append(lambda g=g: a.ds(f"ds_read_b128 {vr(cs[1],4)}, v{adc} offset:{CS_Q - MISC + 768 + T*256 + g*32}", f"cb{g}"))
            for e in range(4):
                def f(e=e, g=g):
                    a.wait_lg([f"ca{g}", f"cb{g}"]); a(f"v_add_f32 v{cs[0]+e}, v{cs[0]+e}, v{cs[1]+e}")
                it.append(f)
            def fw(g=g):
                a(f"s_mov_b64 exec, s[{sM0_32}:{sM0_32+1}]")
                a.ds(f"ds_write_b128 v{adc}, {vr(cs[0],4)} offset:{CSF_Q - MISC + T*256 + g*32}", "cw")
                a("s_mov_b64 exec, -1")
            it.append(fw)
        for e in range(4):
            def f(e=e, g=g, c=c):
                a.wait_lg(["em", "er", f"ca{g}", f"cb{g}"])
                a(f"v_fma_f32 v{w+e}, -v{mean}, v{c+e}, v{ac+4*g+e}")
            it.append(f)
        for e in range(4):
            it.append(lambda e=e: a(f"v_mul_f32 v{w+e}, v{w+e}, v{rs}"))
        it.append(lambda g=g: a(f"v_cvt_pk_bf16_f32 v{ePK+2*g}, v{w}, v{w+1}"))
        it.append(lambda g=g: a(f"v_cvt_pk_bf16_f32 v{ePK+2*g+1}, v{w+2}, v{w+3}"))
    if not is_q:
        it.append(lambda: a(f"s_lshl_b32 s{sT1}, s{sTT}, 12"))
        it.append(lambda: a(f"s_lshl_b32 s{sT2}, s{sCP}, 11"))
        it.append(lambda: a(f"s_add_u32 s{sT1}, s{sT1}, s{sT2}"))
        it.append(lambda: a(f"v_add_u32 v{ad}, s{sT1}, v{vL16}"))
        for hh in range(2):
            it.append(VM(lambda hh=hh: a.vm(f"buffer_store_dwordx4 {vr(ePK+4*hh,4)}, v{vL16}, s[{SRD_WS}:{SRD_WS+3}], s{sKVw} offen offset:{hh*1024} sc1", "kvK")))
            it.append(lambda hh=hh: a.ds(f"ds_write_b128 v{ad}, {vr(ePK+4*hh,4)} offset:{KB + 32*K + hh*1024}", "kw"))
    else:
        it.append(lambda: a(f"s_lshl_b32 s{sT1}, s{sTT}, 10"))
        it.append(lambda: a(f"s_lshl_b32 s{sT2}, s{sCP}, 12"))
        it.append(lambda: a(f"s_add_u32 s{sT1}, s{sT1}, s{sT2}"))
        it.append(lambda: a(f"s_add_u32 s{sT1}, s{sT1}, {QB}"))
        it.append(lambda: a(f"v_add_u32 v{ad}, s{sT1}, v{vL16}"))
        for hh in range(2):
            it.append(lambda hh=hh: a.ds(f"ds_write_b128 v{ad}, {vr(ePK+4*hh,4)} offset:{hh*2048}", "qw"))
    return it

def items_v(a, ac, T, v1):
    cs, cs2, ad, ads = E, E + 1, E + 2, E + 3
    w = 92
    mb, rb = ((96, 96), (100, 100)) if v1 else ((96, 104), (100, 108))
    it = []
    it.append(lambda: a(f"v_and_b32 v{ad}, 31, v{vLANE}"))
    it.append(lambda: a(f"v_lshlrev_b32 v{ad}, 2, v{ad}"))
    it.append(lambda: a(f"s_lshl_b32 s{sT1}, s{sCP}, 7"))
    it.append(lambda: a(f"s_add_u32 s{sT1}, s{sT1}, {MISC}"))
    it.append(lambda: a(f"v_add_u32 v{ad}, s{sT1}, v{ad}"))
    it.append(lambda: a(f"v_add_u32 v{ads}, {MISC}, v{vSTB}"))
    def rd(g):
        it.append(lambda g=g: a.ds(f"ds_read_b128 {vr(mb[g%2],4)}, v{ads} offset:{ST_MEAN - MISC + g*32}", f"m{g}"))
        it.append(lambda g=g: a.ds(f"ds_read_b128 {vr(rb[g%2],4)}, v{ads} offset:{ST_RSTD - MISC + g*32}", f"r{g}"))
    if v1:
        it.append(lambda: a.ds(f"ds_read_b32 v{cs}, v{ad} offset:{CS_Q - MISC + T*256}", "ca"))
        it.append(lambda: a.ds(f"ds_read_b32 v{cs2}, v{ad} offset:{CS_Q - MISC + 768 + T*256}", "cb"))
        def f():
            a.wait_lg(["ca", "cb"]); a(f"v_add_f32 v{cs}, v{cs}, v{cs2}")
        it.append(f)
        it.append(lambda: a.ds(f"ds_write_b32 v{ad}, v{cs} offset:{CSF_Q - MISC + T*256}", "cw"))
    else:
        it.append(lambda: a.ds(f"ds_read_b32 v{cs}, v{ad} offset:{CSF_Q - MISC + T*256}", "ca"))
        rd(0)
        for _ in range(6): it.append(lambda: None)
    for g in range(4):
        if v1: rd(g)
        elif g < 3: rd(g + 1)
        for e in range(4):
            def f(e=e, g=g):
                a.wait_lg(["ca", f"m{g}"])
                a(f"v_fma_f32 v{w+e}, -v{mb[g%2]+e}, v{cs}, v{ac+4*g+e}")
            it.append(f)
        for e in range(4):
            def f(e=e, g=g):
                a.wait_lg(f"r{g}"); a(f"v_mul_f32 v{w+e}, v{w+e}, v{rb[g%2]+e}")
            it.append(f)
        it.append(lambda g=g: a(f"v_cvt_pk_bf16_f32 v{ePK+2*g}, v{w}, v{w+1}"))
        it.append(lambda g=g: a(f"v_cvt_pk_bf16_f32 v{ePK+2*g+1}, v{w+2}, v{w+3}"))
    it.append(lambda: a(f"v_bfe_u32 v{ad}, v{vLANE}, 4, 1"))
    it.append(lambda: a(f"v_lshlrev_b32 v{ad}, 10, v{ad}"))
    it.append(lambda: a(f"v_lshrrev_b32 v{cs2}, 5, v{vLANE}"))
    it.append(lambda: a(f"v_lshl_add_u32 v{ad}, v{cs2}, 8, v{ad}"))
    it.append(lambda: a(f"v_and_b32 v{cs2}, 15, v{vLANE}"))
    it.append(lambda: a(f"v_lshl_add_u32 v{ad}, v{cs2}, 4, v{ad}"))
    it.append(lambda: a(f"s_lshl_b32 s{sT1}, s{sTT}, 12"))
    it.append(lambda: a(f"s_lshl_b32 s{sT2}, s{sCP}, 11"))
    it.append(lambda: a(f"s_add_u32 s{sT1}, s{sT1}, s{sT2}"))
    it.append(lambda: a(f"s_add_u32 s{sT1}, s{sT1}, {VB + 32*K}"))
    it.append(lambda: a(f"v_add_u32 v{ads}, s{sT1}, v{ad}"))
    it.append(lambda: a(f"s_add_u32 s{sT2}, s{sKVw}, 8192"))
    for s in range(2):
        it.append(VM(lambda s=s: a.vm(f"buffer_store_dwordx4 {vr(ePK+4*s,4)}, v{ad}, s[{SRD_WS}:{SRD_WS+3}], s{sT2} offen offset:{s*512} sc1", "kvV")))
        it.append(lambda s=s: a.ds(f"ds_write_b128 v{ads}, {vr(ePK+4*s,4)} offset:{s*512}", "vw"))
    return it

def items_h(a, ac, T, v1):
    mr, rs, gc, ad2 = E, E + 1, E + 2, E + 3
    u, t = 92, 96
    if v1: csA, bbs, csB = (100, 100), (104, 104), 108
    else:  csA, bbs, csB = (100, 108), (104, 112), None
    CSR = CS_1 if v1 else CSF_1
    it = []
    it.append(lambda: a(f"v_add_u32 v{ad2}, {ST_MEAN}, v{vTOK}"))
    it.append(lambda: a.ds(f"ds_read_b32 v{mr}, v{ad2} offset:0", "em"))
    it.append(lambda: a.ds(f"ds_read_b32 v{rs}, v{ad2} offset:256", "er"))
    it.append(lambda: a(f"v_add_u32 v{ad2}, {MISC}, v{vCSA}"))
    it.append(lambda: a(f"v_mov_b32 v{gc}, {f2u(GC1)}"))
    def rd(g):
        it.append(lambda g=g: a.ds(f"ds_read_b128 {vr(csA[g%2],4)}, v{ad2} offset:{CSR - MISC + T*256 + g*32}", f"ca{g}"))
        if v1: it.append(lambda g=g: a.ds(f"ds_read_b128 {vr(csB,4)}, v{ad2} offset:{CS_1 - MISC + 768 + T*256 + g*32}", f"cb{g}"))
        it.append(lambda g=g: a.ds(f"ds_read_b128 {vr(bbs[g%2],4)}, v{ad2} offset:{B1F - MISC + T*256 + g*32}", f"b{g}"))
    if not v1:
        rd(0)
        for _ in range(5): it.append(lambda: None)
    def fm():
        a.wait_lg(["em", "er"]); a(f"v_mul_f32 v{mr}, v{mr}, v{rs}")
    it.append(fm)
    for g in range(4):
        cA, bb = csA[g % 2], bbs[g % 2]
        if v1:
            rd(g)
            for e in range(4):
                def f(e=e, g=g, cA=cA):
                    a.wait_lg([f"ca{g}", f"cb{g}"]); a(f"v_add_f32 v{cA+e}, v{cA+e}, v{csB+e}")
                it.append(f)
            def fw(g=g, cA=cA):
                a(f"s_mov_b64 exec, s[{sM0_32}:{sM0_32+1}]")
                a.ds(f"ds_write_b128 v{ad2}, {vr(cA,4)} offset:{CSF_1 - MISC + T*256 + g*32}", "cw")
                a("s_mov_b64 exec, -1")
            it.append(fw)
        for e in range(4):
            def f(e=e, g=g, cA=cA, bb=bb):
                a.wait_lg([f"ca{g}", f"b{g}"]); a(f"v_fma_f32 v{bb+e}, -v{mr}, v{cA+e}, v{bb+e}")
            it.append(f)
        for e in range(4): it.append(lambda e=e, g=g, bb=bb: a(f"v_fma_f32 v{u+e}, v{ac+4*g+e}, v{rs}, v{bb+e}"))
        if not v1 and g < 3: rd(g + 1)
        for e in range(4): it.append(lambda e=e: a(f"v_mul_f32 v{t+e}, v{u+e}, v{u+e}"))
        for e in range(4): it.append(lambda e=e: a(f"v_fmaak_f32 v{t+e}, v{t+e}, v{gc}, {f2u(GC0)}"))
        for e in range(4): it.append(lambda e=e: a(f"v_mul_f32 v{t+e}, v{t+e}, v{u+e}"))
        for e in range(4): it.append(lambda e=e: a(f"v_exp_f32 v{t+e}, v{t+e}"))
        for e in range(4): it.append(lambda e=e: a(f"v_add_f32 v{t+e}, 1.0, v{t+e}"))
        for e in range(4): it.append(lambda e=e: a(f"v_rcp_f32 v{t+e}, v{t+e}"))
        for e in range(4): it.append(lambda e=e: a(f"v_mul_f32 v{u+e}, v{u+e}, v{t+e}"))
        it.append(lambda g=g: a(f"v_cvt_pk_bf16_f32 v{ePK+2*g}, v{u}, v{u+1}"))
        it.append(lambda g=g: a(f"v_cvt_pk_bf16_f32 v{ePK+2*g+1}, v{u+2}, v{u+3}"))
        if g % 2 == 1:
            sub = g // 2
            it.append(lambda: a("s_nop 0"))
            it.append(VM(lambda sub=sub: dual_store(a, "buffer_store_dwordx4", vr(ePK + 4*sub, 4), vL16, SRD_WS, f"s{sHST[2*T+sub]}")))
    return it

def tail_h(a, ac, T):
    nmr, rs, gc1, gc0, ad = 80, 82, 120, 122, 124
    cs, b1, u, t = 48, 96, 112, 116
    a(f"v_add_u32 v{ad}, {ST_MEAN}, v{vTOK}"); a(f"v_add_u32 v{ad+1}, {MISC}, v{vCSA}")
    a.ds(f"ds_read_b32 v{nmr}, v{ad} offset:0", "em"); a.ds(f"ds_read_b32 v{rs}, v{ad} offset:256", "er")
    for g in range(4):
        a.ds(f"ds_read_b128 {vr(cs+4*g,4)}, v{ad+1} offset:{CSF_1 - MISC + T*256 + g*32}", f"ca{g}")
        a.ds(f"ds_read_b128 {vr(b1+4*g,4)}, v{ad+1} offset:{B1F - MISC + T*256 + g*32}", f"b{g}")
    a(f"v_mov_b32 v{gc1}, {f2u(GC1)}"); a(f"v_mov_b32 v{gc0}, {f2u(GC0)}")
    a.wait_lg(["em", "er"])
    a(f"v_mul_f32 v{nmr}, v{nmr}, v{rs}"); a(f"v_sub_f32 v{nmr}, 0, v{nmr}")
    P = lambda r: vr(r, 2)
    for g in range(4):
        a.wait_lg([f"ca{g}", f"b{g}"])
        for p in range(2): a(f"v_pk_fma_f32 {P(b1+4*g+2*p)}, {P(cs+4*g+2*p)}, {P(nmr)}, {P(b1+4*g+2*p)} op_sel_hi:[1,0,1]")
        for p in range(2): a(f"v_pk_fma_f32 {P(u+2*p)}, {P(ac+4*g+2*p)}, {P(rs)}, {P(b1+4*g+2*p)} op_sel_hi:[1,0,1]")
        for p in range(2): a(f"v_pk_mul_f32 {P(t+2*p)}, {P(u+2*p)}, {P(u+2*p)}")
        for p in range(2): a(f"v_pk_fma_f32 {P(t+2*p)}, {P(t+2*p)}, {P(gc1)}, {P(gc0)} op_sel_hi:[1,0,0]")
        for p in range(2): a(f"v_pk_mul_f32 {P(t+2*p)}, {P(t+2*p)}, {P(u+2*p)}")
        for e in range(4): a(f"v_exp_f32 v{t+e}, v{t+e}")
        for p in range(2): a(f"v_pk_add_f32 {P(t+2*p)}, {P(t+2*p)}, 1.0 op_sel_hi:[1,0]")
        for e in range(4): a(f"v_rcp_f32 v{t+e}, v{t+e}")
        for p in range(2): a(f"v_pk_mul_f32 {P(u+2*p)}, {P(u+2*p)}, {P(t+2*p)}")
        a(f"v_cvt_pk_bf16_f32 v{ePK+2*g}, v{u}, v{u+1}"); a(f"v_cvt_pk_bf16_f32 v{ePK+2*g+1}, v{u+2}, v{u+3}")
        if g % 2 == 1:
            sub = g // 2
            a.nop(1)
            dual_store(a, "buffer_store_dwordx4", vr(ePK + 4*sub, 4), vL16, SRD_WS, f"s{sHST[2*T+sub]}")

def gemm192(a, ph, slot, abase, tiles, a_interleave, after_b0=None):
    pre = f"{ph}"
    trA = LdsBase(vTRA)
    vAb = 115
    if a_interleave and abase:
        a(f"v_add_u32 v{vAb}, {abase}, v{vAR}")
    areg = vAb if (a_interleave and abase) else vAR
    def issue_reads(n):
        T, ks = divmod(n, 32)
        u = 16 * T + (ks >> 1)
        r, off = trA.at(slot(u) + (ks & 1) * 2048)
        a.ds(f"ds_read_b128 {vr(vWF + 4 * (n % 4),4)}, v{r} offset:{off}", ("W", n))
        if a_interleave and T == 0:
            a.ds(f"ds_read_b128 {vr(vA+4*ks,4)}, v{areg} offset:{ks*2048}", ("W", n))
    a.bar(f"{pre}_B0")
    if after_b0:
        after_b0()
    tsb = 20 if ph.startswith("p1") else 30
    ts(a, tsb)
    for n in range(D_AHEAD): issue_reads(n)
    pending = []; deferred = []
    for n in range(96):
        T, ks = divmod(n, 32)
        form = tiles[T][0]
        ac = vACC[T % 2]
        buf = vWF + 4 * (n % 4)
        a.wait_lg(("W", n))
        c = "0" if ks == 0 else vr(ac, 16)
        if form == "T": a(f"v_mfma_f32_32x32x16_bf16 {vr(ac,16)}, {vr(buf,4)}, {vr(vA+4*ks,4)}, {c}")
        else:           a(f"v_mfma_f32_32x32x16_bf16 {vr(ac,16)}, {vr(vA+4*ks,4)}, {vr(buf,4)}, {c}")
        nn = n + D_AHEAD
        if nn < 96 and nn % 4 == 0:
            if nn == 88: a.wait_vm("kvK")
            a.bar(f"{pre}_B{nn//4}")
        if nn < 96: issue_reads(nn)
        if T >= 1:
            start = 3
            if ks == start:
                pending = tiles[T-1][1](a, vACC[(T - 1) % 2], T - 1, False)
                if OPT.get("noepi") and ph == "p4": pending = []
                if OPT.get("noepi") == 2 and ph == "p4":
                    pending = [(lambda: a("v_add_f32 v100, v101, v102"))] * 136
            if ks >= start:
                left = 31 - ks + 1
                k = max(4, -(-len(pending) // max(left - 1, 1)))
                for _ in range(min(k, len(pending))):
                    if isinstance(pending[0], VM) and OPT.get("defer", 1):
                        deferred.append(pending.pop(0))
                    else: pending.pop(0)()
                if deferred and (n % 4 == 3):
                    while deferred: deferred.pop(0)()
            if ks == 31:
                while pending: pending.pop(0)()
                while deferred: deferred.pop(0)()
    ts(a, tsb + 3)
    a.nop(12)
    if ph == "p1a" and OPT.get("cs4", 0): a.bar("p1a_cs")
    a.bar(f"{pre}_end")
    if ph == "p4" and OPT.get("pktail", 1): tail_h(a, vACC[0], 2)
    else:
        for f in tiles[2][1](a, vACC[0], 2, False): f()
    ts(a, tsb + 4)

def p1_compute(a, v1):
    ph = "p1a" if v1 else "p1b"
    tiles = [("T", lambda a_, ac, T, v: items_kq(a_, ac, T, v, False)),
             ("N", lambda a_, ac, T, v: items_v(a_, ac, T, v)),
             ("T", lambda a_, ac, T, v: items_kq(a_, ac, T, v, True))]
    if v1:
        a(f"v_and_b32 v{E+4}, 31, v{vLANE}"); a(f"s_lshl_b32 s{sT1}, s{sTT}, 5"); a(f"v_add_u32 v{E+5}, s{sT1}, v{E+4}")
        a(f"v_lshlrev_b32 v{E+5}, 10, v{E+5}")
        a(f"v_lshrrev_b32 v{E+6}, 5, v{vLANE}"); a(f"v_lshl_add_u32 v{E+5}, v{E+6}, 3, v{E+5}")
        a(f"v_and_b32 v{E+4}, 15, v{vLANE}"); a(f"v_lshl_add_u32 v{E+5}, v{E+4}, 4, v{E+5}")
        a(f"v_and_b32 v{E+16}, 15, v{vLANE}"); a(f"s_lshl_b32 s{sT1}, s{sJ}, 3"); a(f"s_lshl_b32 s{sT2}, s{sCP}, 2"); a(f"s_add_u32 s{sT1}, s{sT1}, s{sT2}")
        a(f"v_and_b32 v{E+17}, 31, v{vLANE}"); a(f"s_lshl_b32 s{sT2}, s{sTT}, 5"); a(f"v_add_u32 v{E+17}, s{sT2}, v{E+17}"); a(f"v_lshlrev_b32 v{E+17}, 10, v{E+17}")
        a(f"v_lshrrev_b32 v{E+18}, 5, v{vLANE}"); a(f"v_lshl_add_u32 v{E+17}, v{E+18}, 3, v{E+17}")
        for q in range(4):
            a(f"s_add_u32 s{sT2}, s{sT1}, {q}"); a(f"v_xor_b32 v{E+18}, s{sT2}, v{E+16}"); a(f"v_lshl_add_u32 v{E+20+q}, v{E+18}, 4, v{E+17}")
        ts(a, 29)
        a("s_waitcnt lgkmcnt(0)")
        a(f"s_add_u32 s{sEP}, s{sEP}, 16")
        a.bar("prep")
        a("s_waitcnt vmcnt(0)")
        a(f"v_mov_b32 v{E+24}, {CNTW}"); a(f"v_mov_b32 v{E+25}, 1")
        a(f"s_mov_b64 exec, 1")
        a(f"ds_add_u32 v{E+24}, v{E+25}")
        a("s_mov_b64 exec, -1")
        a(f"s_mov_b32 s{sSPIN}, {OPT['spin']}")
        a.label("L_p1a_meet")
        a(f"ds_read_b32 v{E+25}, v{E+24}")
        a("s_waitcnt lgkmcnt(0)")
        a(f"v_cmp_gt_u32 vcc, 4, v{E+25}")
        a(f"s_sub_u32 s{sSPIN}, s{sSPIN}, 1")
        a("s_cbranch_scc1 L_p1a_met")
        a("s_cbranch_vccnz L_p1a_meet")
        a.label("L_p1a_met")
        ts(a, 1)
        after_meet(a)
        for q in range(4): a.ds(f"ds_read_b64 {vr(vACC[0]+2*q,2)}, v{E+20+q}", "xr")
        a.wait_lg0()
        for q in range(4):
            for h in range(2):
                a(f"v_lshlrev_b32 v{vXR+4*q+2*h}, 16, v{vACC[0]+2*q+h}")
                a(f"v_and_b32 v{vXR+4*q+2*h+1}, 0xffff0000, v{vACC[0]+2*q+h}")
        for cc in range(16): a(f"v_xor_b32 v{vACC[1]+cc}, {cc << 4}, v{E+5}")
        sm, sq, one = E, E + 1, E + 2
        a(f"v_mov_b32 v{sm}, 0"); a(f"v_mov_b32 v{sq}, 0"); a(f"v_mov_b32 v{one}, 0x3f803f80")
        for ks in range(32):
            for hh in range(2):
                cch = 2 * ks + hh
                a.ds(f"ds_read_b64 {vr(vA+4*ks+2*hh,2)}, v{vACC[1]+(cch & 15)} offset:{(cch >> 4) << 8}", ("A", cch))
                if cch >= 12: a.wait_lg(("A", cch - 12))
        a.wait_lg0()
        a(f"s_cmp_eq_u32 s{sCP}, 0")
        a("s_cbranch_scc0 L_p1a_odd")
        for par in range(2):
            if par == 1: a.label("L_p1a_odd")
            for ks in range(par, 32, 2):
                for q in range(4):
                    a(f"v_dot2c_f32_bf16 v{sm}, v{vA+4*ks+q}, v{one}")
                    a(f"v_dot2c_f32_bf16 v{sq}, v{vA+4*ks+q}, v{vA+4*ks+q}")
            if par == 0: a("s_branch L_p1a_sdone")
        a.label("L_p1a_sdone")
        a.nop(5)
        a(f"v_permlane32_swap_b32 v{sm}, v{sq}")
        a(f"v_add_f32 v{sm}, v{sm}, v{sq}")
        a(f"v_lshrrev_b32 v{E+3}, 5, v{vLANE}"); a(f"v_lshlrev_b32 v{E+3}, 8, v{E+3}"); a(f"v_add_u32 v{E+3}, v{E+3}, v{vTOK}")
        a(f"v_add_u32 v{E+4}, {STP}, v{E+3}")
        a(f"s_lshl_b32 s{sT1}, s{sCP}, 9"); a(f"v_add_u32 v{E+5}, s{sT1}, v{E+4}")
        a.ds(f"ds_write_b32 v{E+5}, v{sm}", "stp")
        a.wait_lg0()
        def fin():
            a.ds(f"ds_read_b32 v{E+6}, v{E+4} offset:0", "x"); a.ds(f"ds_read_b32 v{E+7}, v{E+4} offset:512", "x")
            a(f"v_subrev_u32 v{E+3}, {STP - ST_MEAN}, v{E+4}")
            a.wait_lg0()
            a(f"v_add_f32 v{E+6}, v{E+6}, v{E+7}")
            stats_finalize(a, E + 6, (E + 8, E + 9, E + 10, E + 11), E + 3, False)
            a.wait_lg0()
            ts(a, 2)
        after_b0 = fin
    if v1: a.bar("prepgo")
    gemm192(a, ph, slot_p1, A_P1, tiles, a_interleave=not v1, after_b0=after_b0 if v1 else None)
    a.wait_all0()
    if OPT.get("vearly", 1):
        target = 8 if v1 else 12
        a(f"v_mov_b32 v{E}, {CNTW}"); a(f"v_mov_b32 v{E+1}, 1")
        a("s_mov_b64 exec, 1")
        a(f"ds_add_u32 v{E}, v{E+1}")
        a("s_mov_b64 exec, -1")
        a(f"s_cmp_lg_u32 s{sW}, 0"); a(f"s_cbranch_scc1 L_{ph}_vm_x")
        a(f"s_mov_b32 s{sSPIN}, {OPT['spin']}")
        a.label(f"L_{ph}_vm")
        a(f"ds_read_b32 v{E+1}, v{E}")
        a("s_waitcnt lgkmcnt(0)")
        a(f"v_cmp_gt_u32 vcc, {target}, v{E+1}")
        a(f"s_sub_u32 s{sSPIN}, s{sSPIN}, 1")
        a(f"s_cbranch_scc1 L_{ph}_vm_y")
        a(f"s_cbranch_vccnz L_{ph}_vm")
        a.label(f"L_{ph}_vm_y")
        kv_flag_store(a, 0, 1, (PV[1], PV[2]), ph + "_vf")
        a.label(f"L_{ph}_vm_x")
        a("s_waitcnt lgkmcnt(0)")
    a.bar(f"{ph}_pubkv")

def p4_compute(a):
    tiles = [("T", lambda a_, ac, T, v: items_h(a_, ac, T, v))] * 3
    gemm192(a, "p4", slot_p4, A_P4, tiles, a_interleave=True)
    publish_pre(a, 3)
    a.wait_all0()
    a.bar("p4_pubh")
    publish_local(a, "p4h", 3, True)
    a.bar("p4_goh")

def gemm64(a, ph, nsteps, slot, abase_sgpr, window, stage_bars, midbar=None):
    trK, trS = LdsBase(vTRK), LdsBase(vTRS)
    aK, aS = vACC
    D = 2
    def issue_w(i):
        base = slot(i)
        buf = vWF + 8 * (i % 3)
        for tr, o in ((trK, 0), (trS, 4)):
            r, off = tr.at(base)
            a.ds(f"ds_read_b128 {vr(buf+o,4)}, v{r} offset:{off}", ("W", i))
    def issue_a(i):
        a(f"s_add_u32 s{sT1}, s{abase_sgpr}, {i*2048}")
        a.vm(f"buffer_load_dwordx4 {vr(vA+4*(i % window),4)}, v{vL16}, s[{SRD_WS}:{SRD_WS+3}], s{sT1} offen sc1", ("A", i))
    for i in range(min(window, nsteps)): issue_a(i)
    if stage_bars: a.bar(f"{ph}_a")
    for i in range(D): issue_w(i)
    for i in range(nsteps):
        buf = vWF + 8 * (i % 3)
        af = vA + 4 * (i % window)
        a.wait_vm(("A", i)); a.wait_lg(("W", i))
        a(f"v_mfma_f32_32x32x16_bf16 {vr(aK,16)}, {vr(buf,4)}, {vr(af,4)}, {'0' if i == 0 else vr(aK,16)}")
        nn = i + D
        if stage_bars and nn < nsteps and nn % 4 == 0: a.bar(f"{ph}_B{nn//4}")
        if midbar is not None and i == midbar: a.bar(f"{ph}_b")
        if nn < nsteps: issue_w(nn)
        a(f"v_mfma_f32_32x32x16_bf16 {vr(aS,16)}, {vr(buf+4,4)}, {vr(af,4)}, {'0' if i == 0 else vr(aS,16)}")
        if i + window < nsteps: issue_a(i + window)

def red_epilogue(a, ph, rb, add_b2, final, pre_bar):
    aK, aS = vACC
    rv = E
    ad = 96
    if pre_bar: a.bar(f"{ph}_red1")
    a(f"s_lshl_b32 s{sT1}, s{sW}, 12"); a(f"s_add_u32 s{sT1}, s{sT1}, {rb}")
    a(f"v_add_u32 v{ad}, s{sT1}, v{vL16}")
    a(f"s_xor_b32 s{sT2}, s{sW}, 1"); a(f"s_lshl_b32 s{sT2}, s{sT2}, 12"); a(f"s_add_u32 s{sT2}, s{sT2}, {rb}")
    a(f"v_add_u32 v{ad+1}, s{sT2}, v{vL16}")
    if add_b2:
        a(f"v_add_u32 v{ad+2}, {MISC}, v{vCSA}")
        for g in range(4): a.ds(f"ds_read_b128 {vr(100+4*g,4)}, v{ad+2} offset:{B2F - MISC + g*32}", "b2")
    a.nop(8)
    for q in range(4): a.ds(f"ds_write_b128 v{ad}, {vr(aS+4*q,4)} offset:{q*1024}", "rw")
    a.wait_lg0()
    a.bar(f"{ph}_red2")
    for q in range(4): a.ds(f"ds_read_b128 {vr(rv+4*q,4)}, v{ad+1} offset:{q*1024}", "rr")
    for p in range(8): a(f"v_pk_add_f32 {vr(vXR+2*p,2)}, {vr(vXR+2*p,2)}, {vr(aK+2*p,2)}")
    if add_b2:
        for p in range(8): a(f"v_pk_add_f32 {vr(vXR+2*p,2)}, {vr(vXR+2*p,2)}, {vr(100+2*p,2)}")
    a.wait_lg0()
    for p in range(8): a(f"v_pk_add_f32 {vr(vXR+2*p,2)}, {vr(vXR+2*p,2)}, {vr(rv+2*p,2)}")
    pk = 116
    for p in range(8): a(f"v_cvt_pk_bf16_f32 v{pk+p}, v{vXR+2*p}, v{vXR+2*p+1}")
    if final:
        a.nop(2)
        for q in (0, 4):
            a(f"v_permlane32_swap_b32 v{pk+q}, v{pk+q+2}")
            a(f"v_permlane32_swap_b32 v{pk+q+1}, v{pk+q+3}")
        a(f"v_and_b32 v{ad}, 15, v{vLANE}"); a(f"v_lshlrev_b32 v{ad}, 10, v{ad}")
        a(f"v_bfe_u32 v{ad+1}, v{vLANE}, 4, 1"); a(f"v_lshl_add_u32 v{ad}, v{ad+1}, 5, v{ad}")
        a(f"v_lshrrev_b32 v{ad+1}, 5, v{vLANE}"); a(f"v_lshl_add_u32 v{ad}, v{ad+1}, 4, v{ad}")
        for q in range(4): a(f"v_permlane16_swap_b32 v{pk+q}, v{pk+4+q}")
        a(f"s_add_u32 s{sT1}, s{sOUTb}, 16384")
        a.vm(f"buffer_store_dwordx4 {vr(pk,4)}, v{ad}, s[{SRD_OUT}:{SRD_OUT+3}], s{sOUTb} offen " + OPT.get("outf", "nt"), "out")
        a.vm(f"buffer_store_dwordx4 {vr(pk+4,4)}, v{ad}, s[{SRD_OUT}:{SRD_OUT+3}], s{sT1} offen " + OPT.get("outf", "nt"), "out")
        return
    dual_store(a, "buffer_store_dwordx4", vr(pk, 4), vL16, SRD_WS, f"s{sXA}")
    dual_store(a, "buffer_store_dwordx4", vr(pk+4, 4), vL16, SRD_WS, f"s{sXA}", "offset:1024")
    s0, q0 = 100, 102
    a(f"v_pk_add_f32 {vr(s0,2)}, {vr(vXR,2)}, {vr(vXR+2,2)}")
    a(f"v_pk_mul_f32 {vr(q0,2)}, {vr(vXR,2)}, {vr(vXR,2)}")
    for p in range(1, 8):
        if p >= 2: a(f"v_pk_add_f32 {vr(s0,2)}, {vr(s0,2)}, {vr(vXR+2*p,2)}")
        a(f"v_pk_fma_f32 {vr(q0,2)}, {vr(vXR+2*p,2)}, {vr(vXR+2*p,2)}, {vr(q0,2)}")
    a(f"v_add_f32 v{s0}, v{s0}, v{s0+1}"); a(f"v_add_f32 v{q0}, v{q0}, v{q0+1}")
    a(f"s_lshl_b32 s{sT1}, s{sJ}, 1"); a(f"s_add_u32 s{sT1}, s{sT1}, s{sCP}")
    a(f"s_lshr_b32 s{sT2}, s{sT1}, 2"); a(f"s_lshl_b32 s{sT2}, s{sT2}, 10"); a(f"s_and_b32 s{sT1}, s{sT1}, 3"); a(f"s_lshl_b32 s{sT1}, s{sT1}, 2")
    a(f"s_add_u32 s{sT1}, s{sT1}, s{sT2}"); a(f"s_lshl_b32 s{sT2}, s{sTT}, 12"); a(f"s_add_u32 s{sT1}, s{sT1}, s{sT2}"); a(f"s_add_u32 s{sT1}, s{sT1}, s{sSTATS}")
    a(f"v_permlane32_swap_b32 v{s0}, v{q0}")
    a(f"v_add_f32 v{s0}, v{s0}, v{q0}")
    a.nop(1)
    dual_store(a, "buffer_store_dword", f"v{s0}", vL16, SRD_WS, f"s{sT1}")

def p3_compute(a):
    a(f"s_lshl_b32 s{sT2}, s{sTT}, 15"); a(f"s_add_u32 s{sT2}, s{sT2}, s{sHO}"); a(f"s_lshl_b32 s{sT3}, s{sCP}, 10"); a(f"s_add_u32 s{sT2}, s{sT2}, s{sT3}")
    gemm64(a, "p3", 16, lambda m: WOB + 4 * K * m, sT2, 16, False, midbar=OPT.get("p3mid", 10))
    ts(a, 9)
    red_epilogue(a, "p3", RB_P3, False, False, False)
    publish_pre(a, 2)
    a.wait_all0()
    a.bar("p3_pub")
    publish_local(a, "x1", 2, True)
    a.bar("p3_go")

def p5_compute_main(a):
    a(f"s_mul_i32 s{sT2}, s{sTT}, {H_TT}"); a(f"s_add_u32 s{sT2}, s{sT2}, s{sHO}"); a(f"s_lshl_b32 s{sT3}, s{sCP}, 10"); a(f"s_add_u32 s{sT2}, s{sT2}, s{sT3}")
    gemm64(a, "p5", 43, slot_p5, sT2, OPT.get("p5w", 12), True)

aQ, aKa, aKb = 32, 36, 40
aS = (48, 64)
aO, aP = 80, 96
aV = (104, 112)
aM, aT, aT2 = 120, 121, 122
aB8, aB0, aCm, aC8, aC0 = 128, 144, 160, 176, 192
aKA, aVA, aQA, aOA = 208, 209, 210, 211

def attention_setup(a):
    a(f"s_and_b32 s{sT1}, s{sW}, 3"); a(f"s_lshr_b32 s{sT2}, s{sW}, 2")
    a(f"s_lshl_b32 s{sT3}, s{sT1}, 10"); a(f"s_lshl_b32 s{sT0}, s{sT2}, 12"); a(f"s_add_u32 s{sT3}, s{sT3}, s{sT0}")
    a(f"v_add_u32 v{aKA}, s{sT3}, v{vL16}")
    a(f"v_lshrrev_b32 v{aT}, 5, v{vLANE}"); a(f"v_lshlrev_b32 v{aT}, 8, v{aT}")
    a(f"v_and_b32 v{aT2}, 15, v{vLANE}"); a(f"v_lshl_add_u32 v{aT}, v{aT2}, 4, v{aT}")
    a(f"s_add_u32 s{sT3}, s{sT3}, {VB}"); a(f"v_add_u32 v{aVA}, s{sT3}, v{aT}")
    a(f"s_lshl_b32 s{sT3}, s{sT1}, 11"); a(f"s_lshl_b32 s{sT0}, s{sT2}, 10"); a(f"s_add_u32 s{sT3}, s{sT3}, s{sT0}"); a(f"s_add_u32 s{sT3}, s{sT3}, {QB}")
    a(f"v_add_u32 v{aQA}, s{sT3}, v{vL16}")
    a(f"s_lshl_b32 s{sT3}, s{sG}, 1"); a(f"s_add_u32 s{sT3}, s{sT3}, s{sT2}")
    a(f"s_sub_i32 s{sTMIN}, 8, s{sT3}"); a(f"s_max_i32 s{sTMIN}, s{sTMIN}, 0")
    a(f"s_mul_i32 s{sO}, s{sG}, {HO_STRIDE}"); a(f"s_add_u32 s{sO}, s{sO}, {WS_HO}")
    a(f"s_lshl_b32 s{sT3}, s{sT2}, 15"); a(f"s_add_u32 s{sO}, s{sO}, s{sT3}")
    a(f"s_lshl_b32 s{sT3}, s{sJ}, 2"); a(f"s_add_u32 s{sT3}, s{sT3}, s{sT1}"); a(f"s_lshl_b32 s{sT3}, s{sT3}, 10"); a(f"s_add_u32 s{sO}, s{sO}, s{sT3}")
    a(f"v_and_b32 v{aT}, 31, v{vLANE}"); a(f"v_lshrrev_b32 v{aT2}, 5, v{vLANE}"); a(f"v_lshlrev_b32 v{aT2}, 2, v{aT2}")
    a(f"v_sub_u32 v{aT}, v{aT}, v{aT2}")
    a(f"v_mov_b32 v{aM}, {NEGBIG}"); a(f"v_mov_b32 v{aT2}, 0")
    for r in range(16):
        m0 = (r & 3) + 8 * (r >> 2)
        pair = 88 + 2 * (r % 2)
        a(f"v_cmp_le_i32 s[{pair}:{pair+1}], {m0}, v{aT}")
        if r >= 1:
            pp = 88 + 2 * ((r - 1) % 2)
            a(f"v_cndmask_b32 v{aB8+r-1}, v{aM}, v{aT2}, s[{pp}:{pp+1}]") if False else None
        a.nop(2)
        a(f"v_cndmask_b32 v{aB8+r}, v{aM}, v{aT2}, s[{pair}:{pair+1}]")
        a(f"v_cndmask_b32 v{aB0+r}, v{aT2}, v{aM}, s[{pair}:{pair+1}]")
    for q in range(16): a(f"v_mov_b32 v{aV[0]+q}, 0x3f803f80")

def warm_exchange(a):
    a(f"s_cmp_eq_u32 s{sI}, 3"); a("s_cbranch_scc1 L_we_x")
    a(f"s_mul_i32 s{sT1}, s{sG}, {HO_STRIDE}"); a(f"s_mul_i32 s{sT2}, s{sJ}, 22528"); a(f"s_add_u32 s{sT1}, s{sT1}, s{sT2}")
    a(f"s_lshl_b32 s{sT2}, s{sI}, 13"); a(f"s_add_u32 s{sT1}, s{sT1}, s{sT2}")
    touch(a, SRD_WS, 10, sT1, WS_HO)
    a("s_branch L_we_e")
    a.label("L_we_x")
    a(f"s_lshl_b32 s{sT2}, s{sG}, 16"); a(f"s_lshl_b32 s{sT0}, s{sJ}, 13"); a(f"s_add_u32 s{sT2}, s{sT2}, s{sT0}")
    touch(a, SRD_WS, 10, sT2, WS_XA)
    touch(a, SRD_WS, 10, sSTATS, 0)
    a.label("L_we_e")
def warm_w1(a):
    a(f"s_cmp_eq_u32 s{sI}, 3"); a("s_cbranch_scc1 L_ww_e")
    a(f"s_mul_i32 s{sT1}, s{sJ}, {J_WQ}"); a(f"s_and_b32 s{sT2}, s{sG}, 3"); a(f"s_mul_i32 s{sT2}, s{sT2}, 22528"); a(f"s_add_u32 s{sT1}, s{sT1}, s{sT2}")
    a(f"s_lshl_b32 s{sT2}, s{sI}, 13"); a(f"s_add_u32 s{sT1}, s{sT1}, s{sT2}")
    touch(a, SRD_WS, 10, sT1, WS_W1P)
    a.label("L_ww_e")

def _p2c2(a):
    a(f"s_cmp_lt_u32 s{sW}, 4"); a("s_cbranch_scc1 L_p2c2_skip")
    a(f"s_cmp_lg_u32 s{sPAIR}, 0"); a("s_cbranch_scc1 L_p2c2_skip")
    prep2_check_addr(a, 230)
    a(f"buffer_load_dwordx3 v[232:234], v230, s[{SRD_WS}:{SRD_WS+3}], 0 offen sc1")
    a.label("L_p2c2_skip")

def attention(a):
    S3 = (aS[0], aS[1], aO)
    def rdK(t):
        buf = aKa if t % 2 == 0 else aKb
        a.ds(f"ds_read_b128 {vr(buf,4)}, v{aKA} offset:{KB + t*4096}", ("K", t))
    def Kf(t): return vr(aKa if t % 2 == 0 else aKb, 4)
    def s1(t):
        a.wait_lg(("K", t))
        c = vr(aB8, 16) if t == 8 else (vr(aB0, 16) if t == 0 else "0")
        a(f"v_mfma_f32_32x32x16_bf16 {vr(S3[t % 3],16)}, {Kf(t)}, {vr(aQ,4)}, {c}")
        if t >= 2: rdK(t - 2)
    a.ds(f"ds_read_b128 {vr(aQ,4)}, v{aQA}", "Q")
    rdK(8); rdK(7)
    a.wait_lg("Q")
    s1(8); s1(7)
    a.nop(6)
    for t in range(8, -1, -1):
        if t >= 2: s1(t - 2)
        elif t == 1: a.nop(2)
        else: a.nop(3)
        s = S3[t % 3]
        if t == 8:
            a.nop(2)
            a(f"v_max3_f32 v{aM}, v{s}, v{s+1}, v{s+2}")
            a(f"v_max_f32 v{aM}, v{aM}, v{s+3}")
            for p in range(2, 8): a(f"v_max3_f32 v{aM}, v{aM}, v{s+2*p}, v{s+2*p+1}")
        else:
            for p in range(8): a(f"v_max3_f32 v{aM}, v{aM}, v{s+2*p}, v{s+2*p+1}")
        if t >= 1:
            a(f"s_cmp_eq_u32 s{sTMIN}, {t}")
            a("s_cbranch_scc1 L_at_p1done")
    a.label("L_at_p1done")
    a.wait_lg0()
    if OPT.get("tsa"): ts(a, 26)
    a(f"v_mov_b32 v{aT}, v{aM}")
    rdK(8); rdK(7)
    a(f"v_permlane32_swap_b32 v{aM}, v{aT}")
    a(f"v_max_f32 v{aM}, v{aM}, v{aT}")
    a(f"v_sub_f32 v{aM}, 0, v{aM}")
    a.nop(8)
    for p in range(8): a(f"v_pk_add_f32 {vr(aC8+2*p,2)}, {vr(aB8+2*p,2)}, {vr(aM,2)} op_sel_hi:[1,0]")
    a(f"v_mov_b32 v{aT}, v{aM}")
    for p in range(8): a(f"v_pk_add_f32 {vr(aC0+2*p,2)}, {vr(aB0+2*p,2)}, {vr(aM,2)} op_sel_hi:[1,0]")
    for r in range(0, 16, 2): a(f"v_pk_mul_f32 {vr(aCm+r,2)}, {vr(aM,2)}, 1.0 op_sel_hi:[1,0]")
    def S(t): return aS[t % 2]
    def rdV(t):
        vb = aV[t % 2]
        a(f"s_mov_b64 exec, s[{sVMASK}:{sVMASK+1}]")
        a.ds(f"ds_read_b128 {vr(vb,4)}, v{aVA} offset:{t*4096}", ("V", t))
        a.ds(f"ds_read_b128 {vr(vb+4,4)}, v{aVA} offset:{t*4096 + 512}", ("V", t))
        a("s_mov_b64 exec, -1")
    def s2(t):
        a.wait_lg(("K", t))
        c = vr(aC8, 16) if t == 8 else (vr(aC0, 16) if t == 0 else vr(aCm, 16))
        a(f"v_mfma_f32_32x32x16_bf16 {vr(S(t),16)}, {Kf(t)}, {vr(aQ,4)}, {c}")
    s2(8)
    rdK(6)
    a(f"s_cmp_lt_u32 s{sW}, 4"); a("s_cbranch_scc1 L_at_vw0")
    if OPT.get("w2late", 1):
        a(f"s_cmp_lg_u32 s{sPAIR}, 0"); a("s_cbranch_scc1 L_at_vw6")
        a(f"s_cmp_eq_u32 s{sW}, 4"); a("s_cbranch_scc1 L_at_vw6")
        a("s_waitcnt vmcnt(4)"); a("s_branch L_at_vw1")
        a.label("L_at_vw6")
    nb = 11 if OPT.get("w2reg", 0) else 0
    if OPT.get("ww1", 1): a(f"s_waitcnt vmcnt({2 + nb})")
    else:
        a(f"s_cmp_eq_u32 s{sW}, 7"); a("s_cbranch_scc1 L_at_vw5")
        a(f"s_waitcnt vmcnt({1 + nb})"); a("s_branch L_at_vw1")
        a.label("L_at_vw5")
        a(f"s_waitcnt vmcnt({2 + nb})")
    a("s_branch L_at_vw1")
    a.label("L_at_vw0")
    a("s_waitcnt vmcnt(0)")
    a.label("L_at_vw1")
    a("s_barrier")
    if OPT.get("tsa"): ts(a, 27)
    if OPT.get("tsa"): ts(a, 28)
    rdV(8)
    a.nop(5)
    PR = {8: 3, 5: 2, 2: 1, 0: 0} if OPT.get("bal", 2) == 1 else ({8: 3, 6: 2, 3: 1, 1: 0} if OPT.get("bal", 2) == 2 else {})
    for t in range(8, -1, -1):
        s = S(t); vb = aV[t % 2]
        if t in PR: a(f"s_setprio {PR[t]}")
        for r in range(0, 4): a(f"v_exp_f32 v{s+r}, v{s+r}")
        if t >= 1:
            s2(t - 1)
            if t >= 3: rdK(t - 3)
        for r in range(4, 8): a(f"v_exp_f32 v{s+r}, v{s+r}")
        for p in range(4): a(f"v_cvt_pk_bf16_f32 v{aP+p}, v{s+2*p}, v{s+2*p+1}")
        a.wait_lg(("V", t))
        a(f"v_exp_f32 v{s+8}, v{s+8}")
        a(f"v_mfma_f32_32x32x16_bf16 {vr(aO,16)}, {vr(vb,4)}, {vr(aP,4)}, {'0' if t == 8 else vr(aO,16)}")
        for r in range(9, 16): a(f"v_exp_f32 v{s+r}, v{s+r}")
        if t >= 1: rdV(t - 1)
        for p in range(4, 8): a(f"v_cvt_pk_bf16_f32 v{aP+p}, v{s+2*p}, v{s+2*p+1}")
        if t >= 1: a(f"s_cmp_eq_u32 s{sTMIN}, {t}")
        a.nop(1 if t >= 1 else 2)
        a(f"v_mfma_f32_32x32x16_bf16 {vr(aO,16)}, {vr(vb+4,4)}, {vr(aP+4,4)}, {vr(aO,16)}")
        if t >= 1: a("s_cbranch_scc1 L_at_p2done")
    a.label("L_at_p2done")
    if OPT.get("bal", 2): a("s_setprio 0")
    if OPT.get("tsa"): ts(a, 7)
    a.wait_lg0()
    a.nop(12)
    a(f"v_rcp_f32 v{aT}, v{aO+8}")
    a.nop(1)
    for r in range(8): a(f"v_mul_f32 v{aO+r}, v{aO+r}, v{aT}")
    for p in range(4): a(f"v_cvt_pk_bf16_f32 v{aP+p}, v{aO+2*p}, v{aO+2*p+1}")
    a.nop(1)
    dual_store(a, "buffer_store_dwordx4", vr(aP, 4), vL16, SRD_WS, f"s{sO}")
    a.wait_all0()

def src_patterns(a, regs, t0, t1, t2):
    a(f"v_lshrrev_b32 v{t0}, 3, v{vLANE}")
    a(f"v_bfe_u32 v{t1}, v{vLANE}, 4, 2")
    a(f"v_and_b32 v{t2}, 1, v{t1}"); a(f"v_lshlrev_b32 v{t2}, 1, v{t2}"); a(f"v_lshrrev_b32 v{t1}, 1, v{t1}"); a(f"v_or_b32 v{t1}, v{t1}, v{t2}")
    a(f"v_bfe_u32 v{t2}, v{vLANE}, 1, 2"); a(f"v_xor_b32 v{t1}, v{t1}, v{t2}"); a(f"v_lshlrev_b32 v{t1}, 5, v{t1}")
    a(f"v_and_b32 v{t2}, 1, v{vLANE}"); a(f"v_lshl_add_u32 v{t1}, v{t2}, 4, v{t1}")
    for reg, stride in regs:
        a(f"s_mov_b32 s{sT0}, {stride}"); a(f"v_mul_lo_u32 v{t2}, v{t0}, s{sT0}"); a(f"v_add_u32 v{reg}, v{t2}, v{t1}")

pT0, pT1 = 40, 41
pF = 44
def prep_setup(a):
    a(f"s_mov_b32 s{sT2}, 0"); tr_addr(a, pT0, sT2, tmp=(60, 61, 62, 63))
    a(f"s_mov_b32 s{sT2}, 1"); tr_addr(a, pT1, sT2, tmp=(60, 61, 62, 63))
    a(f"s_lshl_b32 s{sT2}, s{sW}, 12"); a(f"s_add_u32 s{sT2}, s{sT2}, {PREP}")
    a(f"v_add_u32 v{pT0}, s{sT2}, v{pT0}"); a(f"v_add_u32 v{pT1}, s{sT2}, v{pT1}")
def prep_fetch(a, srdn, vpat, stride, ssrc, slot, tag):
    for o in range(2):
        a(f"s_lshl_b32 s{sT3}, s{sW}, 12"); a(f"s_add_u32 m0, s{sT3}, {PREP + slot*2048 + o*1024}")
        a(f"s_add_u32 s{sT0}, s{ssrc}, {o*8*stride}")
        a.vm(f"buffer_load_dwordx4 v{vpat}, s[{srdn}:{srdn+3}], s{sT0} offen lds", tag)
def prep_read(a, f, slot, tag):
    a.wait_vm(tag)
    for ct, ad in ((0, pT0), (1, pT1)):
        for h in range(2):
            a.ds(f"ds_read_b64_tr_b16 {vr(f+4*ct+2*h,2)}, v{ad} offset:{slot*2048 + h*1024}", "pf")
    a.wait_lg0()
def prep_store(a, f, sdst):
    for ct in range(2):
        a.vm(f"buffer_store_dwordx4 {vr(f+4*ct,4)}, v{vL16}, s[{SRD_WS}:{SRD_WS+3}], s{sdst} offen offset:{ct*1024} sc1", "pst")
def prep_emit(a, sdst, slot, tag):
    f = pF + 8 * slot
    prep_read(a, f, slot, tag)
    prep_store(a, f, sdst)
def w2_item(a, ssrc, sdst, ks_sgpr):
    a(f"s_lshl_b32 s{ssrc}, s{ks_sgpr}, 14"); a(f"s_lshl_b32 s{sT0}, s{sJ}, 7"); a(f"s_add_u32 s{ssrc}, s{ssrc}, s{sT0}")
    a(f"s_lshl_b32 s{sdst}, s{ks_sgpr}, 11"); a(f"s_mul_i32 s{sT0}, s{sJ}, {J_W2}"); a(f"s_add_u32 s{sdst}, s{sdst}, s{sT0}"); a(f"s_add_u32 s{sdst}, s{sdst}, {WS_W2P}")

def loader_prep(a):
    pA, pB = 88, 89
    a(f"s_cmp_eq_u32 s{sW}, 7"); a("s_cbranch_scc1 L_prep7")
    src_patterns(a, ((vPQ, 3072),), 16, 17, 18)
    a(f"s_sub_u32 s{sT1}, s{sW}, 4")
    a(f"s_add_u32 s{sT2}, s{sT1}, 1"); a(f"s_cmp_eq_u32 s{sT1}, 2"); a(f"s_cselect_b32 s{sT2}, 0, s{sT2}")
    a(f"s_mul_i32 s{pA}, s{sG}, {16*3072}"); a(f"s_lshl_b32 s{sT2}, s{sT2}, 10"); a(f"s_add_u32 s{pA}, s{pA}, s{sT2}")
    a(f"s_lshl_b32 s{sT2}, s{sJ}, 7"); a(f"s_add_u32 s{pA}, s{pA}, s{sT2}")
    prep_fetch(a, SRD_WQ, vPQ, 3072, pA, 0, "p0")
    if OPT.get("vtlb"):
        a(f"s_cmp_lg_u32 s{sW}, 4"); a("s_cbranch_scc1 L_vtlb")
        a(f"v_lshlrev_b32 v19, 21, v{vLANE}"); a(f"v_add_u32 v19, 0x1ff000, v19")
        a(f"s_mov_b64 exec, s[{sM16}:{sM16+1}]")
        a(f"s_mov_b32 s{sT2}, 0")
        touch(a, SRD_WS, 19, sT2, 0)
        a("s_mov_b64 exec, -1")
        a.label("L_vtlb")
    a(f"s_mul_i32 s{pB}, s{sJ}, {J_WQ}"); a(f"s_lshl_b32 s{sT2}, s{sG}, 11"); a(f"s_add_u32 s{pB}, s{pB}, s{sT2}")
    a(f"s_lshl_b32 s{sT2}, s{sT1}, 16"); a(f"s_add_u32 s{pB}, s{pB}, s{sT2}"); a(f"s_add_u32 s{pB}, s{pB}, {WS_WQP}")
    a("s_branch L_prep_go")
    a.label("L_prep7")
    a.vmq = []
    src_patterns(a, ((vPO, 1024),), 16, 17, 18)
    a(f"s_lshl_b32 s{pA}, s{sG}, 14"); a(f"s_lshl_b32 s{sT2}, s{sJ}, 7"); a(f"s_add_u32 s{pA}, s{pA}, s{sT2}")
    prep_fetch(a, SRD_WO, vPO, 1024, pA, 0, "p0")
    a(f"s_lshl_b32 s{pB}, s{sG}, 11"); a(f"s_lshl_b32 s{sT2}, s{sJ}, 16"); a(f"s_add_u32 s{pB}, s{pB}, s{sT2}"); a(f"s_add_u32 s{pB}, s{pB}, {WS_WOP}")
    a.label("L_prep_go")
    prep_setup(a)
    if OPT["ts"]:
        a.wait_vm("p0"); ts(a, 1)
    prep_emit(a, pB, 0, "p0")
    ts(a, 2)
    a.vmq = []

qF = 212
sQ1, sQ2 = 92, 93
def prep2_fetch(a):
    pA, pC = 88, 89
    a(f"s_cmp_eq_u32 s{sW}, 4"); a("s_cbranch_scc1 L_p2f_skip")
    src_patterns(a, ((vP1, 2752), (vPO, 1024)), 16, 17, 18)
    a(f"s_sub_u32 s{sT1}, s{sW}, 5")
    a(f"s_mul_i32 s{pA}, s{sG}, {16*2752}"); a(f"s_lshl_b32 s{sT2}, s98, 5"); a(f"s_add_u32 s{pA}, s{pA}, s{sT2}")
    a(f"s_lshl_b32 s{sT2}, s{sT1}, 7"); a(f"s_add_u32 s{pA}, s{pA}, s{sT2}")
    a(f"s_mul_i32 s{sQ1}, s{sJ}, {J_WQ}"); a(f"s_lshl_b32 s{sT2}, s{sG}, 11"); a(f"s_add_u32 s{sQ1}, s{sQ1}, s{sT2}")
    a(f"s_lshl_b32 s{sT2}, s{sT1}, 16"); a(f"s_add_u32 s{sQ1}, s{sQ1}, s{sT2}"); a(f"s_add_u32 s{sQ1}, s{sQ1}, {WS_W1P}")
    prep_fetch(a, SRD_W1, vP1, 2752, pA, 0, "q0")
    a(f"s_lshl_b32 s{sT1}, s{sT1}, 5"); a(f"s_add_u32 s{sT1}, s{sT1}, s{sG}")
    w2_item(a, pC, sQ2, sT1)
    a(f"s_cmp_lt_u32 s{sT1}, 86"); a(f"s_cselect_b32 s{sQ2}, s{sQ2}, 0x7ffff000")
    prep_fetch(a, SRD_W2, vPO, 1024, pC, 1, "q1")
    a.label("L_p2f_skip")
    a.vmq = []
def prep2_emit(a):
    a(f"s_cmp_eq_u32 s{sW}, 4"); a("s_cbranch_scc1 L_p2r_skip")
    a("s_waitcnt vmcnt(0)")
    for slot in range(2):
        for ct, ad in ((0, pT0), (1, pT1)):
            for h in range(2):
                a(f"ds_read_b64_tr_b16 {vr(qF+8*slot+4*ct+2*h,2)}, v{ad} offset:{slot*2048 + h*1024}")
    a("s_waitcnt lgkmcnt(0)")
    for q, sd in (() if OPT.get("w1st") is not None else ((0, sQ1),)) if OPT.get("w2late", 1) else ((0, sQ1), (1, sQ2)):
        for ct in range(2):
            a(f"buffer_store_dwordx4 {vr(qF+8*q+4*ct,4)}, v{vL16}, s[{SRD_WS}:{SRD_WS+3}], s{sd} offen offset:{ct*1024} sc1")
    a.label("L_p2r_skip")
def w1_mid_store(a):
    a(f"s_cmp_eq_u32 s{sW}, 4"); a("s_cbranch_scc1 L_w1m_skip")
    for ct in range(2):
        a(f"buffer_store_dwordx4 {vr(qF+4*ct,4)}, v{vL16}, s[{SRD_WS}:{SRD_WS+3}], s{sQ1} offen offset:{ct*1024} sc1")
    a.label("L_w1m_skip")
def w2_late_store(a):
    a(f"s_cmp_lg_u32 s{sPAIR}, 0"); a("s_cbranch_scc1 L_w2l_skip")
    a(f"s_cmp_eq_u32 s{sW}, 4"); a("s_cbranch_scc1 L_w2l_skip")
    for ct in range(2):
        a(f"buffer_store_dwordx4 {vr(qF+8+4*ct,4)}, v{vL16}, s[{SRD_WS}:{SRD_WS+3}], s{sQ2} offen offset:{ct*1024} sc1")
    a.label("L_w2l_skip")
def prep_signal3(a):
    a(f"s_cmp_lg_u32 s{sPAIR}, 0"); a("s_cbranch_scc1 L_sig3_skip")
    a(f"s_cmp_lg_u32 s{sW}, 4"); a("s_cbranch_scc1 L_sig3_skip")
    a(f"s_add_u32 s{sVAL}, s{sEP}, 3")
    a(f"s_lshl_b32 s{sT2}, s{sJ}, 5"); a(f"s_add_u32 s{sT2}, s{sT2}, s{sG}"); a(f"s_lshl_b32 s{sT2}, s{sT2}, 7"); a(f"s_add_u32 s{sT2}, s{sT2}, {WS_PREPF}")
    a(f"v_mov_b32 v20, s{sVAL}"); a(f"v_mov_b32 v22, s{sT2}")
    a("s_mov_b64 exec, 1")
    a(f"buffer_store_dword v20, v22, s[{SRD_WS}:{SRD_WS+3}], 0 offen sc1")
    a("s_mov_b64 exec, -1")
    a.label("L_sig3_skip")
def prep_check3_issue(a):
    _prep2_addr(a)
    a.vm(f"buffer_load_dword v27, v26, s[{SRD_WS}:{SRD_WS+3}], 0 offen sc1", "s3")
def prep_check3(a):
    a.wait_vm("s3")
    a(f"s_add_u32 s{sVAL}, s{sEP}, 3")
    a(f"v_subrev_u32 v27, s{sVAL}, v27")
    a(f"v_cmp_le_u32 vcc, 8, v27")
    a("s_nop 1")
    a("s_cbranch_vccz L_s3_ok")
    poll_loop(a, "s3p", 26, 27)
    a.label("L_s3_ok")

def loader_prologue(a):
    t0, t1, t2 = 16, 17, 18
    a(f"s_mul_i32 s{sT0}, s{sJ}, {J_WQ}"); a(f"s_add_u32 s{sT0}, s{sT0}, s{sI1K}")
    a(f"s_add_u32 s{sWQb}, s{sT0}, {WS_WQP}"); a(f"s_add_u32 s{sW1b}, s{sT0}, {WS_W1P}")
    a(f"s_lshl_b32 s{sWOb}, s{sJ}, 16"); a(f"s_add_u32 s{sWOb}, s{sWOb}, s{sI1K}"); a(f"s_add_u32 s{sWOb}, s{sWOb}, {WS_WOP}")
    a(f"s_mul_i32 s{sW2b}, s{sJ}, {J_W2}"); a(f"s_add_u32 s{sW2b}, s{sW2b}, s{sI1K}"); a(f"s_add_u32 s{sW2b}, s{sW2b}, {WS_W2P}")
    a(f"v_add_u32 v{vLI[0]}, s{sI1K}, v{vL16}"); three_bases(a, vLI)
    a(f"s_and_b32 s{sT0}, s{sI}, 1"); a(f"s_lshr_b32 s{sT1}, s{sI}, 1")
    a(f"s_lshl_b32 s{sXA}, s{sG}, 16"); a(f"s_lshl_b32 s{sT2}, s{sT0}, 15"); a(f"s_add_u32 s{sXA}, s{sXA}, s{sT2}")
    a(f"s_lshl_b32 s{sT2}, s{sT1}, 10"); a(f"s_add_u32 s{sXA}, s{sXA}, s{sT2}"); a(f"s_add_u32 s{sXA}, s{sXA}, {WS_XA}")
    a(f"s_mov_b32 s{sTT}, s{sT0}")
    a(f"s_sub_i32 s{sKVr}, s{sG}, 4"); a(f"s_lshl_b32 s{sKVr}, s{sKVr}, 3"); a(f"s_add_i32 s{sKVr}, s{sKVr}, s{sJ}"); a(f"s_lshl_b32 s{sKVr}, s{sKVr}, 14")
    a(f"s_add_i32 s{sKVr}, s{sKVr}, s{sI1K}"); a(f"s_add_i32 s{sKVr}, s{sKVr}, {WS_KV}")
    a(f"s_lshl_b32 s{sT0}, s{sG}, 7")
    a(f"v_and_b32 v{t0}, 7, v{vLANE}"); a(f"v_lshlrev_b32 v{t0}, 2, v{t0}"); a(f"v_add_u32 v{vPOLL}, s{sT0}, v{t0}")
    a(f"s_lshl_b32 s{sT1}, s{sJ}, 2"); a(f"s_add_u32 s{sT0}, s{sT0}, s{sT1}"); a(f"v_mov_b32 v{vFLAG}, s{sT0}")
    a(f"v_lshlrev_b32 v{vSTA}, 6, v{vLANE}")
    a(f"v_and_b32 v{t0}, 31, v{vLANE}"); a(f"v_lshlrev_b32 v{t0}, 2, v{t0}"); a(f"v_lshrrev_b32 v{t1}, 5, v{vLANE}"); a(f"v_lshl_add_u32 v{t0}, v{t1}, 8, v{t0}")
    a(f"s_lshl_b32 s{sT0}, s{sTT}, 7"); a(f"s_add_u32 s{sT0}, s{sT0}, {ST_MEAN}"); a(f"v_add_u32 v{vSTW}, s{sT0}, v{t0}")
    a(f"s_mov_b32 s{sC1}, {f2u(1.0/512.0)}"); a(f"s_mov_b32 s{sC2}, {f2u(EPS)}")

def wq_unit(a, u): dma(a, SRD_WS, vL16, sWQb, u * 4096, slot_p1(u), ("W", u), "sc1")
def w1_unit(a, u): dma(a, SRD_WS, vL16, sW1b, u * 4096, slot_p4(u), ("W", u), "sc1")
def wo_unit(a, m): dma(a, SRD_WS, vL16, sWOb, m * 4096, WOB + 4 * K * m, ("WO", m), "sc1")
def w2_unit(a, m): dma(a, SRD_WS, vL16, sW2b, m * 4096, slot_p5(m), ("W2", m), "sc1")
def w2_from_regs(a, m):
    li = LdsBase(vLI)
    r, off = li.at(slot_p5(m))
    a.ds(f"ds_write_b128 v{r}, {vr(212 + 4*(m - 32), 4)} offset:{off}", ("w2r", m))
def a_pair(a, m, abase):
    dma(a, SRD_WS, vL16, sXA, m * 2048, abase + m * 4096, ("A", m), "sc1")

PV = (80, 81, 82, 83, 84, 85)
def poll_loop(a, name, vaddr, vdat):
    lab = f"L_{name}"
    a(f"s_mov_b32 s{sSPIN}, {OPT['spin']}")
    a.label(lab)
    a(f"buffer_load_dword v{vdat}, v{vaddr}, s[{SRD_WS}:{SRD_WS+3}], 0 offen sc1")
    a("s_waitcnt vmcnt(0)")
    a(f"v_subrev_u32 v{vdat}, s{sVAL}, v{vdat}")
    a(f"v_cmp_le_u32 vcc, 8, v{vdat}")
    a(f"s_sub_u32 s{sSPIN}, s{sSPIN}, 1")
    a(f"s_cbranch_scc1 {lab}_x")
    a(f"s_cbranch_vccnz {lab}")
    a.label(f"{lab}_x")
def poll(a, name, vaddr): poll_loop(a, name, vaddr, PV[0])

def publish_pre(a, ev):
    vf, vp, vv = PV[1], PV[2], PV[3]
    a(f"s_lshl_b32 s{sT1}, s{sG}, 7"); a(f"s_lshl_b32 s{sT2}, s{sJ}, 2"); a(f"s_add_u32 s{sT2}, s{sT2}, s{sT1}")
    a(f"s_lshl_b32 s{sVAL}, s{sPAIR}, 2"); a(f"s_add_u32 s{sVAL}, s{sVAL}, {ev}"); a(f"s_add_u32 s{sVAL}, s{sVAL}, s{sEP}")
    a(f"v_mov_b32 v{vf}, s{sT2}"); a(f"v_mov_b32 v{vv}, s{sVAL}")
    a(f"v_and_b32 v{vp}, 7, v{vLANE}"); a(f"v_lshlrev_b32 v{vp}, 2, v{vp}"); a(f"v_add_u32 v{vp}, s{sT1}, v{vp}")
    a(f"s_mov_b32 s{sSPIN}, {OPT['spin']}")
def publish_local(a, name, ev, pre_done=False):
    vf, vp, vv = PV[1], PV[2], PV[3]
    if not pre_done: publish_pre(a, ev)
    a(f"s_cmp_lg_u32 s{sW}, 0")
    a(f"s_cbranch_scc1 L_{name}_skip")
    a("s_mov_b64 exec, 1")
    a(f"s_cmp_eq_u32 s{sFAST}, 0")
    a(f"s_cbranch_scc1 L_{name}_sl")
    a(f"buffer_store_dword v{vv}, v{vf}, s[{SRD_WS}:{SRD_WS+3}], 0 offen")
    a(f"s_branch L_{name}_st")
    a.label(f"L_{name}_sl")
    a(f"buffer_store_dword v{vv}, v{vf}, s[{SRD_WS}:{SRD_WS+3}], 0 offen sc1")
    a.label(f"L_{name}_st")
    a("s_mov_b64 exec, -1")
    lab = f"L_{name}_p"
    a.label(lab)
    a(f"buffer_load_dword v{PV[0]}, v{vp}, s[{SRD_WS}:{SRD_WS+3}], 0 offen sc1")
    a("s_waitcnt vmcnt(0)")
    a(f"v_subrev_u32 v{PV[0]}, s{sVAL}, v{PV[0]}")
    a(f"v_cmp_le_u32 vcc, 8, v{PV[0]}")
    a(f"s_sub_u32 s{sSPIN}, s{sSPIN}, 1")
    a(f"s_cbranch_scc1 {lab}_x")
    a(f"s_cbranch_vccnz {lab}")
    a.label(f"{lab}_x")
    a.label(f"L_{name}_skip")

KVP = (20, 21, 22, 23, 24)
def kv_flag_store(a, wave, which, regs, name):
    v1_, v2_ = regs
    a(f"s_cmp_lg_u32 s{sW}, {wave}")
    a(f"s_cbranch_scc1 L_{name}_skip")
    a(f"s_lshl_b32 s{sT1}, s{sG}, 3"); a(f"s_add_u32 s{sT1}, s{sT1}, s{sJ}"); a(f"s_lshl_b32 s{sT1}, s{sT1}, 7"); a(f"s_add_u32 s{sT1}, s{sT1}, {WS_FLAGR + 4*which}")
    a(f"s_add_u32 s{sVAL}, s{sPAIRN}, 1"); a(f"s_add_u32 s{sVAL}, s{sVAL}, s{sEP}")
    a(f"v_mov_b32 v{v1_}, s{sVAL}"); a(f"v_mov_b32 v{v2_}, s{sT1}")
    a(f"s_mov_b64 s[{sEXEC}:{sEXEC+1}], exec"); a("s_mov_b64 exec, 1")
    a(f"buffer_store_dword v{v1_}, v{v2_}, s[{SRD_WS}:{SRD_WS+3}], 0 offen sc1")
    a(f"s_mov_b64 exec, s[{sEXEC}:{sEXEC+1}]")
    a.label(f"L_{name}_skip")

def kv_pred_addr(a, v2_, v3_, which):
    a(f"v_and_b32 v{v2_}, 3, v{vLANE}"); a(f"v_add_u32 v{v2_}, 1, v{v2_}"); a(f"v_sub_u32 v{v2_}, s{sG}, v{v2_}")
    a(f"v_cmp_gt_i32 vcc, 0, v{v2_}"); a(f"v_mov_b32 v{v3_}, s{sG}"); a("s_nop 1"); a(f"v_cndmask_b32 v{v2_}, v{v2_}, v{v3_}, vcc")
    a(f"v_lshlrev_b32 v{v2_}, 3, v{v2_}"); a(f"v_add_u32 v{v2_}, s{sJ}, v{v2_}"); a(f"v_lshlrev_b32 v{v2_}, 7, v{v2_}"); a(f"v_add_u32 v{v2_}, {WS_FLAGR + 4*which}, v{v2_}")

def poll_r(a, name, vaddr, vdat): poll_loop(a, name, vaddr, vdat)

def die_check_issue(a):
    a(f"v_and_b32 v24, 7, v{vLANE}"); a(f"v_lshlrev_b32 v24, 5, v24"); a(f"v_add_u32 v24, s{sG}, v24")
    a(f"v_lshlrev_b32 v24, 7, v24"); a(f"v_add_u32 v24, {WS_PREPF}, v24")
    a.vm(f"buffer_load_dwordx2 v[28:29], v24, s[{SRD_WS}:{SRD_WS+3}], 0 offen sc1", "die")
def die_check(a):
    a.wait_vm("die")
    a(f"s_cmp_lg_u32 s{sW}, 4"); a("s_cbranch_scc1 L_die_skip")
    a(f"s_add_u32 s{sVAL}, s{sEP}, 1")
    a(f"s_mov_b32 s{sSPIN}, {OPT['spin']}")
    a.label("L_die_loop")
    a(f"v_subrev_u32 v28, s{sVAL}, v28")
    a(f"v_cmp_le_u32 vcc, 8, v28")
    a(f"s_sub_u32 s{sSPIN}, s{sSPIN}, 1")
    a("s_cbranch_scc1 L_die_x")
    a("s_cbranch_vccz L_die_x")
    a(f"buffer_load_dwordx2 v[28:29], v24, s[{SRD_WS}:{SRD_WS+3}], 0 offen sc1")
    a("s_waitcnt vmcnt(0)")
    a("s_branch L_die_loop")
    a.label("L_die_x")
    a(f"s_getreg_b32 s{sT2}, hwreg(HW_REG_XCC_ID, 0, 3)")
    a(f"v_cmp_ne_u32 vcc, s{sT2}, v29")
    a("s_nop 4")
    a(f"s_cmp_eq_u64 vcc, 0")
    a(f"s_cselect_b32 s{sT1}, 1, 0")
    if OPT.get("slow"): a(f"s_mov_b32 s{sT1}, 0")
    a(f"v_mov_b32 v28, s{sT1}"); a(f"v_mov_b32 v29, {MODEW}")
    a(f"ds_write_b32 v29, v28")
    a("s_waitcnt lgkmcnt(0)")
    a.label("L_die_skip")

def kv_wait_k(a, ph):
    v0_, v1_, v2_, v3_, v4_ = KVP
    a(f"s_cmp_lg_u32 s{sW}, 4")
    a(f"s_cbranch_scc1 L_{ph}_kw_skip")
    kv_pred_addr(a, v2_, v3_, 0)
    a(f"s_add_u32 s{sVAL}, s{sPAIRN}, 1"); a(f"s_add_u32 s{sVAL}, s{sVAL}, s{sEP}")
    poll_r(a, f"{ph}_kp", v2_, v0_)
    a.label(f"L_{ph}_kw_skip")

def kv_wait_v(a):
    v0_, v1_, v2_, v3_, v4_ = KVP
    a(f"s_cmp_lg_u32 s{sW}, 4")
    a(f"s_cbranch_scc1 L_vw_skip")
    kv_pred_addr(a, v2_, v3_, 1)
    a(f"s_add_u32 s{sVAL}, s{sPAIR}, 1"); a(f"s_add_u32 s{sVAL}, s{sVAL}, s{sEP}")
    poll_r(a, "vp", v2_, v0_)
    a.label(f"L_vw_skip")

def kv_dma(a, part):
    a(f"s_lshl_b32 s{sT2}, s{sPAIR}, 22"); a(f"s_add_i32 s{sT2}, s{sT2}, s{sKVr}")
    for b in range(3, -1, -1):
        lab = f"L_kv{part}{b}"
        a(f"s_cmp_lt_u32 s{sG}, {4-b}")
        a(f"s_cbranch_scc1 {lab}")
        for h in range(2):
            dma(a, SRD_WS, vL16, sT2, b * 8 * 16384 + part * 8192 + h * 4096, (KB if part == 0 else VB) + b * 8192 + h * 4096, "KV", "nt sc1" if OPT.get("nt", 0) & 4 else "sc1")
        a.label(lab)

def xcd_touch_ws(a, base, share, npieces, vpat):
    a(f"s_lshr_b32 s{sT1}, s2, 3"); a(f"s_and_b32 s{sT1}, s{sT1}, 31"); a(f"s_mul_i32 s{sT1}, s{sT1}, {share}")
    a(f"s_lshl_b32 s{sT2}, s{sI}, 13"); a(f"s_add_u32 s{sT1}, s{sT1}, s{sT2}")
    touch(a, SRD_WS, vpat, sT1, base)
    a(f"s_cmp_ge_u32 s{sI}, 2"); a("s_cbranch_scc1 L_xt_skip")
    touch(a, SRD_WS, vpat, sT1, base + 4 * 8192)
    a.label("L_xt_skip")

def xcd_touch(a, srdn, share, npieces, vpat, dst):
    a(f"s_lshr_b32 s{sT1}, s2, 3"); a(f"s_and_b32 s{sT1}, s{sT1}, 31"); a(f"s_mul_i32 s{sT1}, s{sT1}, {share}")
    a(f"s_lshl_b32 s{sT2}, s{sI}, 13"); a(f"s_add_u32 s{sT1}, s{sT1}, s{sT2}")
    for p in range(0, npieces, 4): touch(a, srdn, vpat, sT1, p * 8192, dst)

def loader_stats_issue(a):
    a(f"s_lshl_b32 s{sT1}, s{sTT}, 12"); a(f"s_add_u32 s{sT1}, s{sT1}, s{sSTATS}")
    for q in range(4):
        a.vm(f"buffer_load_dwordx4 {vr(32+4*q,4)}, v{vL16}, s[{SRD_WS}:{SRD_WS+3}], s{sT1} offen offset:{1024*q} sc1", "ST")
def loader_stats_items(a, double_ln):
    I = lambda txt: (lambda: a(txt))
    s1 = [lambda: a.wait_vm("ST")] + [I(f"v_add_f32 v{32+e}, v{32+e}, v{40+e}") for e in range(8)]
    s2 = [I(f"v_add_f32 v{32+e}, v{32+e}, v{36+e}") for e in range(4)] + [I("v_add_f32 v32, v32, v34"), I("v_add_f32 v33, v33, v35"), I("v_add_f32 v32, v32, v33")]
    t0, t1, t2, t3, v = 48, 49, 50, 51, 32
    def f1():
        a(f"v_mov_b32 v{t0}, v{v}")
        a(f"v_cmp_gt_u32 s[{sEXEC}:{sEXEC+1}], 32, v{vLANE}")
        a.nop(1)
        a(f"v_permlane32_swap_b32 v{v}, v{t0}")
        a(f"v_mul_f32 v{v}, s{sC1}, v{v}"); a(f"v_mul_f32 v{t0}, s{sC1}, v{t0}")
        a(f"v_fma_f32 v{t0}, -v{v}, v{v}, v{t0}"); a(f"v_max_f32 v{t0}, 0, v{t0}"); a(f"v_add_f32 v{t1}, s{sC2}, v{t0}")
        a(f"v_rsq_f32 v{t1}, v{t1}")
        a.nop(1)
    def f2():
        if double_ln:
            a(f"v_mul_f32 v{t2}, v{t1}, v{t1}"); a(f"v_mul_f32 v{t2}, v{t2}, v{t0}"); a(f"v_add_f32 v{t2}, s{sC2}, v{t2}")
            a(f"v_rsq_f32 v{t2}, v{t2}")
            a.nop(1)
            a(f"v_mul_f32 v{t1}, v{t1}, v{t2}")
        a(f"v_cndmask_b32 v{t3}, v{t1}, v{v}, s[{sEXEC}:{sEXEC+1}]")
        a.ds(f"ds_write_b32 v{vSTW}, v{t3}", "stw")
    return {6: s1 + s2, 7: [f1, f2]}

def prep_signal(a):
    v0_, v1_, v2_ = 20, 21, 22
    a(f"s_cmp_lg_u32 s{sW}, 4"); a("s_cbranch_scc1 L_sig_skip0")
    a(f"s_getreg_b32 s{sT1}, hwreg(HW_REG_XCC_ID, 0, 3)")
    a(f"s_add_u32 s{sVAL}, s{sEP}, 1")
    a(f"s_lshl_b32 s{sT2}, s{sJ}, 5"); a(f"s_add_u32 s{sT2}, s{sT2}, s{sG}"); a(f"s_lshl_b32 s{sT2}, s{sT2}, 7"); a(f"s_add_u32 s{sT2}, s{sT2}, {WS_PREPF}")
    a(f"v_mov_b32 v{v0_}, s{sVAL}"); a(f"v_mov_b32 v{v0_+1}, s{sT1}"); a(f"v_mov_b32 v{v2_}, s{sT2}")
    a(f"s_mov_b64 s[{sEXEC}:{sEXEC+1}], exec"); a("s_mov_b64 exec, 1")
    a(f"buffer_store_dwordx2 v[{v0_}:{v0_+1}], v{v2_}, s[{SRD_WS}:{SRD_WS+3}], 0 offen sc1")
    a(f"s_mov_b64 exec, s[{sEXEC}:{sEXEC+1}]")
    a.label("L_sig_skip0")
def prep_wait(a):
    v2_ = 22
    a(f"s_cmp_lg_u32 s{sW}, 4"); a("s_cbranch_scc1 L_sig_skip")
    a(f"s_add_u32 s{sVAL}, s{sEP}, 1")
    a(f"v_and_b32 v{v2_}, 31, v{vLANE}"); a(f"s_lshl_b32 s{sT2}, s{sJ}, 5"); a(f"v_add_u32 v{v2_}, s{sT2}, v{v2_}")
    a(f"v_lshlrev_b32 v{v2_}, 7, v{v2_}"); a(f"v_add_u32 v{v2_}, {WS_PREPF}, v{v2_}")
    a(f"s_mov_b32 exec_hi, 0")
    poll_loop(a, "sig", v2_, 23)
    a("s_mov_b64 exec, -1")
    a.label("L_sig_skip")
    ts(a, 19)
    a.bar("prepgo")

def prep_signal2(a):
    a(f"s_cmp_lg_u32 s{sW}, 4"); a("s_cbranch_scc1 L_sig2_skip")
    a(f"s_add_u32 s{sVAL}, s{sEP}, 2")
    a(f"s_lshl_b32 s{sT2}, s{sJ}, 5"); a(f"s_add_u32 s{sT2}, s{sT2}, s{sG}"); a(f"s_lshl_b32 s{sT2}, s{sT2}, 7"); a(f"s_add_u32 s{sT2}, s{sT2}, {WS_PREPF}")
    a(f"v_mov_b32 v20, s{sVAL}"); a(f"v_mov_b32 v22, s{sT2}")
    a(f"s_mov_b64 s[{sEXEC}:{sEXEC+1}], exec"); a("s_mov_b64 exec, 1")
    a(f"buffer_store_dword v20, v22, s[{SRD_WS}:{SRD_WS+3}], 0 offen sc1")
    a(f"s_mov_b64 exec, s[{sEXEC}:{sEXEC+1}]")
    a.label("L_sig2_skip")
def _prep2_addr(a):
    a(f"v_and_b32 v26, 31, v{vLANE}"); a(f"s_lshl_b32 s{sT2}, s{sJ}, 5"); a(f"v_add_u32 v26, s{sT2}, v26")
    a(f"v_lshlrev_b32 v26, 7, v26"); a(f"v_add_u32 v26, {WS_PREPF}, v26")
def prep_check2_issue(a):
    _prep2_addr(a)
    a(f"s_mov_b32 exec_hi, 0")
    a.vm(f"buffer_load_dword v27, v26, s[{SRD_WS}:{SRD_WS+3}], 0 offen sc1", "s2")
    a("s_mov_b64 exec, -1")
def prep_check2(a):
    a.wait_vm("s2")
    a(f"s_add_u32 s{sVAL}, s{sEP}, 2")
    a(f"s_mov_b32 exec_hi, 0")
    a(f"v_subrev_u32 v27, s{sVAL}, v27")
    a(f"v_cmp_le_u32 vcc, 8, v27")
    a("s_cbranch_vccz L_s2_ok")
    poll_loop(a, "s2p", 26, 27)
    a.label("L_s2_ok")
    a("s_mov_b64 exec, -1")

cFB, cACC, cSEL, cAD = (64, 68, 72, 76), 80, 84, 88
def colsum_setup(a, csf):
    a(f"v_bfe_u32 v89, v{vLANE}, 4, 1"); a(f"v_and_b32 v90, 15, v{vLANE}")
    a(f"v_cmp_eq_u32 s[{sEXEC}:{sEXEC+1}], v89, v90")
    a(f"v_mov_b32 v91, 0x3f803f80"); a(f"v_mov_b32 v92, 0")
    a.nop(1)
    for q in range(4): a(f"v_cndmask_b32 v{cSEL+q}, v92, v91, s[{sEXEC}:{sEXEC+1}]")
    a(f"s_lshl_b32 s{sT1}, s{sI}, 7"); a(f"s_add_u32 s{sT1}, s{sT1}, {csf}")
    a(f"v_lshlrev_b32 v{cAD}, 2, v{vLANE}"); a(f"v_add_u32 v{cAD}, s{sT1}, v{cAD}")
def colsum_read(a, slot, st):
    li = LdsBase(vLI)
    for q in range(4):
        r, off = li.at(slot(2*st + (q >> 1)) + (q & 1) * 2048)
        a(f"ds_read_b128 {vr(cFB[q],4)}, v{r} offset:{off}")
def colsum_acc(a, st):
    a("s_waitcnt lgkmcnt(0)")
    first = st % 8 == 0
    for q in range(4):
        a(f"v_mfma_f32_16x16x32_bf16 {vr(cACC,4)}, {vr(cSEL,4)}, {vr(cFB[q],4)}, {'0' if (first and q == 0) else vr(cACC,4)}")
def colsum_flush(a, T):
    a.nop(8)
    a(f"s_mov_b64 exec, s[{sM16}:{sM16+1}]")
    a(f"ds_write_b32 v{cAD}, v{cACC} offset:{T*256}"); a(f"ds_write_b32 v{cAD}, v{cACC+1} offset:{T*256 + 64}")
    a("s_mov_b64 exec, -1")
def colsum_hooks(a, slot, st, ph):
    lab = f"L_{ph}_cs{st}_{len(a.L)}"
    a(f"s_cmp_ge_u32 s{sI}, 2"); a(f"s_cbranch_scc1 {lab}")
    if st >= 1:
        colsum_acc(a, st - 1)
        if (st - 1) % 8 == 7: colsum_flush(a, (st - 1) // 8)
    colsum_read(a, slot, st)
    if st == 23:
        colsum_acc(a, 23); colsum_flush(a, 2); a("s_waitcnt lgkmcnt(0)")
    a.label(lab)

def colsum4_setup(a):
    colsum_setup(a, CSF_Q)
    a(f"s_and_b32 s{sT1}, s{sI}, 1"); a(f"s_lshl_b32 s{sT1}, s{sT1}, 7")
    a(f"v_lshlrev_b32 v{cAD}, 2, v{vLANE}"); a(f"v_add_u32 v{cAD}, s{sT1}, v{cAD}")
    a(f"v_add_u32 v{cAD+1}, {STP}, v{cAD}"); a(f"v_add_u32 v{cAD}, {CSF_Q}, v{cAD}")
def colsum4_hooks(a, slot, st, ph):
    li = LdsBase(vLI)
    def rd(st_):
        for q in range(2):
            r, off = li.at(slot(2*st_ + q))
            a(f"ds_read_b128 {vr(cFB[q],4)}, v{r} offset:{off}")
    def acc(st_):
        a("s_waitcnt lgkmcnt(0)")
        for q in range(2):
            a(f"v_mfma_f32_16x16x32_bf16 {vr(cACC,4)}, {vr(cSEL,4)}, {vr(cFB[q],4)}, {'0' if (st_ % 8 == 0 and q == 0) else vr(cACC,4)}")
    def put(T):
        lab = f"L_{ph}_cp{T}"
        a.nop(8)
        a(f"s_cmp_lt_u32 s{sI}, 2"); a(f"s_cbranch_scc1 {lab}")
        a(f"s_mov_b64 exec, s[{sM16}:{sM16+1}]")
        a(f"ds_write_b32 v{cAD+1}, v{cACC}"); a(f"ds_write_b32 v{cAD+1}, v{cACC+1} offset:64")
        a("s_mov_b64 exec, -1")
        a.label(lab)
        a(f"v_mov_b32 v{cAD+2}, v{cACC}"); a(f"v_mov_b32 v{cAD+3}, v{cACC+1}")
    def get(T):
        lab = f"L_{ph}_cg{T}"
        a(f"s_cmp_ge_u32 s{sI}, 2"); a(f"s_cbranch_scc1 {lab}")
        a(f"s_mov_b64 exec, s[{sM16}:{sM16+1}]")
        a(f"ds_read_b32 v{cAD+4}, v{cAD+1}"); a(f"ds_read_b32 v{cAD+5}, v{cAD+1} offset:64")
        a("s_waitcnt lgkmcnt(0)")
        a(f"v_add_f32 v{cAD+2}, v{cAD+2}, v{cAD+4}"); a(f"v_add_f32 v{cAD+3}, v{cAD+3}, v{cAD+5}")
        a(f"ds_write_b32 v{cAD}, v{cAD+2} offset:{T*256}"); a(f"ds_write_b32 v{cAD}, v{cAD+3} offset:{T*256 + 64}")
        a("s_mov_b64 exec, -1")
        a.label(lab)
    if st >= 1:
        acc(st - 1)
        if (st - 1) % 8 == 7: put((st - 1) // 8)
    if st >= 9 and (st - 1) % 8 == 0: get((st - 9) // 8)
    rd(st)
    if st == 23:
        acc(23); put(2); a("s_waitcnt lgkmcnt(0)")
        a.bar(f"{ph}_cs")
        get(2); a("s_waitcnt lgkmcnt(0)")

LA = OPT.get('la', 6)
def gemm192_loader(a, ph, unit, slot, abase, double_ln, extra, colsum=None):
    if colsum is not None: colsum_setup(a, colsum)
    for m in range(2 * LA): a_pair(a, m, abase)
    nxt = 22
    extra = list(extra)
    items = loader_stats_items(a, double_ln)
    for st in range(24):
        need = []
        if st < 8: need += [("A", 2*st), ("A", 2*st + 1)]
        need += [("W", 2*st), ("W", 2*st + 1)]
        a.wait_vm(need)
        if st == 9 or (colsum is not None and st == 17): a.wait_lg0()
        a.bar(f"{ph}_B{st}")
        if st == 22 and ph.startswith("p1"): kv_flag_store(a, 4, 0, (KVP[1], KVP[2]), ph + "_kf")
        if OPT.get("ts3") == ph: ts(a, 36 + st)
        elif st in (0, 4, 8, 16) and not OPT.get("ts3"): ts(a, (20 if ph.startswith("p1") else 30) + {0: 0, 4: 5, 8: 1, 16: 2}[st])
        if colsum is not None and OPT.get("w2late", 1):
            if st == 8: prep_check3_issue(a)
            if st == 14: prep_check3(a)
        if colsum is not None: colsum_hooks(a, slot, st, ph)
        if st + LA < 8:
            a_pair(a, 2*(st + LA), abase); a_pair(a, 2*(st + LA) + 1, abase)
        elif st == 8 - LA:
            loader_stats_issue(a)
        elif nxt < 48:
            unit(a, nxt); unit(a, nxt + 1); nxt += 2
        else:
            for _ in range(2):
                if extra: extra.pop(0)()
        for f in items.get(st, []): f()
    a.bar(f"{ph}_end")
    while extra: extra.pop(0)()

def p1_loader(a, v1):
    ph = "p1a" if v1 else "p1b"
    wo = [(lambda m=m: wo_unit(a, m)) for m in range(16)]
    if v1:
        if OPT.get("cs4", 0): colsum4_setup(a)
        else: colsum_setup(a, CSF_Q)
        pre = OPT.get("p1pre", 12)
        for u in range(pre): wq_unit(a, u)
        nxt = pre
        for st in range(24):
            a.wait_vm([("W", 2*st), ("W", 2*st + 1)])
            if st in (9, 17) or (OPT.get("cs4", 0) and st in (10, 18)): a.wait_lg0()
            a.bar(f"{ph}_B{st}")
            if st == 22: kv_flag_store(a, 4, 0, (KVP[1], KVP[2]), ph + "_kf")
            w1st = OPT.get("w1st")
            if w1st is not None and st == w1st: w1_mid_store(a)
            if st == (1 if w1st is None else w1st + 6): prep_signal2(a)
            if st == 8: die_check_issue(a)
            if st == (12 if w1st is None else 13): prep_check2_issue(a)
            if st == 13: die_check(a)
            if st == 17: prep_check2(a)
            if OPT.get("ts3") == ph: ts(a, 36 + st)
            if OPT.get("cs4", 0): colsum4_hooks(a, slot_p1, st, ph)
            else: colsum_hooks(a, slot_p1, st, ph)
            if nxt < 48 and (nxt < 22 or st >= (nxt + 1 - 22) // 2 + 2):
                wq_unit(a, nxt); wq_unit(a, nxt + 1); nxt += 2
            elif st >= 18:
                for _ in range(3):
                    if wo: wo.pop(0)()
        a.bar(f"{ph}_end")
        while wo: wo.pop(0)()
    else:
        gemm192_loader(a, ph, wq_unit, slot_p1, A_P1, False, wo)
    kv_wait_k(a, ph)
    a.bar(f"{ph}_pubkv")

def _vf(a):
    kv_flag_store(a, 0, 1, (PV[1], PV[2]), "vf")

def read_mode(a):
    lab = a.name + "_mode"
    a(f"s_cmp_lg_u32 s{sPAIR}, 0")
    a(f"s_cbranch_scc1 {lab}")
    a(f"v_mov_b32 v{aT}, {MODEW}")
    a(f"ds_read_b32 v{aT}, v{aT}")
    a("s_waitcnt lgkmcnt(0)")
    a(f"v_readfirstlane_b32 s{sFAST}, v{aT}")
    a.label(lab)

def ts_real(a, idx):
    if not OPT["ts"]: return
    a.wait_lg0()
    a(f"s_memrealtime s[{sTS}:{sTS+1}]")
    a("s_waitcnt lgkmcnt(0)")
    a(f"v_writelane_b32 v{vTS}, s{sTS}, {idx}")

def span_stamp(a, which):
    if not OPT.get("span"): return
    a(f"s_memrealtime s[{sTS}:{sTS+1}]")
    a("s_waitcnt lgkmcnt(0)")
    a(f"s_cmp_lg_u32 s{sW}, 0"); a(f"s_cbranch_scc1 L_span{which}")
    a(f"s_lshl_b32 s{sT1}, s2, 3"); a(f"s_add_u32 s{sT1}, s{sT1}, {WS_TS + 4*which}")
    a(f"v_mov_b32 v80, s{sTS}"); a(f"v_mov_b32 v81, s{sT1}")
    a("s_mov_b64 exec, 1")
    a(f"buffer_store_dword v80, v81, s[{SRD_WS}:{SRD_WS+3}], 0 offen")
    a("s_mov_b64 exec, -1")
    a.label(f"L_span{which}")

def dump_ts(a):
    if not OPT["ts"]: return
    a(f"s_lshl_b32 s{sT1}, s2, 3"); a(f"s_add_u32 s{sT1}, s{sT1}, s{sW}"); a(f"s_lshl_b32 s{sT1}, s{sT1}, 8"); a(f"s_add_u32 s{sT1}, s{sT1}, {WS_TS}")
    a(f"v_lshlrev_b32 v{aT}, 2, v{vLANE}")
    a(f"buffer_store_dword v{vTS}, v{aT}, s[{SRD_WS}:{SRD_WS+3}], s{sT1} offen")

def stop_here(a, name):
    if OPT["stop"] == name:
        dump_ts(a)
        a("s_waitcnt vmcnt(0) lgkmcnt(0)")
        a("s_endpgm")

def build():
    top = Stream("t")
    common_init(top)
    c = Stream("c")
    span_stamp(c, 0)
    if OPT.get("exit0"):
        span_stamp(c, 1) if False else None
        c("s_waitcnt vmcnt(0)"); c("s_endpgm")
    ts(c, 0)
    ts_real(c, 62)
    compute_prologue(c)
    p1_compute(c, True)
    c.label("L_c_loop")
    ts(c, 3)
    if not OPT.get("vearly", 1): _vf(c)
    read_mode(c)
    attention_setup(c)
    c.bar("kready")
    ts(c, 4)
    c("s_branch L_attn")
    c.label("L_c_postattn")
    ts(c, 5)
    publish_pre(c, 1)
    c.bar("pubo")
    publish_local(c, "o", 1, True)
    c.bar("goo")
    stop_here(c, "p2")
    ts(c, 6)
    p3_compute(c)
    stop_here(c, "p3")
    ts(c, 10)
    p4_compute(c)
    stop_here(c, "p4")
    ts(c, 12)
    p5_compute_main(c)
    ts(c, 14)
    c(f"s_cmp_lg_u32 s{sPAIR}, 0")
    c("s_cbranch_scc1 L_c_final")
    st = c.state()
    red_epilogue(c, "p5a", RB_P5, True, False, False)
    publish_pre(c, 4)
    c.wait_all0()
    c.bar("p5a_pub")
    publish_local(c, "x2", 4, True)
    c.bar("p5a_go")
    stop_here(c, "p5")
    ts(c, 16)
    c(f"s_add_u32 s{sKVw}, s{sKVw}, {1 << 22}")
    c(f"s_mov_b32 s{sPAIRN}, 1")
    p1_compute(c, False)
    c(f"s_mov_b32 s{sPAIR}, 1")
    if OPT["ts"]:
        dump_ts(c); c("s_waitcnt vmcnt(0)"); c(f"v_mov_b32 v{vTS}, 0"); c(f"s_add_u32 s2, s2, 256")
    c("s_branch L_c_loop")
    c.label("L_c_final")
    c.set_state(st)
    red_epilogue(c, "p5b", RB_P5, True, True, False)
    c(f"s_or_b32 s{sT1}, s{sG}, s{sJ}"); c(f"s_or_b32 s{sT1}, s{sT1}, s{sW}")
    c(f"s_cmp_lg_u32 s{sT1}, 0"); c("s_cbranch_scc1 L_c_noep")
    c(f"v_mov_b32 v80, s{sEP}"); c(f"v_mov_b32 v81, {WS_EPOCH}")
    c(f"s_mov_b64 s[{sEXEC}:{sEXEC+1}], exec"); c("s_mov_b64 exec, 1")
    c(f"buffer_store_dword v80, v81, s[{SRD_WS}:{SRD_WS+3}], 0 offen sc1")
    c(f"s_mov_b64 exec, s[{sEXEC}:{sEXEC+1}]")
    c.label("L_c_noep")
    ts(c, 17)
    ts_real(c, 63)
    dump_ts(c)
    if OPT.get("span"): c("s_waitcnt vmcnt(0)")
    span_stamp(c, 1)
    c("s_waitcnt vmcnt(0)")
    c("s_endpgm")
    l = Stream("l")
    vT128 = 10
    l.label("L_loader")
    if OPT.get("exit0"): l("s_endpgm")
    ts(l, 0)
    if OPT.get("lprio", 1): l(f"s_setprio {OPT.get('lprio', 1)}")
    loader_prep(l)
    if OPT.get("early2", 1): prep2_fetch(l)
    loader_prologue(l)
    l(f"v_lshlrev_b32 v{vT128}, 7, v{vLANE}")
    if OPT.get("touch", 1) and OPT.get("cpf", 3) < 2:
        l(f"s_cmp_lg_u32 s{sW}, 7"); l("s_cbranch_scc1 L_l_t3")
        l("s_getpc_b64 s[94:95]")
        l.label("L_l_pc")
        l(f"s_sub_u32 s94, s94, L_l_pc-{NAME}_kernel"); l("s_subb_u32 s95, s95, 0")
        l(f"s_lshr_b32 s{sT1}, s2, 3"); l(f"s_lshl_b32 s{sT2}, s{sT1}, 11"); l(f"v_add_u32 v25, s{sT2}, v{vT128}")
        l(f"s_mov_b32 s{sT2}, L_exit-{NAME}_kernel"); l(f"v_min_u32 v25, s{sT2}, v25")
        l(f"s_mov_b64 exec, s[{sM16}:{sM16+1}]")
        l(f"s_mov_b32 m0, {DUMMY}"); l("s_nop 0")
        l(f"global_load_lds_dword v25, s[94:95]")
        l("s_mov_b64 exec, -1")
        l.label("L_l_t3")
    l(f"v_mov_b32 v20, {CNTW}"); l("v_mov_b32 v21, 0")
    l("ds_write_b32 v20, v21")
    if OPT.get("early2", 1):
        l(f"s_cmp_eq_u32 s{sW}, 4"); l("s_cbranch_scc1 L_l_w40")
        if OPT.get("wo2", 1):
            l(f"s_cmp_eq_u32 s{sW}, 7"); l("s_cbranch_scc1 L_l_w42")
        l("s_waitcnt vmcnt(4)")
        l.label("L_l_w42")
        l("s_waitcnt lgkmcnt(0)"); l("s_branch L_l_w41")
        l.label("L_l_w40")
        l("s_waitcnt vmcnt(0) lgkmcnt(0)")
        l.label("L_l_w41")
        l.vmq = []; l.lg = []
    else: l.wait_all0()
    l(f"s_add_u32 s{sEP}, s{sEP}, 16")
    ts(l, 13)
    l.bar("prep")
    ts(l, 15)
    prep_signal(l)
    if not OPT.get("early2", 1): prep2_fetch(l)
    prep2_emit(l)
    prep_wait(l)
    ts(l, 18)
    p1_loader(l, True)
    l.label("L_l_loop")
    ts(l, 3)
    kv_dma(l, 0)
    read_mode(l)
    attention_setup(l)
    kv_wait_v(l)
    l.wait_vm0()
    l.bar("kready")
    kv_dma(l, 1)
    if OPT.get("w2late", 1): w2_late_store(l)
    if OPT.get("ww1", 1): warm_w1(l)
    warm_exchange(l)
    if OPT.get("w2reg", 0):
        for q in range(11):
            l(f"s_add_u32 s{sT0}, s{sW2b}, {(32 + q) * 4096}")
            l(f"buffer_load_dwordx4 {vr(212 + 4*q, 4)}, v{vL16}, s[{SRD_WS}:{SRD_WS+3}], s{sT0} offen sc1")
    l.vmq = []
    ts(l, 4)
    TOUCH = OPT.get("touch", 1)
    if OPT.get("lprio", 1) and not OPT.get("aprio", 0): l("s_setprio 0")
    l("s_branch L_attn")
    l.label("L_l_postattn")
    l.vmq = []; l.lg = []
    if OPT.get("lprio", 1): l(f"s_setprio {OPT.get('lprio', 1)}")
    ts(l, 5)
    l.bar("pubo")
    if OPT.get("w2late", 1): prep_signal3(l)
    o1 = OPT.get("o1", 10); o2 = o1 + OPT.get("o2", 6); o3 = o2 + OPT.get("o3", 0)
    for u in range(o1): w1_unit(l, u)
    l.bar("goo")
    stop_here(l, "p2")
    ts(l, 6)
    l.bar("p3_b")
    assert o3 <= 18
    for u in range(o1, o2): w1_unit(l, u)
    l.bar("p3_red2")
    for u in range(o2, o3): w1_unit(l, u)
    l.bar("p3_pub")
    for u in range(o3, 22): w1_unit(l, u)
    l.bar("p3_go")
    stop_here(l, "p3")
    ts(l, 10)
    l(f"s_cmp_lg_u32 s{sPAIR}, 0")
    l("s_cbranch_scc1 L_l_p4b")
    st = l.state()
    ends = []
    nb0 = len(l.bars)
    for v1 in (True, False):
        if not v1:
            l.label("L_l_p4b"); l.set_state(st)
            logged = l.bars[nb0:]; l.bars = l.bars[:nb0]
        gemm192_loader(l, "p4", w1_unit, slot_p4, A_P4, True, [(lambda m=m: w2_unit(l, m)) for m in range(16)], colsum=CSF_1 if v1 else None)
        h1 = 16 + OPT.get("h1", 8); h2 = h1 + OPT.get("h2", 8)
        for m in range(16, h1): w2_unit(l, m)
        if OPT.get("w2reg", 0):
            for m in range(32, 38): w2_from_regs(l, m)
        l.bar("p4_pubh")
        for m in range(h1, h2): w2_unit(l, m)
        l.bar("p4_goh")
        ends.append(l.state())
        if v1: l("s_branch L_l_p5")
    assert ends[0] == ends[1] and l.bars[nb0:] == logged
    l.label("L_l_p5")
    if OPT.get("wb"):
        l(f"s_cmp_eq_u32 s{sPAIR}, 0"); l("s_cbranch_scc1 L_l_nowb")
        l(f"s_cmp_lg_u32 s{sW}, 7"); l("s_cbranch_scc1 L_l_nowb")
        l(f"s_cmp_lg_u32 s{sJ}, 0"); l("s_cbranch_scc1 L_l_nowb")
        l("buffer_wbl2 sc1")
        l.label("L_l_nowb")
    stop_here(l, "p4")
    ts(l, 12)
    l.wait_vm([("W2", m) for m in range(4)])
    l.bar("p5_a")
    w2n = 16 + OPT.get("h1", 8) + OPT.get("h2", 8)
    cond = []
    late5 = list(range(38, 43))
    early = OPT.get("wqe", 0)
    for st5 in range(1, 11):
        need = [("W2", m) for m in range(4*st5, min(4*st5 + 4, 43))]
        l.wait_vm(need)
        if OPT.get("w2reg", 0) and st5 in (8, 9): l.wait_lg0()
        l.bar(f"p5_B{st5}")
        if OPT.get("w2reg", 0):
            if st5 == 4:
                for m in range(38, 43): w2_from_regs(l, m)
        else:
            k_ = 0
            while w2n < 38 and k_ < 3:
                w2_unit(l, w2n); w2n += 1; k_ += 1
            if w2n >= 38 and st5 >= 4 and late5:
                for _ in range(min(3 - k_, len(late5))): w2_unit(l, late5.pop(0))
        if st5 >= 9 - early // 2 and st5 <= 8 and len(cond) < early:
            stt = l.state()
            l(f"s_cmp_lg_u32 s{sPAIR}, 0"); l(f"s_cbranch_scc1 L_l_wqe{st5}")
            for _ in range(2):
                wq_unit(l, len(cond)); cond.append(len(cond))
            l.label(f"L_l_wqe{st5}")
            l.set_state(stt)
    ts(l, 14)
    l(f"s_cmp_lg_u32 s{sPAIR}, 0")
    l("s_cbranch_scc1 L_l_final")
    l.vmq = l.vmq + [("W", u) for u in cond]
    n0 = len(cond); n1 = n0 + OPT.get("wq1", 6); n2 = n1 + OPT.get("wq2", 6)
    for u in range(n0, n1): wq_unit(l, u)
    l.bar("p5a_red2")
    for u in range(n1, n2): wq_unit(l, u)
    l.bar("p5a_pub")
    for u in range(n2, 22): wq_unit(l, u)
    l.bar("p5a_go")
    stop_here(l, "p5")
    ts(l, 16)
    l(f"s_mov_b32 s{sPAIRN}, 1")
    p1_loader(l, False)
    l(f"s_mov_b32 s{sPAIR}, 1")
    if OPT["ts"]:
        dump_ts(l); l("s_waitcnt vmcnt(0)"); l(f"v_mov_b32 v{vTS}, 0"); l(f"s_add_u32 s2, s2, 256")
    l("s_branch L_l_loop")
    l.label("L_l_final")
    l.bar("p5b_red2")
    dump_ts(l)
    l("s_waitcnt vmcnt(0)")
    l("s_endpgm")
    at = Stream("a")
    at.label("L_attn")
    attention(at)
    at(f"s_cmp_ge_u32 s{sW}, 4")
    at("s_cbranch_scc1 L_l_postattn")
    at("s_branch L_c_postattn")
    assert c.bars == l.bars, "\n".join(f"{x} | {y}" for x, y in zip(c.bars, l.bars)) + f"\n{len(c.bars)} {len(l.bars)}"
    al = lambda k: [f".p2align {OPT[k]}"] if OPT.get(k) else []
    sh = lambda k: ["s_nop 0"] * OPT.get(k, 0)
    lines = top.L + sh("shc") + c.L + al("all") + sh("shl0") + l.L + al("ala") + sh("sha") + at.L + ["L_exit:", "s_endpgm"]
    return lines

HEAD = f"""; Fused two-pair transformer block (sliding-window attention + GELU MLP), one persistent launch.
; @launch grid=(256,1,1) block=(512,1,1) lds={LDS_TOTAL}
.amdgcn_target "amdgcn-amd-amdhsa--gfx950"
.text
.globl {NAME}_kernel
.p2align 8
.type {NAME}_kernel,@function
{NAME}_kernel:
"""
TAIL = f"""
.section .rodata,"a"
.p2align 6
.amdhsa_kernel {NAME}_kernel
  .amdhsa_next_free_vgpr 256
  .amdhsa_next_free_sgpr 102
  .amdhsa_accum_offset 256
  .amdhsa_group_segment_fixed_size 0
  .amdhsa_kernarg_size 88
  .amdhsa_user_sgpr_count 2
  .amdhsa_user_sgpr_kernarg_segment_ptr 1
  .amdhsa_system_sgpr_workgroup_id_x 1
.end_amdhsa_kernel
"""
if __name__ == "__main__":
    lines = build()
    errs = lint(lines)
    for e in errs[:40]: print("LINT", e, file=sys.stderr)
    out = OPT.get("out", f"cdna_kernels/{NAME}.s")
    open(out, "w").write(HEAD + "\n".join("    " + x if not x.endswith(":") else x for x in lines) + TAIL)
    print(f"wrote {out}: {len(lines)} lines, {len(errs)} lint findings", file=sys.stderr)
```
